```python
import torch

def _softmax(x, axis=-1):
    return torch.softmax(x, dim=axis)
def _gelu(x):
    return torch.nn.functional.gelu(x, approximate="tanh")
def _silu(x):
    return torch.nn.functional.silu(x)
def _sigmoid(x):
    return torch.sigmoid(x)
def _layernorm(x, axis=-1, eps=1e-5):
    m = x.mean(dim=axis, keepdim=True)
    v = x.var(dim=axis, keepdim=True, unbiased=False)
    return (x - m) / torch.sqrt(v + eps)
def _scatter_add(tgt, idx, src, axis=0):
    return tgt.clone().index_add_(axis, idx, src)
def _segment_sum(src, seg, n):
    out = torch.zeros((n,) + src.shape[1:], dtype=src.dtype)
    return out.index_add_(0, seg, src)
def _pad(x, pw):
    flat = tuple(v for pair in reversed(pw) for v in pair)
    return torch.nn.functional.pad(x, flat)

kernel_name = 'parallel_sum__sliding_local_dilated__dense_activation_squared_relu__prompt'

def setup_inputs():

    _w = (lambda a: (lambda t: t.to(torch.bfloat16) if t.is_floating_point() else t)(torch.as_tensor(a)))
    def _A_setup():
        B, S, D = 1, 2048, 576
        return {
            "x": _w((lambda *s: torch.randn(*s, dtype=torch.bfloat16) * 0.05)(B, S, D)),
            "wqkv": _w((lambda *s: torch.randn(*s, dtype=torch.bfloat16) * 0.1)(D, 3 * D)),
            "wo": _w((lambda *s: torch.randn(*s, dtype=torch.bfloat16) * 0.05)(D, D)),
        }
    _A_in = _A_setup()

    def _B_setup():
        B, S, D, F = 1, 2048, 576, 4608
        return {
            "x": _w((lambda *s: torch.randn(*s, dtype=torch.bfloat16) * 0.05)(B, S, D)),
            "w1": _w((lambda *s: torch.randn(*s, dtype=torch.bfloat16) * 0.05)(D, F)),
            "b1": _w((lambda *s: torch.randn(*s, dtype=torch.bfloat16) * 0.2)(F)),
            "w2": _w((lambda *s: torch.randn(*s, dtype=torch.bfloat16) * 0.05)(F, D)),
            "b2": _w((lambda *s: torch.randn(*s, dtype=torch.bfloat16) * 1.6)(D)),
        }
    _B_in = _B_setup()

    return {
        "A_x": _A_in["x"],
        "A_wqkv": _A_in["wqkv"],
        "A_wo": _A_in["wo"],
        "B_x": _B_in["x"],
        "B_w1": _B_in["w1"],
        "B_b1": _B_in["b1"],
        "B_w2": _B_in["w2"],
        "B_b2": _B_in["b2"],
    }

def reference(A_x, A_wqkv, A_wo, B_x, B_w1, B_b1, B_w2, B_b2):
    def _A_ref(x, wqkv, wo):
        B, S, D = x.shape
        H = 32; Dh = D // H
        W, dil = 8, 2
        qkv = (lambda x, *d: x.permute(*d))((x @ wqkv).reshape(B, S, 3, H, Dh), 2, 0, 3, 1, 4)
        q, k, v = qkv[0], qkv[1], qkv[2]
        scale = Dh ** -0.5
        pos = torch.arange(S)
        off = torch.arange(W) * dil
        idx = pos[:, None] - off[None, :]
        mask = idx >= 0
        idx_c = torch.where(mask, idx, 0).reshape(-1)
        kg = k[:, :, idx_c, :].reshape(B, H, S, W, Dh)
        vg = v[:, :, idx_c, :].reshape(B, H, S, W, Dh)
        logits = torch.einsum("bhsd,bhswd->bhsw", q, kg) * scale
        logits = torch.where(mask[None, None, :, :], logits, -1e9)
        attn = _softmax(logits, axis=-1)
        o = torch.einsum("bhsw,bhswd->bhsd", attn, vg)
        return (lambda x, *d: x.permute(*d))(o, 0, 2, 1, 3).reshape(B, S, D) @ wo

    def _B_ref(x, w1, b1, w2, b2):
        h = torch.einsum("bsd,df->bsf", x, w1) + b1
        zero = torch.zeros_like(h)
        r = torch.where(h > zero, h, zero)
        h = r * r
        out = torch.einsum("bsf,fd->bsd", h, w2) + b2
        return out

    x = A_x
    xn = _layernorm(x, axis=-1)
    return x + _A_ref(xn, A_wqkv, A_wo) + _B_ref(xn, B_w1, B_b1, B_w2, B_b2)
```

```python
import re

_REG = re.compile(r'^(-|\|)?(?:abs\()?([vsa])(?:(\d+)|\[(\d+):(\d+)\])\)?\|?$')


def _regs(tok):
    t = tok.strip()
    if t in ('vcc',):
        return ('s', [106, 107])
    if t == 'vcc_lo':
        return ('s', [106])
    if t == 'vcc_hi':
        return ('s', [107])
    if t == 'exec':
        return ('s', [126, 127])
    if t == 'exec_lo':
        return ('s', [126])
    if t == 'exec_hi':
        return ('s', [127])
    if t == 'm0':
        return ('s', [124])
    m = _REG.match(t)
    if not m:
        return None
    f = m.group(2)
    if m.group(3) is not None:
        n = [int(m.group(3))]
    else:
        n = list(range(int(m.group(4)), int(m.group(5)) + 1))
    if f == 'a':
        return ('v', [x + 1000 for x in n])
    return (f, n)


def _split(s):
    ops, depth, cur = [], 0, ''
    for ch in s + ',':
        if ch in '[(':
            depth += 1
        elif ch in '])':
            depth -= 1
        if ch == ',' and depth == 0:
            ops.append(cur.strip())
            cur = ''
        else:
            cur += ch
    return [o for o in ops if o]


TRANS = ('v_exp_f32', 'v_log_f32', 'v_rcp_f32', 'v_rsq_f32', 'v_sqrt_f32', 'v_sin_f32', 'v_cos_f32')


class Ins:
    __slots__ = ('text', 'mn', 'kind', 'vd', 'vs', 'sd', 'ss', 'passes', 'srcC', 'srcAB', 'states', 'stdata', 'mods')

    def __init__(self, text):
        self.text = text
        parts = text.split(None, 1)
        mn = parts[0]
        self.mn = mn
        rest = parts[1] if len(parts) > 1 else ''
        ops = _split(rest)
        mods = []
        clean = []
        for o in ops:
            w = o.split()
            clean.append(w[0])
            mods += w[1:]
        self.mods = mods
        ops = clean
        self.vd, self.vs, self.sd, self.ss = set(), set(), set(), set()
        self.passes = 0
        self.srcC, self.srcAB, self.stdata = set(), set(), set()
        self.states = 1

        def rd(tok):
            r = _regs(tok)
            if r:
                (self.vs if r[0] == 'v' else self.ss).update(r[1])

        def wr(tok):
            r = _regs(tok)
            if r:
                (self.vd if r[0] == 'v' else self.sd).update(r[1])

        for md in mods:
            if md.startswith('offset:'):
                v = int(md.split(':')[1], 0)
                if mn.startswith('buffer_'):
                    assert 0 <= v < 4096, text
                elif mn.startswith('ds_'):
                    assert 0 <= v < 65536, text
                elif mn.startswith('global_'):
                    assert -4096 <= v < 4096, text
        if mn.startswith('v_mfma'):
            self.kind = 'mfma'
            self.passes = 8 if '32x32' in mn else 4
            wr(ops[0])
            for o in ops[1:]:
                rd(o)
            for o in ops[1:3]:
                r = _regs(o)
                if r and r[0] == 'v':
                    self.srcAB.update(r[1])
            r = _regs(ops[3])
            if r and r[0] == 'v':
                self.srcC.update(r[1])
        elif mn.startswith('v_'):
            self.kind = 'valu'
            base = mn.replace('_e32', '').replace('_e64', '')
            if base in TRANS:
                self.kind = 'trans'
            if base.startswith('v_dot2'):
                self.kind = 'dot'
            if base.startswith('v_cmp'):
                wr(ops[0])
                for o in ops[1:]:
                    rd(o)
            elif base.startswith('v_permlane') and 'swap' in base:
                for o in ops[:2]:
                    wr(o)
                    rd(o)
            elif base in ('v_add_co_u32', 'v_sub_co_u32', 'v_addc_co_u32', 'v_subb_co_u32'):
                wr(ops[0])
                wr(ops[1])
                for o in ops[2:]:
                    rd(o)
            else:
                wr(ops[0])
                for o in ops[1:]:
                    rd(o)
                if base in ('v_fmac_f32', 'v_dot2c_f32_bf16', 'v_pk_fmac_f16', 'v_writelane_b32'):
                    rd(ops[0])
                if base == 'v_dot2c_f32_bf16':
                    self.srcC.update(_regs(ops[0])[1])
                    for o in ops[1:]:
                        r = _regs(o)
                        if r and r[0] == 'v':
                            self.srcAB.update(r[1])
                if base == 'v_dot2_f32_bf16':
                    r = _regs(ops[3])
                    if r and r[0] == 'v':
                        self.srcC.update(r[1])
                    for o in ops[1:3]:
                        r = _regs(o)
                        if r and r[0] == 'v':
                            self.srcAB.update(r[1])
        elif mn.startswith('ds_read') or mn.startswith('ds_bpermute') or mn.startswith('ds_swizzle'):
            self.kind = 'ds'
            wr(ops[0])
            for o in ops[1:]:
                rd(o)
        elif mn.startswith('ds_'):
            self.kind = 'ds'
            for o in ops:
                rd(o)
        elif mn.startswith('buffer_load') or mn.startswith('global_load'):
            self.kind = 'vmem'
            if 'lds' in mods or '_lds_' in mn:
                self.kind = 'dma'
                for o in ops:
                    rd(o)
                self.ss.add(124)
            else:
                wr(ops[0])
                for o in ops[1:]:
                    rd(o)
        elif mn.startswith('buffer_store'):
            self.kind = 'vmem'
            for o in ops:
                rd(o)
            if 'x4' in mn or 'x3' in mn:
                self.stdata.update(_regs(ops[0])[1])
        elif mn.startswith('buffer_atomic'):
            self.kind = 'vmem'
            for o in ops:
                rd(o)
            if 'sc0' in mods:
                wr(ops[0])
        elif mn.startswith('buffer_'):
            self.kind = 'other'
        elif mn.startswith('s_load') or mn in ('s_memtime', 's_memrealtime'):
            self.kind = 'smem'
            wr(ops[0])
            for o in ops[1:]:
                rd(o)
        elif mn == 's_nop':
            self.kind = 'nop'
            self.states = int(ops[0], 0) + 1
        elif mn.startswith('s_'):
            self.kind = 'salu'
            nodst = ('s_cmp', 's_waitcnt', 's_barrier', 's_branch', 's_cbranch', 's_endpgm', 's_sleep', 's_setprio',
                     's_bitcmp', 's_setreg')
            if any(mn.startswith(x) for x in nodst):
                for o in ops:
                    rd(o)
            else:
                wr(ops[0])
                for o in ops[1:]:
                    rd(o)
                if 'saveexec' in mn:
                    self.sd.update([126, 127])
        else:
            raise ValueError('unknown instruction ' + text)

    @property
    def is_valu(self):
        return self.kind in ('valu', 'trans', 'dot')


def need_states(p, c):
    n = 0
    cw = c.vd
    cr = c.vs
    if p.is_valu:
        if c.kind == 'mfma' and (p.vd & cr):
            n = max(n, 2)
        if p.sd:
            hit = p.sd & c.ss
            if hit:
                if c.kind in ('vmem', 'dma'):
                    n = max(n, 5)
                elif c.is_valu or c.kind == 'mfma':
                    n = max(n, 4 if c.mn.startswith(('v_readlane', 'v_writelane')) else 2)
                else:
                    n = max(n, 1)
            if (p.sd & {106, 107}) and c.mn.startswith(('s_cbranch_vcc',)):
                n = max(n, 5)
        if p.vd & cr:
            if c.mn.startswith(('v_readfirstlane', 'v_readlane')):
                n = max(n, 1)
            if c.mn.startswith('v_permlane') or 'dpp' in c.mn or any(m.startswith(('row_', 'quad_perm', 'wave_')) for m in c.mods):
                n = max(n, 2)
            if p.kind == 'trans' and c.kind != 'trans':
                n = max(n, 1)
            if 'sdwa' in p.mn or any(m.startswith('op_sel') for m in p.mods):
                n = max(n, 1)
        if p.kind == 'dot':
            if p.vd & (cr | cw):
                if c.mn == p.mn and not (p.vd & c.srcAB):
                    pass
                else:
                    n = max(n, 3)
    if p.kind == 'mfma':
        ps = p.passes
        if c.kind == 'mfma':
            if p.vd & c.srcAB:
                n = max(n, ps + 4)
            if p.vd & c.srcC:
                if not (p.vd == c.srcC and c.passes == ps):
                    n = max(n, ps + 2)
            elif p.vd & c.vd:
                n = max(n, ps + 2)
        else:
            if p.vd & (cr | cw):
                n = max(n, ps + 4)
            if c.is_valu and (p.srcC & cw):
                n = max(n, ps - 1)
    if p.stdata and (p.stdata & cw):
        n = max(n, 2)
    if p.kind == 'salu' and 124 in p.sd and c.kind == 'dma':
        n = max(n, 1)
    return n


class Counter:
    def __init__(self, name, cap):
        self.name, self.cap = name, cap
        self.q = []

    def copy(self):
        c = Counter(self.name, self.cap)
        c.q = list(self.q)
        return c

    def issue(self, tag):
        self.q.append(tag)

    def need(self, tags):
        if isinstance(tags, str) or isinstance(tags, tuple):
            tags = [tags]
        last = -1
        for i, t in enumerate(self.q):
            if t in tags:
                last = i
        if last < 0:
            return None
        n = len(self.q) - 1 - last
        n = min(n, self.cap)
        return n

    def waited(self, n):
        if len(self.q) > n:
            self.q = self.q[len(self.q) - n:] if n else []


class Gen:
    def __init__(self):
        self.items = []
        self.vm = Counter('vmcnt', 63)
        self.lg = Counter('lgkmcnt', 15)
        self.seen = set()

    def raw(self, text):
        self.items.append(text)

    def label(self, name):
        self.items.append(name + ':')

    def comment(self, text):
        self.items.append('; ' + text)

    def op(self, text, tag=None):
        ins = Ins(text)
        self.items.append(ins)
        if ins.kind in ('vmem', 'dma'):
            self.vm.issue(tag)
            self.seen.add(tag)
        elif ins.kind == 'ds':
            self.lg.issue(tag)
        elif ins.kind == 'smem':
            self.lg.issue('smem')
        return ins

    def ops(self, text):
        for line in text.strip().splitlines():
            line = line.split(';')[0].strip()
            if line:
                self.op(line)

    def wait(self, vm=None, lg=None):
        parts = []
        if vm is not None:
            n = self.vm.need(vm)
            if n is not None:
                parts.append('vmcnt(%d)' % n)
                self.vm.waited(n)
        if lg is not None:
            n = self.lg.need(lg)
            if n is not None:
                if 'smem' in self.lg.q:
                    n = 0
                parts.append('lgkmcnt(%d)' % n)
                self.lg.waited(n)
        if parts:
            self.op('s_waitcnt ' + ' '.join(parts))

    def wait_all(self, vm=True, lg=True):
        parts = []
        if vm:
            parts.append('vmcnt(0)')
            self.vm.waited(0)
        if lg:
            parts.append('lgkmcnt(0)')
            self.lg.waited(0)
        self.op('s_waitcnt ' + ' '.join(parts))

    def fence(self):
        self.items.append('FENCE')

    def finalize(self):
        out = []
        hist = []
        LOOK = 20
        nnops = 0
        for it in self.items:
            if isinstance(it, str):
                if it == 'FENCE':
                    dist = 0
                    need = 0
                    for p in reversed(hist):
                        w = 0
                        if p.kind == 'mfma':
                            w = p.passes + 4
                        elif p.is_valu:
                            w = 5 if p.sd else 3
                        elif p.stdata:
                            w = 2
                        elif p.kind == 'salu' and 124 in p.sd:
                            w = 1
                        need = max(need, w - dist)
                        dist += p.states
                        if dist >= LOOK:
                            break
                    while need > 0:
                        k = min(need, 16)
                        nop = Ins('s_nop %d' % (k - 1))
                        out.append('    ' + nop.text)
                        hist.append(nop)
                        need -= k
                    continue
                out.append(it)
                continue
            dist = 0
            need = 0
            for p in reversed(hist):
                w = need_states(p, it)
                if w - dist > need:
                    need = w - dist
                dist += p.states
                if dist >= LOOK:
                    break
            while need > 0:
                k = min(need, 16)
                nop = Ins('s_nop %d' % (k - 1))
                out.append('    ' + nop.text + '   ; auto')
                hist.append(nop)
                nnops += 1
                need -= k
            out.append('    ' + it.text)
            hist.append(it)
            if len(hist) > 64:
                hist = hist[-32:]
        return '\n'.join(out) + '\n'


class RegAlloc:
    def __init__(self, prefix, start, limit):
        self.prefix, self.next, self.limit = prefix, start, limit
        self.names = {}

    def alloc(self, name, n=1, align=1):
        a = (self.next + align - 1) // align * align
        assert a + n <= self.limit, 'out of %s regs at %s' % (self.prefix, name)
        self.next = a + n
        self.names[name] = (a, n)
        return a


def V(a, n=1):
    return 'v%d' % a if n == 1 else 'v[%d:%d]' % (a, a + n - 1)


def S(a, n=1):
    return 's%d' % a if n == 1 else 's[%d:%d]' % (a, a + n - 1)
```

```python
import sys, os
sys.path.insert(0, os.path.dirname(os.path.abspath(__file__)))
from asmgen import Gen, RegAlloc, V, S

NAME = 'parallel_sum__sliding_local_dilated__dense_activation_squared_relu__prompt'

WS_H = 0
WS_O = WS_H + 16 * 12 * 96 * 1024
WS_KV = WS_O + 16 * 144 * 1024
WS_P = WS_KV + 64 * 10240
WS_FLAG = WS_P + 5 * 16 * 3 * 96 * 1024
WS_DBG = WS_FLAG + 256 * 16 * 128
WS_SIZE = WS_DBG + (16 << 20)

LDS_BYTES = 163840
XRING = 122880
SCRATCH = 155648

ONES = 0x3f803f80


class Cfg:
    stamps = False
    stop_after = None
    nodots = False


def kernel_header(g, name):
    g.raw('.globl %s' % name)
    g.raw('.p2align 8')
    g.raw('.type %s,@function' % name)
    g.label(name)


def kernel_desc(name, vgpr, sgpr=96):
    acc = (vgpr + 3) // 4 * 4
    return '\n'.join([
        '.p2align 6',
        '.amdhsa_kernel %s' % name,
        '  .amdhsa_next_free_vgpr %d' % vgpr,
        '  .amdhsa_next_free_sgpr %d' % sgpr,
        '  .amdhsa_accum_offset %d' % acc,
        '  .amdhsa_group_segment_fixed_size 0',
        '  .amdhsa_kernarg_size 88',
        '  .amdhsa_user_sgpr_count 2',
        '  .amdhsa_user_sgpr_kernarg_segment_ptr 1',
        '  .amdhsa_system_sgpr_workgroup_id_x 1',
        '.end_amdhsa_kernel'])


SRD_X, SRD_W, SRD_W2, SRD_WS, SRD_B1, SRD_DBG = 4, 8, 12, 16, 20, 24
S_M, S_S, S_R, S_WV, S_RG, S_CH = 28, 29, 30, 31, 32, 33
S_ONES, S_T0, S_T1, S_T2, S_T3 = 34, 35, 36, 37, 38
S_WOFF, S_XOFF, S_W2OFF, S_LDSW, S_LDSX = 39, 40, 41, 42, 43
S_HOWN, S_HB, S_HC, S_NONCE, S_NONCE2 = 44, 45, 46, 47, 48
S_C, S_CB, S_CC = 49, 50, 51
S_PERM = 52
S_EXEC = 54
S_KA = 56
S_STAMP = 80
S_FLAGOWN, S_FLAGB, S_FLAGC = 92, 93, 94
S_MYN = 53


def gen_main(cfg):
    g = Gen()
    name = 'main_kernel'
    kernel_header(g, name)
    op = g.op

    op('s_cmp_ge_u32 s2, 256')
    op('s_cbranch_scc1 L_exit')
    op('s_load_dwordx4 %s, s[0:1], 0' % S(S_KA, 4))
    op('s_load_dwordx2 %s, s[0:1], 16' % S(S_KA + 4, 2))
    op('s_load_dwordx4 %s, s[0:1], 32' % S(S_KA + 8, 4))
    op('s_load_dwordx2 %s, s[0:1], 48' % S(S_KA + 12, 2))
    op('s_load_dwordx4 %s, s[0:1], 72' % S(S_KA + 16, 4))
    if cfg.stamps:
        op('s_memtime %s' % S(S_STAMP, 2))
    op('s_memrealtime %s' % S(S_KA + 20, 2))
    va = RegAlloc('v', 1, 256)
    vL = va.alloc('lane')
    vT = [va.alloc('t%d' % i) for i in range(8)]
    op('v_lshrrev_b32 %s, 6, v0' % V(vT[0]))
    op('v_and_b32 %s, 63, v0' % V(vL))
    op('v_readfirstlane_b32 %s, %s' % (S(S_WV), V(vT[0])))
    op('s_and_b32 %s, s2, 7' % S(S_T0))
    op('s_lshr_b32 %s, s2, 3' % S(S_T1))
    op('s_and_b32 %s, %s, 7' % (S(S_T1), S(S_T1)))
    op('s_lshr_b32 %s, s2, 6' % S(S_T2))
    op('s_and_b32 %s, %s, 3' % (S(S_S), S(S_T0)))
    op('s_and_b32 %s, %s, 3' % (S(S_R), S(S_T1)))
    op('s_lshl_b32 %s, %s, 2' % (S(S_M), S(S_T2)))
    op('s_lshr_b32 %s, %s, 2' % (S(S_T0), S(S_T0)))
    op('s_lshl_b32 %s, %s, 1' % (S(S_T0), S(S_T0)))
    op('s_add_u32 %s, %s, %s' % (S(S_M), S(S_M), S(S_T0)))
    op('s_lshr_b32 %s, %s, 2' % (S(S_T1), S(S_T1)))
    op('s_add_u32 %s, %s, %s' % (S(S_M), S(S_M), S(S_T1)))
    op('s_and_b32 %s, %s, 3' % (S(S_RG), S(S_WV)))
    op('s_lshr_b32 %s, %s, 2' % (S(S_CH), S(S_WV)))
    op('s_mov_b32 %s, 0x%x' % (S(S_ONES), ONES))
    op('s_mov_b32 %s, 0x07060302' % S(S_PERM))
    vXD = [va.alloc('xd%d' % i) for i in range(2)]
    op('s_lshl_b32 %s, %s, 7' % (S(S_T0), S(S_M)))
    op('s_lshl_b32 %s, %s, 4' % (S(S_T1), S(S_WV)))
    op('s_add_u32 %s, %s, %s' % (S(S_T0), S(S_T0), S(S_T1)))
    op('s_mul_i32 %s, %s, 1152' % (S(S_T0), S(S_T0)))
    op('v_lshrrev_b32 %s, 3, %s' % (V(vT[0]), V(vL)))
    op('v_mul_u32_u24 %s, 1152, %s' % (V(vT[0]), V(vT[0])))
    op('v_add_u32 %s, %s, %s' % (V(vT[0]), S(S_T0), V(vT[0])))
    op('v_and_b32 %s, 7, %s' % (V(vT[1]), V(vL)))
    op('v_lshrrev_b32 %s, 4, %s' % (V(vT[2]), V(vL)))
    op('v_xor_b32 %s, %s, %s' % (V(vT[1]), V(vT[1]), V(vT[2])))
    op('v_lshl_add_u32 %s, %s, 4, %s' % (V(vXD[0]), V(vT[1]), V(vT[0])))
    op('v_xor_b32 %s, 4, %s' % (V(vT[1]), V(vT[1])))
    op('v_lshl_add_u32 %s, %s, 4, %s' % (V(vXD[1]), V(vT[1]), V(vT[0])))
    op('v_add_u32 %s, %d, %s' % (V(vXD[1]), 8 * 1152, V(vXD[1])))
    op('s_lshl_b32 %s, %s, 11' % (S(S_LDSX), S(S_WV)))
    op('s_add_u32 %s, %s, %d' % (S(S_LDSX), S(S_LDSX), XRING))
    vXR = [va.alloc('xr%d' % j) for j in range(4)]
    op('v_and_b32 %s, 31, %s' % (V(vT[0]), V(vL)))
    op('v_lshrrev_b32 %s, 5, %s' % (V(vT[1]), V(vL)))
    op('v_bfe_u32 %s, %s, 1, 3' % (V(vT[2]), V(vL)))
    op('v_xor_b32 %s, %s, %s' % (V(vT[1]), V(vT[1]), V(vT[2])))
    op('s_lshl_b32 %s, %s, 12' % (S(S_T0), S(S_RG)))
    op('s_add_u32 %s, %s, %d' % (S(S_T0), S(S_T0), XRING))
    op('v_lshlrev_b32 %s, 7, %s' % (V(vT[0]), V(vT[0])))
    op('v_add_u32 %s, %s, %s' % (V(vT[0]), S(S_T0), V(vT[0])))
    for j in range(4):
        op('v_xor_b32 %s, %d, %s' % (V(vT[2]), 2 * j, V(vT[1])))
        op('v_lshl_add_u32 %s, %s, 4, %s' % (V(vXR[j]), V(vT[2]), V(vT[0])))
    g.wait(lg='smem')
    op('s_mov_b32 %s, %s' % (S(SRD_X), S(S_KA)))
    op('s_mov_b32 %s, %s' % (S(SRD_X + 1), S(S_KA + 1)))
    op('s_mov_b32 %s, %d' % (S(SRD_X + 2), 2048 * 1152))
    op('s_mov_b32 %s, 0x20000' % S(SRD_X + 3))
    op('s_mov_b32 %s, %s' % (S(SRD_WS), S(S_KA + 18)))
    op('s_mov_b32 %s, %s' % (S(SRD_WS + 1), S(S_KA + 19)))
    op('s_mov_b32 %s, %d' % (S(SRD_WS + 2), WS_SIZE))
    op('s_mov_b32 %s, 0x20000' % S(SRD_WS + 3))
    op('s_mov_b32 %s, %s' % (S(SRD_DBG), S(S_KA + 16)))
    op('s_mov_b32 %s, %s' % (S(SRD_DBG + 1), S(S_KA + 17)))
    op('s_mov_b32 %s, 256' % S(SRD_DBG + 2))
    op('s_mov_b32 %s, 0x20000' % S(SRD_DBG + 3))
    op('s_mov_b32 %s, 0' % S(S_XOFF))
    op('s_or_b32 %s, %s, 1' % (S(S_MYN), S(S_KA + 20)))

    def xdma(cx):
        out = []
        for i in range(2):
            out.append([('s_add_u32 m0, %s, %d' % (S(S_LDSX), (cx % 2) * 16384 + i * 1024), None),
                        ('s_mov_b32 %s, %d' % (S(S_XOFF), cx * 128), None),
                        ('buffer_load_dwordx4 %s, %s, %s offen lds' % (V(vXD[i]), S(SRD_X, 4), S(S_XOFF)), ('x', cx))])
        return out

    def emit_group(grp):
        for text, tag in grp:
            op(text, tag)

    for grp in xdma(0):
        emit_group(grp)

    op('s_cmp_eq_u32 %s, 3' % S(S_R))
    g.fence()
    op('s_cbranch_scc1 L_roleA')
    state = (g.vm.copy(), g.lg.copy(), va.next)

    common = dict(g=g, va=va, vL=vL, vT=vT, vXR=vXR, xdma=xdma, emit_group=emit_group, cfg=cfg)
    gen_role_F(**common)
    total_v = va.next
    g.label('L_roleA')
    g.vm, g.lg, va.next = state[0], state[1], state[2]
    gen_role_A(**common)
    total_v = max(total_v, va.next)
    g.label('L_exit')
    op('s_endpgm')
    return g.finalize(), kernel_desc(name, 256)


def stamp(g, cfg, idx):
    if not cfg.stamps:
        return
    g.op('s_memtime %s' % S(S_KA + 20, 2))
    g.wait(lg='smem')
    g.op('s_sub_u32 %s, %s, %s' % (S(S_STAMP + 2 + idx), S(S_KA + 20), S(S_STAMP)))


def store_stamps(g, cfg, vT, n):
    if not cfg.stamps:
        return
    op = g.op
    op('s_lshl_b32 %s, s2, 3' % S(S_T0))
    op('s_add_u32 %s, %s, %s' % (S(S_T0), S(S_T0), S(S_WV)))
    op('s_lshl_b32 %s, %s, 6' % (S(S_T0), S(S_T0)))
    op('s_add_u32 %s, %s, %d' % (S(S_T0), S(S_T0), WS_DBG))
    op('v_mov_b32 %s, 0' % V(vT[0]))
    for i in range(n):
        op('v_mov_b32 %s, %s' % (V(vT[1]), S(S_STAMP + 2 + i)))
        op('buffer_store_dword %s, %s, %s, %s offen offset:%d' % (V(vT[1]), V(vT[0]), S(SRD_WS, 4), S(S_T0), 4 * i))


def tr_bases(g, va, vL, vT, pitch, swz, set1_off, tagname):
    op = g.op
    op('v_lshrrev_b32 %s, 5, %s' % (V(vT[0]), V(vL)))
    op('v_bfe_u32 %s, %s, 2, 2' % (V(vT[1]), V(vL)))
    op('v_lshl_add_u32 %s, %s, 2, %s' % (V(vT[0]), V(vT[0]), V(vT[1])))
    op('s_lshl_b32 %s, %s, 5' % (S(S_T0), S(S_CH)))
    op('v_add_u32 %s, %s, %s' % (V(vT[0]), S(S_T0), V(vT[0])))
    op('v_mul_u32_u24 %s, %d, %s' % (V(vT[0]), pitch, V(vT[0])))
    op('v_bfe_u32 %s, %s, 4, 1' % (V(vT[2]), V(vL)))
    op('v_lshl_add_u32 %s, %s, 5, %s' % (V(vT[0]), V(vT[2]), V(vT[0])))
    op('v_and_b32 %s, 3, %s' % (V(vT[2]), V(vL)))
    op('v_lshl_add_u32 %s, %s, 3, %s' % (V(vT[0]), V(vT[2]), V(vT[0])))
    res = {}
    if swz:
        op('v_bfe_u32 %s, %s, 3, 1' % (V(vT[1]), V(vL)))
        op('v_lshlrev_b32 %s, 6, %s' % (V(vT[1]), V(vT[1])))
        e0, o0, e1, o1 = [va.alloc('%s%d' % (tagname, i)) for i in range(4)]
        op('v_add_u32 %s, %s, %s' % (V(e0), V(vT[0]), V(vT[1])))
        op('v_sub_u32 %s, %s, %s' % (V(o0), V(vT[0]), V(vT[1])))
        op('v_add_u32 %s, %d, %s' % (V(e1), set1_off, V(e0)))
        op('v_add_u32 %s, %d, %s' % (V(o1), set1_off, V(o0)))
        res = {(0, 0): e0, (1, 0): o0, (0, 1): e1, (1, 1): o1}
    else:
        b0, b1 = [va.alloc('%s%d' % (tagname, i)) for i in range(2)]
        op('v_mov_b32 %s, %s' % (V(b0), V(vT[0])))
        op('v_add_u32 %s, %d, %s' % (V(b1), set1_off, V(vT[0])))
        res = {(0, 0): b0, (1, 0): b0, (0, 1): b1, (1, 1): b1}
    return res


def div24(g, vT, vL, i, vr, vp):
    op = g.op
    op('v_add_u32 %s, %d, %s' % (V(vp), 64 * i, V(vL)))
    op('v_mul_u32_u24 %s, 2731, %s' % (V(vr), V(vp)))
    op('v_lshrrev_b32 %s, 16, %s' % (V(vr), V(vr)))
    op('v_mul_u32_u24 %s, 24, %s' % (V(vT[7]), V(vr)))
    op('v_sub_u32 %s, %s, %s' % (V(vp), V(vp), V(vT[7])))


class Stage:
    def __init__(self, **kw):
        self.__dict__.update(kw)


def run_pipeline(g, stages, R_of, ring, hooks):
    op = g.op
    n = len(stages)

    def trread(st, e, t):
        par = t & 1
        off = st.slot_addr + (16 * e) * st.pitch + t * 64
        sset = 0
        if off + 8 * st.pitch > 65535:
            off -= st.set1_off
            sset = 1
        b = st.bases[(par, sset)]
        for h in range(2):
            op('ds_read_b64_tr_b16 %s, %s offset:%d' % (V(ring + 4 * t + 2 * h, 2), V(b), off + 8 * h * st.pitch),
               ('w', st.idx, e, t))

    def barrier(j):
        st = stages[j]
        g.wait(vm=st.waittags)
        op('s_barrier')

    pending = []

    def after_barrier(j):
        st = stages[j]
        for grp in st.after_barrier:
            for text, tag in grp:
                op(text, tag)
        for k in range(n):
            if stages[k].issue_at == j:
                pending.extend(stages[k].dma)
        pending.extend(st.extra_dma)

    def drain(k):
        for _ in range(k):
            if pending:
                for text, tag in pending.pop(0):
                    op(text, tag)

    barrier(0)
    after_barrier(0)
    for t in range(stages[0].nt):
        trread(stages[0], 0, t)
    drain(len(pending))
    for j, st in enumerate(stages):
        if st.before:
            st.before()
        for e in range(2):
            st.pre(e)
            for t in range(st.nt):
                g.wait(lg=('w', st.idx, e, t))
                c = '0' if (st.first and e == 0) else V(st.acc[t], 16)
                op('v_mfma_f32_32x32x16_bf16 %s, %s, %s, %s' % (V(st.acc[t], 16), V(ring + 4 * t, 4), V(st.bfrag(e), 4), c))
                if st.colsum is not None:
                    for q in range(4):
                        op('v_dot2c_f32_bf16 %s, %s, %s' % (V(st.colsum[t]), S(S_ONES), V(ring + 4 * t + q)))
                if st.filler:
                    st.filler(e, t)
                if e == 0:
                    trread(st, 1, t)
                    drain(1)
                else:
                    if j + 1 < n and not stages[j + 1].restart:
                        if t == 0:
                            barrier(j + 1)
                            after_barrier(j + 1)
                        if t < stages[j + 1].nt:
                            trread(stages[j + 1], 0, t)
                        drain(1)
        drain(len(pending))
        if st.after:
            st.after()
        if j + 1 < n and stages[j + 1].restart:
            barrier(j + 1)
            after_barrier(j + 1)
            for t in range(stages[j + 1].nt):
                trread(stages[j + 1], 0, t)
            drain(len(pending))


def gen_stats_finalize(g, va, vL, vT, vSum, vSsq, vRstd, vBc):
    op = g.op
    t = vT
    op('v_mov_b32 %s, %s' % (V(t[0]), V(vSum)))
    op('v_mov_b32 %s, %s' % (V(t[1]), V(vSsq)))
    op('v_permlane32_swap_b32 %s, %s' % (V(vSum), V(t[0])))
    op('v_permlane32_swap_b32 %s, %s' % (V(vSsq), V(t[1])))
    op('v_add_f32 %s, %s, %s' % (V(vSum), V(vSum), V(t[0])))
    op('v_add_f32 %s, %s, %s' % (V(vSsq), V(vSsq), V(t[1])))
    inv = 1.0 / 576.0
    import struct
    invh = struct.unpack('<I', struct.pack('<f', inv))[0]
    epsh = struct.unpack('<I', struct.pack('<f', 1e-5))[0]
    op('v_mul_f32 %s, 0x%x, %s' % (V(t[0]), invh, V(vSum)))
    op('v_mul_f32 %s, 0x%x, %s' % (V(t[1]), invh, V(vSsq)))
    op('v_fma_f32 %s, -%s, %s, %s' % (V(t[1]), V(t[0]), V(t[0]), V(t[1])))
    op('v_max_f32 %s, 0, %s' % (V(t[1]), V(t[1])))
    op('v_add_f32 %s, 0x%x, %s' % (V(t[1]), epsh, V(t[1])))
    op('v_rsq_f32 %s, %s' % (V(vRstd), V(t[1])))
    op('v_xor_b32 %s, 0x80000000, %s' % (V(t[0]), V(t[0])))
    op('v_mul_f32 %s, %s, %s' % (V(t[1]), V(t[1]), V(vRstd)))
    op('v_and_b32 %s, 0xffff0000, %s' % (V(t[4]), V(t[0])))
    op('v_sub_f32 %s, %s, %s' % (V(t[2]), V(t[0]), V(t[4])))
    op('v_and_b32 %s, 0xffff0000, %s' % (V(t[4]), V(t[2])))
    op('v_sub_f32 %s, %s, %s' % (V(t[3]), V(t[2]), V(t[4])))
    op('v_perm_b32 %s, %s, %s, %s' % (V(vBc), V(t[2]), V(t[0]), S(S_PERM)))
    op('v_perm_b32 %s, %s, %s, %s' % (V(vBc + 1), V(t[3]), V(t[0]), S(S_PERM)))
    op('v_mov_b32 %s, %s' % (V(vBc + 2), V(vBc)))
    op('v_and_b32 %s, 0xffff0000, %s' % (V(t[4]), V(t[1])))
    op('v_sub_f32 %s, %s, %s' % (V(t[2]), V(t[1]), V(t[4])))
    op('v_and_b32 %s, 0xffff0000, %s' % (V(t[4]), V(t[2])))
    op('v_sub_f32 %s, %s, %s' % (V(t[3]), V(t[2]), V(t[4])))
    op('v_perm_b32 %s, %s, %s, %s' % (V(t[4]), V(t[2]), V(t[1]), S(S_PERM)))
    op('v_lshrrev_b32 %s, 16, %s' % (V(t[3]), V(t[3])))
    op('v_cmp_gt_u32 vcc, 32, %s' % V(vL))
    op('v_cndmask_b32 %s, %s, %s, vcc' % (V(vBc + 3), V(t[3]), V(t[4])))


def gen_corr_mfma(g, vT, cs, b3, vAc, vBc, acc):
    op = g.op
    t = vT
    op('v_and_b32 %s, 0xffff0000, %s' % (V(t[4]), V(cs)))
    op('v_sub_f32 %s, %s, %s' % (V(t[2]), V(cs), V(t[4])))
    op('v_and_b32 %s, 0xffff0000, %s' % (V(t[4]), V(t[2])))
    op('v_sub_f32 %s, %s, %s' % (V(t[3]), V(t[2]), V(t[4])))
    op('v_perm_b32 %s, %s, %s, %s' % (V(vAc), V(cs), V(cs), S(S_PERM)))
    op('v_perm_b32 %s, %s, %s, %s' % (V(vAc + 1), V(cs), V(t[2]), S(S_PERM)))
    op('v_perm_b32 %s, %s, %s, %s' % (V(vAc + 2), V(t[2]), V(t[3]), S(S_PERM)))
    if b3 is None:
        op('v_mov_b32 %s, 0' % V(vAc + 3))
    else:
        op('v_lshl_or_b32 %s, %s, 16, %s' % (V(vAc + 3), V(b3), V(b3)))
    op('v_mfma_f32_32x32x16_bf16 %s, %s, %s, %s' % (V(acc, 16), V(vAc, 4), V(vBc, 4), V(acc, 16)))


def nonce_issue(g, vN, vT, mreg_sgpr, tag='nonce'):
    op = g.op
    op('v_mov_b32 %s, %s' % (V(vN), S(S_MYN)))
    op('v_mov_b32 %s, 0' % V(vN + 1))
    op('s_lshl_b32 %s, %s, 12' % (S(S_T0), S(S_WV)))
    op('v_mov_b32 %s, %s' % (V(vT[0]), S(S_T0)))
    op('s_lshl_b32 %s, %s, 4' % (S(S_T1), S(mreg_sgpr)))
    op('s_mov_b64 %s, exec' % S(S_EXEC, 2))
    op('s_mov_b64 exec, 1')
    op('buffer_atomic_cmpswap %s, %s, %s, %s offen sc0' % (V(vN, 2), V(vT[0]), S(SRD_DBG, 4), S(S_T1)), tag)
    op('s_mov_b64 exec, %s' % S(S_EXEC, 2))


def nonce_share(g, vN, vT, slot, tag='nonce'):
    op = g.op
    g.wait(vm=tag)
    op('v_readfirstlane_b32 %s, %s' % (S(S_T0), V(vN)))
    op('s_cmp_eq_u32 %s, 0' % S(S_T0))
    op('s_cselect_b32 %s, %s, %s' % (S(S_T0), S(S_MYN), S(S_T0)))
    op('s_lshl_b32 %s, %s, 2' % (S(S_T1), S(S_WV)))
    op('s_add_u32 %s, %s, %d' % (S(S_T1), S(S_T1), SCRATCH + 32 * slot))
    op('v_mov_b32 %s, %s' % (V(vT[0]), S(S_T0)))
    op('v_mov_b32 %s, %s' % (V(vT[1]), S(S_T1)))
    op('ds_write_b32 %s, %s' % (V(vT[1]), V(vT[0])), 'noncew')


def nonce_get(g, vT, slot, sdst):
    op = g.op
    op('v_mov_b32 %s, %d' % (V(vT[1]), SCRATCH + 32 * slot))
    op('ds_read_b32 %s, %s' % (V(vT[0]), V(vT[1])), 'noncer')
    g.wait(lg='noncer')
    op('v_readfirstlane_b32 %s, %s' % (S(sdst), V(vT[0])))


def flag_store(g, vT, snonce, soff, imm=0):
    op = g.op
    a = vT[0] if vT[0] % 2 == 0 else vT[1]
    assert a % 2 == 0 and a + 1 in vT
    z = [x for x in vT if x not in (a, a + 1)][0]
    op('v_mov_b32 %s, %s' % (V(a), S(snonce)))
    op('v_not_b32 %s, %s' % (V(a + 1), V(a)))
    op('v_mov_b32 %s, 0' % V(z))
    op('s_mov_b64 %s, exec' % S(S_EXEC, 2))
    op('s_mov_b64 exec, 1')
    op('buffer_store_dwordx2 %s, %s, %s, %s offen offset:%d sc1' % (V(a, 2), V(z), S(SRD_WS, 4), S(soff), imm), 'flag')
    op('s_mov_b64 exec, %s' % S(S_EXEC, 2))


_uid = [0]


def flag_wait(g, vP, vZ, snonce, soff, imm=0, bound=1 << 22):
    op = g.op
    _uid[0] += 1
    u = _uid[0]
    op('s_mov_b32 %s, 0' % S(S_T2))
    g.fence()
    g.label('L_poll%d' % u)
    op('buffer_load_dwordx2 %s, %s, %s, %s offen offset:%d sc1' % (V(vP, 2), V(vZ), S(SRD_WS, 4), S(soff), imm), 'poll')
    g.wait_all(vm=True, lg=False)
    op('v_xor_b32 %s, %s, %s' % (V(vP), S(snonce), V(vP)))
    op('v_not_b32 %s, %s' % (V(vP + 1), V(vP + 1)))
    op('v_xor_b32 %s, %s, %s' % (V(vP + 1), S(snonce), V(vP + 1)))
    op('v_or_b32 %s, %s, %s' % (V(vP), V(vP), V(vP + 1)))
    op('v_cmp_ne_u32 vcc, 0, %s' % V(vP))
    op('s_add_u32 %s, %s, 1' % (S(S_T2), S(S_T2)))
    op('s_cmp_ge_u32 %s, %d' % (S(S_T2), bound))
    op('s_cbranch_scc1 L_pollx%d' % u)
    op('s_cmp_lg_u64 vcc, 0')
    op('s_cbranch_scc1 L_poll%d' % u)
    g.label('L_pollx%d' % u)
    g.fence()


def w_dma_groups(voffs, srd, soff_expr, slot_addr, tag, n_full=3, half_last=False, wave_stride=3072):
    out = []
    for i in range(len(voffs)):
        grp = []
        if i == 0:
            grp += [(x, None) for x in soff_expr]
        grp.append(('s_add_u32 m0, %s, %d' % (S(S_LDSW), slot_addr + i * 1024), None))
        if half_last and i == len(voffs) - 1:
            grp.append(('s_mov_b32 exec_hi, 0', None))
        else:
            grp.append(('s_nop 0', None))
        grp.append(('buffer_load_dwordx4 %s, %s, %s offen lds' % (V(voffs[i]), S(srd, 4), S(S_WOFF)), tag))
        if half_last and i == len(voffs) - 1:
            grp.append(('s_mov_b32 exec_hi, -1', None))
        out.append(grp)
    return out


def p2_voffs(g, va, vL, vT, rowoff_sgpr_expr):
    op = g.op
    vW2 = [va.alloc('w2d%d' % i) for i in range(3)]
    for x in rowoff_sgpr_expr:
        op(x)
    for i in range(3):
        div24(g, vT, vL, i, vT[0], vT[1])
        op('v_bfe_u32 %s, %s, 1, 1' % (V(vT[2]), V(vT[0])))
        op('v_lshlrev_b32 %s, 2, %s' % (V(vT[2]), V(vT[2])))
        op('v_xor_b32 %s, %s, %s' % (V(vT[1]), V(vT[1]), V(vT[2])))
        op('v_add_u32 %s, %s, %s' % (V(vT[0]), S(S_T0), V(vT[0])))
        op('v_mul_u32_u24 %s, 1152, %s' % (V(vT[0]), V(vT[0])))
        op('v_lshl_add_u32 %s, %s, 4, %s' % (V(vW2[i]), V(vT[1]), V(vT[0])))
    return vW2


def pair_reduce_store(g, va, vL, vT, acc2, vScale, sPoff, cfg, uid, tmp):
    op = g.op
    vA = va.alloc('pr_addr' + uid)
    vB = va.alloc('pr_addr2' + uid)
    vG = va.alloc('pr_goff' + uid)
    g.wait_all(vm=False, lg=True)
    op('s_barrier')
    op('s_mul_i32 %s, %s, 12288' % (S(S_T0), S(S_WV)))
    op('s_xor_b32 %s, %s, 4' % (S(S_T1), S(S_WV)))
    op('s_mul_i32 %s, %s, 12288' % (S(S_T1), S(S_T1)))
    op('v_lshlrev_b32 %s, 4, %s' % (V(vG), V(vL)))
    op('v_add_u32 %s, %s, %s' % (V(vA), S(S_T0), V(vG)))
    op('v_add_u32 %s, %s, %s' % (V(vB), S(S_T1), V(vG)))
    op('s_cmp_eq_u32 %s, 1' % S(S_CH))
    g.fence()
    op('s_cbranch_scc1 L_pr1%s' % uid)
    st = (g.vm.copy(), g.lg.copy())
    for kh in range(2):
        if kh == 1:
            g.label('L_pr1%s' % uid)
            g.vm, g.lg = st[0].copy(), st[1].copy()
        keep = [3 * kh + i for i in range(3)]
        send = [3 * (1 - kh) + i for i in range(3)]
        for i, t in enumerate(send):
            for q in range(4):
                op('ds_write_b128 %s, %s offset:%d' % (V(vA), V(acc2[t] + 4 * q, 4), (i * 4 + q) * 1024), 'prw')
        g.wait_all(vm=False, lg=True)
        op('s_barrier')
        for i in range(3):
            for q in range(4):
                op('ds_read_b128 %s, %s offset:%d' % (V(tmp + (i * 4 + q) * 4, 4), V(vB), (i * 4 + q) * 1024), ('prr', i, q))
        for i, t in enumerate(keep):
            for q in range(4):
                g.wait(lg=('prr', i, q))
                for r in range(4):
                    a = acc2[t] + 4 * q + r
                    op('v_add_f32 %s, %s, %s' % (V(a), V(a), V(tmp + (i * 4 + q) * 4 + r)))
                if vScale is not None:
                    for r in range(4):
                        a = acc2[t] + 4 * q + r
                        op('v_mul_f32 %s, %s, %s' % (V(a), V(a), V(vScale)))
                off = (t * 4 + q) * 1024
                op('s_add_u32 %s, %s, %d' % (S(S_T2), S(sPoff), off))
                op('buffer_store_dwordx4 %s, %s, %s, %s offen' % (V(acc2[t] + 4 * q, 4), V(vG), S(SRD_WS, 4), S(S_T2)), 'pst')
        if kh == 0:
            g.fence()
            op('s_branch L_prd%s' % uid)
    g.fence()
    g.label('L_prd%s' % uid)


def gen_role_F(g, va, vL, vT, vXR, xdma, emit_group, cfg):
    op = g.op
    R = 5
    SLOT = 24576
    op('s_mul_i32 %s, %s, 3' % (S(S_T0), S(S_S)))
    op('s_add_u32 %s, %s, %s' % (S(S_C), S(S_T0), S(S_R)))
    op('s_add_u32 %s, %s, 1' % (S(S_T1), S(S_R)))
    op('s_cmp_eq_u32 %s, 3' % S(S_T1))
    op('s_cselect_b32 %s, 0, %s' % (S(S_T1), S(S_T1)))
    op('s_add_u32 %s, %s, %s' % (S(S_CB), S(S_T0), S(S_T1)))
    op('s_add_u32 %s, %s, 1' % (S(S_T1), S(S_T1)))
    op('s_cmp_eq_u32 %s, 3' % S(S_T1))
    op('s_cselect_b32 %s, 0, %s' % (S(S_T1), S(S_T1)))
    op('s_add_u32 %s, %s, %s' % (S(S_CC), S(S_T0), S(S_T1)))
    op('s_mov_b32 %s, %s' % (S(SRD_W), S(S_KA + 8)))
    op('s_mov_b32 %s, %s' % (S(SRD_W + 1), S(S_KA + 9)))
    op('s_mov_b32 %s, %d' % (S(SRD_W + 2), 576 * 9216))
    op('s_mov_b32 %s, 0x20000' % S(SRD_W + 3))
    op('s_mov_b32 %s, %s' % (S(SRD_W2), S(S_KA + 12)))
    op('s_mov_b32 %s, %s' % (S(SRD_W2 + 1), S(S_KA + 13)))
    op('s_mov_b32 %s, %d' % (S(SRD_W2 + 2), 4608 * 1152))
    op('s_mov_b32 %s, 0x20000' % S(SRD_W2 + 3))
    op('s_mov_b32 %s, %s' % (S(SRD_B1), S(S_KA + 10)))
    op('s_mov_b32 %s, %s' % (S(SRD_B1 + 1), S(S_KA + 11)))
    op('s_mov_b32 %s, %d' % (S(SRD_B1 + 2), 4608 * 2))
    op('s_mov_b32 %s, 0x20000' % S(SRD_B1 + 3))
    op('s_mul_i32 %s, %s, 3072' % (S(S_LDSW), S(S_WV)))
    vW1 = [va.alloc('w1d%d' % i) for i in range(3)]
    op('s_lshr_b32 %s, %s, 1' % (S(S_T0), S(S_RG)))
    op('s_lshl_b32 %s, %s, 4' % (S(S_T0), S(S_T0)))
    op('s_and_b32 %s, %s, 1' % (S(S_T1), S(S_RG)))
    op('s_lshl_b32 %s, %s, 2' % (S(S_T1), S(S_T1)))
    op('s_add_u32 %s, %s, %s' % (S(S_T0), S(S_T0), S(S_T1)))
    op('s_mul_i32 %s, %s, 9216' % (S(S_T0), S(S_T0)))
    op('s_mul_i32 %s, %s, 384' % (S(S_T1), S(S_CH)))
    op('s_add_u32 %s, %s, %s' % (S(S_T0), S(S_T0), S(S_T1)))
    op('s_mul_i32 %s, %s, 768' % (S(S_T1), S(S_C)))
    op('s_add_u32 %s, %s, %s' % (S(S_T0), S(S_T0), S(S_T1)))
    for i in range(3):
        div24(g, vT, vL, i, vT[0], vT[1])
        op('v_bfe_u32 %s, %s, 1, 1' % (V(vT[2]), V(vT[0])))
        op('v_lshlrev_b32 %s, 2, %s' % (V(vT[2]), V(vT[2])))
        op('v_xor_b32 %s, %s, %s' % (V(vT[1]), V(vT[1]), V(vT[2])))
        op('v_and_b32 %s, 4, %s' % (V(vT[2]), V(vT[0])))
        op('v_add_u32 %s, %s, %s' % (V(vT[0]), V(vT[0]), V(vT[2])))
        op('v_mul_u32_u24 %s, 9216, %s' % (V(vT[0]), V(vT[0])))
        op('v_lshl_add_u32 %s, %s, 4, %s' % (V(vT[0]), V(vT[1]), V(vT[0])))
        op('v_add_u32 %s, %s, %s' % (V(vW1[i]), S(S_T0), V(vT[0])))

    def w1dma(s):
        return w_dma_groups(vW1, SRD_W, ['s_mov_b32 %s, %d' % (S(S_WOFF), s * 32 * 9216)], (s % R) * SLOT, ('W', s))

    for grp in w1dma(0):
        emit_group(grp)
    for grp in xdma(1):
        emit_group(grp)
    for s in range(1, R - 1):
        for grp in w1dma(s):
            emit_group(grp)
    vB1 = va.alloc('b1', 6)
    op('s_mul_i32 %s, %s, 768' % (S(S_T0), S(S_C)))
    op('s_mul_i32 %s, %s, 384' % (S(S_T1), S(S_CH)))
    op('s_add_u32 %s, %s, %s' % (S(S_T0), S(S_T0), S(S_T1)))
    op('v_and_b32 %s, 31, %s' % (V(vT[0]), V(vL)))
    op('v_lshlrev_b32 %s, 1, %s' % (V(vT[0]), V(vT[0])))
    for t in range(6):
        op('buffer_load_ushort %s, %s, %s, %s offen offset:%d' % (V(vB1 + t), V(vT[0]), S(SRD_B1, 4), S(S_T0), 64 * t), 'b1')
    vN = va.alloc('nonce', 2, 2)
    nonce_issue(g, vN, vT, S_M)
    bases = tr_bases(g, va, vL, vT, 384, True, 3 * SLOT, 'trb')
    vW2 = p2_voffs(g, va, vL, vT, ['s_mul_i32 %s, %s, 192' % (S(S_T0), S(S_CH)),
                                  's_lshl_b32 %s, %s, 3' % (S(S_T1), S(S_RG)),
                                  's_add_u32 %s, %s, %s' % (S(S_T0), S(S_T0), S(S_T1))])
    for sd, sc in ((S_HOWN, S_C), (S_HB, S_CB), (S_HC, S_CC)):
        op('s_mul_i32 %s, %s, 12' % (S(S_T0), S(S_M)))
        op('s_add_u32 %s, %s, %s' % (S(S_T0), S(S_T0), S(sc)))
        op('s_lshl_b32 %s, %s, 3' % (S(S_T0), S(S_T0)))
        op('s_add_u32 %s, %s, %s' % (S(S_T0), S(S_T0), S(S_WV)))
        op('s_mul_i32 %s, %s, 12288' % (S(sd), S(S_T0)))
        if WS_H:
            op('s_add_u32 %s, %s, %d' % (S(sd), S(sd), WS_H))
        fd = {S_HOWN: S_FLAGOWN, S_HB: S_FLAGB, S_HC: S_FLAGC}[sd]
        op('s_lshl_b32 %s, %s, 4' % (S(S_T0), S(S_M)))
        op('s_add_u32 %s, %s, %s' % (S(S_T0), S(S_T0), S(sc)))
        op('s_lshl_b32 %s, %s, 4' % (S(S_T0), S(S_T0)))
        op('s_add_u32 %s, %s, %s' % (S(S_T0), S(S_T0), S(S_WV)))
        op('s_lshl_b32 %s, %s, 7' % (S(S_T0), S(S_T0)))
        op('s_add_u32 %s, %s, %d' % (S(fd), S(S_T0), WS_FLAG))
    vL16 = va.alloc('l16')
    op('v_lshlrev_b32 %s, 4, %s' % (V(vL16), V(vL)))
    vZero = va.alloc('zero')
    op('v_mov_b32 %s, 0' % V(vZero))
    vSum, vSsq, vRstd = va.alloc('sum'), va.alloc('ssq'), va.alloc('rstd')
    vCS = [va.alloc('cs%d' % t) for t in range(6)]
    for r in [vSum, vSsq] + vCS:
        op('v_mov_b32 %s, 0' % V(r))
    vBc = va.alloc('bc', 4, 4)
    vAc = va.alloc('ac', 4, 4)
    ring = va.alloc('ring', 24, 4)
    xf = va.alloc('xf', 32, 4)
    acc1 = [va.alloc('acc1_%d' % t, 16, 4) for t in range(6)]
    hown = va.alloc('hown', 48, 4)
    mark = va.next
    acc2 = acc1

    stages = []

    def xfrag_reads(cx):
        return [[('ds_read_b128 %s, %s offset:%d' % (V(xf + (cx % 2) * 16 + 4 * j, 4), V(vXR[j]), (cx % 2) * 16384), ('xf', cx, j))
                 for j in range(4)]]

    def mk_p1(s):
        cx, sp = s // 2, s % 2
        st = Stage(idx=s, nt=6, slot_addr=(s % R) * SLOT, pitch=384, bases=bases, set1_off=3 * SLOT,
                   dma=w1dma(s), issue_at=(s - (R - 2) if s >= R - 1 else None),
                   waittags=[('W', s)] + ([('x', cx)] if sp == 0 else []),
                   acc=acc1, first=(s == 0), colsum=(None if cfg.nodots else vCS), restart=False, before=None, after=None, filler=None,
                   after_barrier=(xfrag_reads(cx) if sp == 0 else []),
                   extra_dma=(xdma(cx + 2) if (sp == 1 and cx + 2 < 9) else []))
        st.bfrag = lambda e: xf + (cx % 2) * 16 + 4 * (2 * sp + e)

        def pre(e):
            g.wait(lg=('xf', cx, 2 * sp + e))
        st.pre = pre

        def filler(e, t):
            if t < 4 and not cfg.nodots:
                r = st.bfrag(e) + t
                op('v_dot2c_f32_bf16 %s, %s, %s' % (V(vSum), S(S_ONES), V(r)))
                op('v_dot2c_f32_bf16 %s, %s, %s' % (V(vSsq), V(r), V(r)))
        st.filler = filler
        return st

    for s in range(18):
        stages.append(mk_p1(s))

    order = [(S_C, S_HOWN, t) for t in range(6)] + [(S_CB, S_HB, t) for t in range(6)] + [(S_CC, S_HC, t) for t in range(6)]

    def w2dma(i):
        sc, _, t = order[i]
        s = 18 + i
        expr = ['s_mul_i32 %s, %s, %d' % (S(S_WOFF), S(sc), 384 * 1152),
                's_mul_i32 %s, %s, 384' % (S(S_T3), S(S_R)),
                's_add_u32 %s, %s, %s' % (S(S_WOFF), S(S_WOFF), S(S_T3)),
                's_add_u32 %s, %s, %d' % (S(S_WOFF), S(S_WOFF), 32 * t * 1152)]
        return w_dma_groups(vW2, SRD_W2, expr, (s % R) * SLOT, ('W', s))

    def hload(i):
        _, sh, t = order[i]
        out = []
        for e in range(2):
            reg = xf + ((i % 4) * 2 + e) * 4
            out.append([('s_add_u32 %s, %s, %d' % (S(S_T3), S(sh), t * 2048), None),
                        ('buffer_load_dwordx4 %s, %s, %s, %s offen offset:%d sc1' % (V(reg, 4), V(vL16), S(SRD_WS, 4), S(S_T3), e * 1024),
                         ('h', i, e))])
        return out

    def epilogue1():
        g.comment('---- phase 1 epilogue ----')
        stamp(g, cfg, 1)
        gen_stats_finalize(g, va, vL, vT, vSum, vSsq, vRstd, vBc)
        g.wait(vm='b1')
        for t in range(6):
            gen_corr_mfma(g, vT, vCS[t], vB1 + t, vAc, vBc, acc1[t])
        for t in range(6):
            a = acc1[t]
            for r in range(16):
                op('v_max_f32 %s, 0, %s' % (V(a + r), V(a + r)))
            for r in range(16):
                op('v_mul_f32 %s, %s, %s' % (V(a + r), V(a + r), V(a + r)))
            for d in range(8):
                op('v_cvt_pk_bf16_f32 %s, %s, %s' % (V(hown + 8 * t + d), V(a + 2 * d), V(a + 2 * d + 1)))
            op('s_add_u32 %s, %s, %d' % (S(S_T3), S(S_HOWN), t * 2048))
            for e in range(2):
                op('buffer_store_dwordx4 %s, %s, %s, %s offen offset:%d sc1' % (
                    V(hown + 8 * t + 4 * e, 4), V(vL16), S(SRD_WS, 4), S(S_T3), e * 1024), 'hst')
        op('v_mul_f32 %s, %s, %s' % (V(vRstd), V(vRstd), V(vRstd)))
        nonce_get(g, vT, 0, S_NONCE)
        stamp(g, cfg, 2)
    stages[17].after = epilogue1
    stages[12].before = lambda: nonce_share(g, vN, vT, 0)

    def mk_p2(i):
        s = 18 + i
        st = Stage(idx=s, nt=6, slot_addr=(s % R) * SLOT, pitch=384, bases=bases, set1_off=3 * SLOT,
                   dma=w2dma(i), issue_at=s - (R - 2), waittags=[('W', s)],
                   acc=acc2, first=(i == 0), colsum=None, restart=False, before=None, after=None, filler=None,
                   after_barrier=[], extra_dma=[])
        if i < 6:
            st.bfrag = lambda e: hown + 8 * i + 4 * e
            st.pre = lambda e: None
        else:
            st.bfrag = lambda e: xf + ((i % 4) * 2 + e) * 4
            st.pre = lambda e: g.wait(vm=('h', i, e))
        return st

    if cfg.stop_after != 'p1':
        for i in range(18):
            stages.append(mk_p2(i))
        P2 = 18

        def publish():
            g.wait(vm='hst')
            flag_store(g, vT, S_NONCE, S_FLAGOWN)
        stages[P2 + 1].before = publish

        def mk_before(i, sflag):
            def f():
                if sflag is not None:
                    flag_wait(g, vN, vZero, S_NONCE, sflag)
                for grp in hload(i + 3):
                    emit_group(grp)
            return f
        for i in range(3, 15):
            stages[P2 + i].before = mk_before(i, S_FLAGB if i == 3 else (S_FLAGC if i == 9 else None))

    stamp(g, cfg, 0)
    run_pipeline(g, stages, R, ring, None)
    stamp(g, cfg, 3)
    if cfg.stop_after != 'p1':
        op('s_lshl_b32 %s, %s, 4' % (S(S_T0), S(S_S)))
        op('s_add_u32 %s, %s, %s' % (S(S_T0), S(S_T0), S(S_M)))
        op('s_mul_i32 %s, %s, 3' % (S(S_T0), S(S_T0)))
        op('s_add_u32 %s, %s, %s' % (S(S_T0), S(S_T0), S(S_R)))
        op('s_lshl_b32 %s, %s, 2' % (S(S_T0), S(S_T0)))
        op('s_add_u32 %s, %s, %s' % (S(S_T0), S(S_T0), S(S_RG)))
        op('s_mul_i32 %s, %s, 24576' % (S(S_T0), S(S_T0)))
        op('s_add_u32 %s, %s, %d' % (S(S_W2OFF), S(S_T0), WS_P))
        va.next = hown
        assert xf == ring + 24
        pair_reduce_store(g, va, vL, vT, acc2, vRstd, S_W2OFF, cfg, 'F', ring)
        va.next = max(va.next, mark)
    stamp(g, cfg, 4)
    store_stamps(g, cfg, vT, 5)
    op('s_endpgm')


def gen_role_A(g, va, vL, vT, vXR, xdma, emit_group, cfg):
    op = g.op
    R = 4
    SLOT = 28672
    PITCH = 448
    op('s_mov_b32 %s, %s' % (S(SRD_W), S(S_KA + 2)))
    op('s_mov_b32 %s, %s' % (S(SRD_W + 1), S(S_KA + 3)))
    op('s_mov_b32 %s, %d' % (S(SRD_W + 2), 576 * 3456))
    op('s_mov_b32 %s, 0x20000' % S(SRD_W + 3))
    op('s_mov_b32 %s, %s' % (S(SRD_W2), S(S_KA + 4)))
    op('s_mov_b32 %s, %s' % (S(SRD_W2 + 1), S(S_KA + 5)))
    op('s_mov_b32 %s, %d' % (S(SRD_W2 + 2), 576 * 1152))
    op('s_mov_b32 %s, 0x20000' % S(SRD_W2 + 3))
    op('s_mul_i32 %s, %s, 3584' % (S(S_LDSW), S(S_WV)))
    vW1 = [va.alloc('aw1d%d' % i) for i in range(4)]
    op('s_lshr_b32 %s, %s, 1' % (S(S_T0), S(S_RG)))
    op('s_lshl_b32 %s, %s, 4' % (S(S_T0), S(S_T0)))
    op('s_and_b32 %s, %s, 1' % (S(S_T1), S(S_RG)))
    op('s_lshl_b32 %s, %s, 2' % (S(S_T1), S(S_T1)))
    op('s_add_u32 %s, %s, %s' % (S(S_T0), S(S_T0), S(S_T1)))
    op('s_mul_i32 %s, %s, 3456' % (S(S_T0), S(S_T0)))
    op('s_mul_i32 %s, %s, 288' % (S(S_T1), S(S_S)))
    op('s_add_u32 %s, %s, %s' % (S(S_T0), S(S_T0), S(S_T1)))
    op('s_mul_i32 %s, %s, 28' % (S(S_T1), S(S_CH)))
    for i in range(4):
        op('v_add_u32 %s, %d, %s' % (V(vT[1]), 64 * i, V(vL)))
        op('v_min_u32 %s, 223, %s' % (V(vT[1]), V(vT[1])))
        op('v_mul_u32_u24 %s, 2341, %s' % (V(vT[0]), V(vT[1])))
        op('v_lshrrev_b32 %s, 16, %s' % (V(vT[0]), V(vT[0])))
        op('v_mul_u32_u24 %s, 28, %s' % (V(vT[2]), V(vT[0])))
        op('v_sub_u32 %s, %s, %s' % (V(vT[1]), V(vT[1]), V(vT[2])))
        op('v_add_u32 %s, %s, %s' % (V(vT[1]), S(S_T1), V(vT[1])))
        op('v_min_u32 %s, 53, %s' % (V(vT[1]), V(vT[1])))
        op('v_mov_b32 %s, %d' % (V(vT[2]), 1152))
        op('v_mov_b32 %s, %d' % (V(vT[3]), 2016))
        op('v_cmp_lt_u32 vcc, 17, %s' % V(vT[1]))
        op('v_cndmask_b32 %s, %s, %s, vcc' % (V(vT[2]), V(vT[2]), V(vT[3])))
        op('v_mov_b32 %s, %d' % (V(vT[3]), -576))
        op('v_cmp_lt_u32 vcc, 35, %s' % V(vT[1]))
        op('v_cndmask_b32 %s, %s, %s, vcc' % (V(vT[2]), V(vT[2]), V(vT[3])))
        op('v_lshl_add_u32 %s, %s, 4, %s' % (V(vT[1]), V(vT[1]), V(vT[2])))
        op('v_and_b32 %s, 4, %s' % (V(vT[2]), V(vT[0])))
        op('v_add_u32 %s, %s, %s' % (V(vT[0]), V(vT[0]), V(vT[2])))
        op('v_mul_u32_u24 %s, 3456, %s' % (V(vT[0]), V(vT[0])))
        op('v_add3_u32 %s, %s, %s, %s' % (V(vW1[i]), V(vT[0]), V(vT[1]), S(S_T0)))

    def w1dma(s):
        return w_dma_groups(vW1, SRD_W, ['s_mov_b32 %s, %d' % (S(S_WOFF), s * 32 * 3456)], (s % R) * SLOT, ('W', s),
                            half_last=True)

    for grp in w1dma(0):
        emit_group(grp)
    for grp in xdma(1):
        emit_group(grp)
    for s in range(1, R - 1):
        for grp in w1dma(s):
            emit_group(grp)
    vN = va.alloc('anonce', 2, 2)
    vN2 = va.alloc('anonce2', 2, 2)
    nonce_issue(g, vN, vT, S_M, 'nonce')
    op('s_sub_u32 %s, %s, 1' % (S(S_C), S(S_M)))
    op('s_max_i32 %s, %s, 0' % (S(S_C), S(S_C)))
    nonce_issue(g, vN2, vT, S_C, 'nonce2')
    bases = tr_bases(g, va, vL, vT, PITCH, False, 2 * SLOT, 'atrb')
    vL16 = va.alloc('al16')
    op('v_lshlrev_b32 %s, 4, %s' % (V(vL16), V(vL)))
    vZero = va.alloc('azero')
    op('v_mov_b32 %s, 0' % V(vZero))
    vSum, vSsq, vRstd = va.alloc('asum'), va.alloc('assq'), va.alloc('arstd')
    vCS = [va.alloc('acs%d' % t) for t in range(7)]
    for r in [vSum, vSsq] + vCS:
        op('v_mov_b32 %s, 0' % V(r))
    for fd, sm in ((S_FLAGOWN, S_M), (S_FLAGB, S_C)):
        op('s_lshl_b32 %s, %s, 4' % (S(S_T0), S(sm)))
        op('s_add_u32 %s, %s, %s' % (S(S_T0), S(S_T0), S(S_S)))
        op('s_add_u32 %s, %s, 12' % (S(S_T0), S(S_T0)))
        op('s_lshl_b32 %s, %s, 11' % (S(S_T0), S(S_T0)))
        op('s_add_u32 %s, %s, %d' % (S(fd), S(S_T0), WS_FLAG))
    for fd, sm in ((S_HOWN, S_M), (S_HB, S_C)):
        op('s_lshl_b32 %s, %s, 2' % (S(S_T0), S(sm)))
        op('s_add_u32 %s, %s, %s' % (S(S_T0), S(S_T0), S(S_S)))
        op('s_mul_i32 %s, %s, 10240' % (S(S_T0), S(S_T0)))
        op('s_add_u32 %s, %s, %d' % (S(fd), S(S_T0), WS_KV))
    vBc = va.alloc('abc', 4, 4)
    vAc = va.alloc('aac', 4, 4)
    big0 = va.next = (va.next + 3) // 4 * 4
    ring = va.alloc('aring', 28, 4)
    xf = va.alloc('axf', 32, 4)
    acc1 = [va.alloc('aacc1_%d' % t, 16, 4) for t in range(7)]
    vA8, vA12, vQ8, vQ12 = [va.alloc('awr%d' % i) for i in range(4)]

    stages = []

    def xfrag_reads(cx):
        return [[('ds_read_b128 %s, %s offset:%d' % (V(xf + (cx % 2) * 16 + 4 * j, 4), V(vXR[j]), (cx % 2) * 16384), ('xf', cx, j))
                 for j in range(4)]]

    def mk_p1(s):
        cx, sp = s // 2, s % 2
        st = Stage(idx=s, nt=7, slot_addr=(s % R) * SLOT, pitch=PITCH, bases=bases, set1_off=2 * SLOT,
                   dma=w1dma(s), issue_at=(s - (R - 2) if s >= R - 1 else None),
                   waittags=[('W', s)] + ([('x', cx)] if sp == 0 else []),
                   acc=acc1, first=(s == 0), colsum=(None if cfg.nodots else vCS), restart=False, before=None, after=None, filler=None,
                   after_barrier=(xfrag_reads(cx) if sp == 0 else []),
                   extra_dma=(xdma(cx + 2) if (sp == 1 and cx + 2 < 9) else []))
        st.bfrag = lambda e: xf + (cx % 2) * 16 + 4 * (2 * sp + e)
        st.pre = lambda e: g.wait(lg=('xf', cx, 2 * sp + e))

        def filler(e, t):
            if t < 4 and not cfg.nodots:
                r = st.bfrag(e) + t
                op('v_dot2c_f32_bf16 %s, %s, %s' % (V(vSum), S(S_ONES), V(r)))
                op('v_dot2c_f32_bf16 %s, %s, %s' % (V(vSsq), V(r), V(r)))
        st.filler = filler
        return st

    for s in range(18):
        stages.append(mk_p1(s))

    def share():
        nonce_share(g, vN, vT, 0, 'nonce')
        nonce_share(g, vN2, vT, 1, 'nonce2')
    stages[12].before = share
    stamp(g, cfg, 0)
    run_pipeline(g, stages, R, ring, None)
    stamp(g, cfg, 1)

    KB, VB, QB = 0, 46080, 92160
    gen_stats_finalize(g, va, vL, vT, vSum, vSsq, vRstd, vBc)
    for t in range(7):
        gen_corr_mfma(g, vT, vCS[t], None, vAc, vBc, acc1[t])
    nonce_get(g, vT, 0, S_NONCE)
    nonce_get(g, vT, 1, S_NONCE2)
    op('v_and_b32 %s, 31, %s' % (V(vT[0]), V(vL)))
    op('s_lshl_b32 %s, %s, 5' % (S(S_T0), S(S_RG)))
    op('v_add_u32 %s, %s, %s' % (V(vT[0]), S(S_T0), V(vT[0])))
    op('v_mul_u32_u24 %s, 320, %s' % (V(vT[0]), V(vT[0])))
    op('v_lshrrev_b32 %s, 5, %s' % (V(vT[1]), V(vL)))
    op('v_lshl_add_u32 %s, %s, 3, %s' % (V(vA8), V(vT[1]), V(vT[0])))
    op('v_lshl_add_u32 %s, %s, 2, %s' % (V(vA12), V(vT[1]), V(vA8)))
    op('v_add_u32 %s, %d, %s' % (V(vQ8), QB, V(vA8)))
    op('v_add_u32 %s, %d, %s' % (V(vQ12), QB, V(vA12)))
    for t in range(7):
        for r in range(16):
            op('v_mul_f32 %s, %s, %s' % (V(acc1[t] + r), V(acc1[t] + r), V(vRstd)))
        for d in range(8):
            op('v_cvt_pk_bf16_f32 %s, %s, %s' % (V(acc1[t] + d), V(acc1[t] + 2 * d), V(acc1[t] + 2 * d + 1)))
    g.wait_all(vm=False, lg=True)
    op('s_barrier')
    op('s_cmp_eq_u32 %s, 1' % S(S_CH))
    g.fence()
    op('s_cbranch_scc1 L_aw1')
    st0 = (g.vm.copy(), g.lg.copy())

    def ppos(P):
        sec, pw = divmod(P, 72)
        return sec, (pw // 9) * 40 + (pw % 9) * 4
    for ch in range(2):
        if ch == 1:
            g.label('L_aw1')
            g.vm, g.lg = st0[0].copy(), st0[1].copy()
        for t in range(7):
            for q4 in range(4):
                for pp in range(2):
                    P = 112 * ch + 16 * t + 4 * q4 + pp
                    if P >= 216:
                        continue
                    sec, o0 = ppos(P)
                    sec1, o1 = ppos(P + 2)
                    assert sec == sec1 and o1 - o0 in (8, 12)
                    if sec == 2:
                        a = vQ8 if o1 - o0 == 8 else vQ12
                        off = o0
                    else:
                        a = vA8 if o1 - o0 == 8 else vA12
                        off = (KB if sec == 0 else VB) + 16 * 320 + o0
                    op('ds_write_b32 %s, %s offset:%d' % (V(a), V(acc1[t] + 2 * q4 + pp), off), 'qkvw')
        if ch == 0:
            g.fence()
            op('s_branch L_aw2')
    g.fence()
    g.label('L_aw2')
    g.wait_all(vm=False, lg=True)
    op('s_barrier')
    stamp(g, cfg, 2)

    va.next = big0
    kv = va.alloc('akv', 100, 4)
    qv = va.alloc('aq', 20, 4)
    lgt = va.alloc('alg', 16, 4)
    oac = va.alloc('ao', 36, 4)
    vf = va.alloc('avf', 18, 2)
    vKA, vQA = va.alloc('aka'), va.alloc('aqa')
    op('s_cmp_lg_u32 %s, 0' % S(S_WV))
    g.fence()
    op('s_cbranch_scc1 L_ahalo_done')
    for i in range(10):
        src = (KB if i < 5 else VB) + 128 * 320 + (i % 5) * 1024
        op('v_add_u32 %s, %d, %s' % (V(vT[0]), src, V(vL16)))
        op('ds_read_b128 %s, %s' % (V(kv + 4 * i, 4), V(vT[0])), ('hr', i))
    for i in range(10):
        g.wait(lg=('hr', i))
        op('s_add_u32 %s, %s, %d' % (S(S_T3), S(S_HOWN), i * 1024))
        op('buffer_store_dwordx4 %s, %s, %s, %s offen sc1' % (V(kv + 4 * i, 4), V(vL16), S(SRD_WS, 4), S(S_T3)), 'hs')
    g.wait_all(vm=True, lg=False)
    flag_store(g, vT, S_NONCE, S_FLAGOWN, 0)
    op('s_cmp_eq_u32 %s, 0' % S(S_M))
    g.fence()
    op('s_cbranch_scc1 L_ahalo_zero')
    flag_wait(g, vN, vZero, S_NONCE2, S_FLAGB, 0)
    for i in range(10):
        op('s_add_u32 %s, %s, %d' % (S(S_T3), S(S_HB), i * 1024))
        op('buffer_load_dwordx4 %s, %s, %s, %s offen sc1' % (V(kv + 4 * i, 4), V(vL16), S(SRD_WS, 4), S(S_T3)), 'hl')
    g.wait_all(vm=True, lg=False)
    g.fence()
    op('s_branch L_ahalo_wr')
    g.label('L_ahalo_zero')
    for i in range(40):
        op('v_mov_b32 %s, 0' % V(kv + i))
    g.fence()
    g.label('L_ahalo_wr')
    for i in range(10):
        dst = (KB if i < 5 else VB) + (i % 5) * 1024
        op('ds_write_b128 %s, %s offset:%d' % (V(vL16), V(kv + 4 * i, 4), dst), 'hw')
    g.wait_all(vm=True, lg=True)
    g.fence()
    g.label('L_ahalo_done')
    g.vm.q, g.lg.q = [], []
    stamp(g, cfg, 3)

    op('v_and_b32 %s, 7, %s' % (V(vT[0]), V(vL)))
    op('v_bfe_u32 %s, %s, 3, 2' % (V(vT[1]), V(vL)))
    op('v_lshrrev_b32 %s, 5, %s' % (V(vT[2]), V(vL)))
    op('v_lshl_add_u32 %s, %s, 3, %s' % (V(vT[1]), V(vT[2]), V(vT[1])))
    op('s_lshl_b32 %s, %s, 4' % (S(S_T0), S(S_WV)))
    op('v_add_u32 %s, %s, %s' % (V(vT[1]), S(S_T0), V(vT[1])))
    vS = vT[6]
    op('v_mov_b32 %s, %s' % (V(vS), V(vT[1])))
    op('v_mul_u32_u24 %s, 320, %s' % (V(vT[1]), V(vT[1])))
    op('v_mul_u32_u24 %s, 40, %s' % (V(vT[2]), V(vT[0])))
    op('v_add_u32 %s, %s, %s' % (V(vKA), V(vT[1]), V(vT[2])))
    op('v_add_u32 %s, %d, %s' % (V(vQA), QB, V(vKA)))
    vOA = vT[7]
    op('v_mul_u32_u24 %s, 36, %s' % (V(vT[2]), V(vT[0])))
    op('v_add3_u32 %s, %s, %s, %s' % (V(vOA), V(vT[1]), V(vT[2]), V(vZero)))
    op('v_add_u32 %s, %d, %s' % (V(vOA), QB, V(vOA)))
    for qi in range(2):
        for p in range(5):
            op('ds_read_b64 %s, %s offset:%d' % (V(qv + 10 * qi + 2 * p, 2), V(vQA), qi * 4 * 320 + 8 * p), 'q')
    for j in range(10):
        for p in range(5):
            op('ds_read_b64 %s, %s offset:%d' % (V(kv + 10 * j + 2 * p, 2), V(vKA), KB + (20 - 2 * j) * 320 + 8 * p), ('k', j))
    pairs = []
    for j in range(10):
        if j >= 2:
            pairs.append((lgt + (j - 2), qv, j))
        if j < 8:
            pairs.append((lgt + 8 + j, qv + 10, j))
    for r in range(16):
        op('v_mov_b32 %s, 0' % V(lgt + r))
    for j in range(10):
        g.wait(lg=('k', j))
        for d in range(9):
            for (lr, qb, jj) in pairs:
                if jj == j:
                    op('v_dot2c_f32_bf16 %s, %s, %s' % (V(lr), V(qb + d), V(kv + 10 * j + d)))
    g.fence()
    for j in range(10):
        for p in range(5):
            op('ds_read_b64 %s, %s offset:%d' % (V(kv + 10 * j + 2 * p, 2), V(vKA), VB + (20 - 2 * j) * 320 + 8 * p), ('v', j))
    op('s_or_b32 %s, %s, %s' % (S(S_T0), S(S_M), S(S_WV)))
    op('s_cmp_lg_u32 %s, 0' % S(S_T0))
    g.fence()
    op('s_cbranch_scc1 L_anomask')
    op('v_mov_b32 %s, 0xf149f2ca' % V(vT[0]))
    for qi in range(2):
        for w in range(1, 8):
            lim = 2 * w - 4 * qi
            if lim <= 0:
                continue
            op('v_cmp_gt_u32 vcc, %d, %s' % (lim, V(vS)))
            op('v_cndmask_b32 %s, %s, %s, vcc' % (V(lgt + 8 * qi + w), V(lgt + 8 * qi + w), V(vT[0])))
    g.fence()
    g.label('L_anomask')
    import struct, math
    cval = struct.unpack('<I', struct.pack('<f', 18 ** -0.5 * math.log2(math.e)))[0]
    op('s_mov_b32 %s, 0x%x' % (S(S_T0), cval))
    for qi in range(2):
        L = lgt + 8 * qi
        m_, s_ = vT[0 + 2 * qi], vT[1 + 2 * qi]
        op('v_max3_f32 %s, %s, %s, %s' % (V(m_), V(L), V(L + 1), V(L + 2)))
        op('v_max3_f32 %s, %s, %s, %s' % (V(m_), V(m_), V(L + 3), V(L + 4)))
        op('v_max3_f32 %s, %s, %s, %s' % (V(m_), V(m_), V(L + 5), V(L + 6)))
        op('v_max_f32 %s, %s, %s' % (V(m_), V(m_), V(L + 7)))
        for w in range(8):
            op('v_sub_f32 %s, %s, %s' % (V(L + w), V(L + w), V(m_)))
        for w in range(8):
            op('v_mul_f32 %s, %s, %s' % (V(L + w), S(S_T0), V(L + w)))
        for w in range(8):
            op('v_exp_f32 %s, %s' % (V(L + w), V(L + w)))
        op('v_add_f32 %s, %s, %s' % (V(s_), V(L), V(L + 1)))
        for w in range(2, 8):
            op('v_add_f32 %s, %s, %s' % (V(s_), V(s_), V(L + w)))
        op('v_rcp_f32 %s, %s' % (V(s_), V(s_)))
        for w in range(8):
            op('v_mul_f32 %s, %s, %s' % (V(L + w), V(L + w), V(s_)))
    firstA, firstB = True, True
    for j in range(10):
        g.wait(lg=('v', j))
        for d in range(9):
            op('v_lshlrev_b32 %s, 16, %s' % (V(vf + 2 * d), V(kv + 10 * j + d)))
            op('v_and_b32 %s, 0xffff0000, %s' % (V(vf + 2 * d + 1), V(kv + 10 * j + d)))
        for (lr, qb, jj) in pairs:
            if jj != j:
                continue
            qi = 0 if qb == qv else 1
            first = (j == 2) if qi == 0 else (j == 0)
            for d in range(18):
                if first:
                    op('v_mul_f32 %s, %s, %s' % (V(oac + 18 * qi + d), V(lr), V(vf + d)))
                else:
                    op('v_fmac_f32 %s, %s, %s' % (V(oac + 18 * qi + d), V(lr), V(vf + d)))
    for qi in range(2):
        for d in range(9):
            op('v_cvt_pk_bf16_f32 %s, %s, %s' % (V(oac + 18 * qi + d), V(oac + 18 * qi + 2 * d), V(oac + 18 * qi + 2 * d + 1)))
            op('ds_write_b32 %s, %s offset:%d' % (V(vOA), V(oac + 18 * qi + d), qi * 4 * 320 + 4 * d), 'ow')
    op('v_and_b32 %s, 15, %s' % (V(vT[0]), V(vL)))
    op('v_bfe_u32 %s, %s, 4, 1' % (V(vT[1]), V(vL)))
    op('v_lshrrev_b32 %s, 5, %s' % (V(vT[2]), V(vL)))
    op('s_lshl_b32 %s, %s, 4' % (S(S_T0), S(S_WV)))
    op('v_add_u32 %s, %s, %s' % (V(vT[3]), S(S_T0), V(vT[0])))
    op('v_mul_u32_u24 %s, 320, %s' % (V(vT[3]), V(vT[3])))
    op('v_lshl_add_u32 %s, %s, 3, %s' % (V(vT[3]), V(vT[1]), V(vT[3])))
    op('v_lshl_add_u32 %s, %s, 5, %s' % (V(vT[3]), V(vT[2]), V(vT[3])))
    op('v_add_u32 %s, %d, %s' % (V(vT[3]), QB, V(vT[3])))
    op('s_and_b32 %s, %s, 1' % (S(S_T0), S(S_WV)))
    op('s_lshl_b32 %s, %s, 8' % (S(S_T0), S(S_T0)))
    op('v_lshlrev_b32 %s, 4, %s' % (V(vT[0]), V(vT[0])))
    op('v_lshl_add_u32 %s, %s, 9, %s' % (V(vT[0]), V(vT[1]), V(vT[0])))
    op('v_lshl_add_u32 %s, %s, 12, %s' % (V(vT[0]), V(vT[2]), V(vT[0])))
    op('v_add_u32 %s, %s, %s' % (V(vT[0]), S(S_T0), V(vT[0])))
    op('s_mul_i32 %s, %s, 36' % (S(S_T0), S(S_M)))
    op('s_mul_i32 %s, %s, 9' % (S(S_T1), S(S_S)))
    op('s_add_u32 %s, %s, %s' % (S(S_T0), S(S_T0), S(S_T1)))
    op('s_lshl_b32 %s, %s, 2' % (S(S_T0), S(S_T0)))
    op('s_lshr_b32 %s, %s, 1' % (S(S_T1), S(S_WV)))
    op('s_add_u32 %s, %s, %s' % (S(S_T0), S(S_T0), S(S_T1)))
    op('s_lshl_b32 %s, %s, 10' % (S(S_T0), S(S_T0)))
    op('s_add_u32 %s, %s, %d' % (S(S_T0), S(S_T0), WS_O))
    g.wait_all(vm=False, lg=True)
    for i in range(5):
        for h in range(2):
            op('ds_read_b64 %s, %s offset:%d' % (V(kv + 4 * i + 2 * h, 2), V(vT[3]), 64 * i + 16 * h), ('or', i))
    for i in range(5):
        g.wait(lg=('or', i))
        op('s_add_u32 %s, %s, %d' % (S(S_T3), S(S_T0), i * 8192))
        if i == 4:
            op('s_mov_b32 exec_hi, 0')
        op('buffer_store_dwordx4 %s, %s, %s, %s offen sc1' % (V(kv + 4 * i, 4), V(vT[0]), S(SRD_WS, 4), S(S_T3)), 'os')
        if i == 4:
            op('s_mov_b32 exec_hi, -1')
    g.wait_all(vm=True, lg=True)
    op('s_barrier')
    op('s_cmp_lg_u32 %s, 0' % S(S_WV))
    g.fence()
    op('s_cbranch_scc1 L_aoflag')
    flag_store(g, vT, S_NONCE, S_FLAGOWN, 128)
    g.fence()
    g.label('L_aoflag')
    g.vm.q = ['flag']
    stamp(g, cfg, 4)
    op('s_cmp_eq_u32 %s, 3' % S(S_S))
    g.fence()
    op('s_cbranch_scc1 L_aend')

    g.wait_all(vm=True, lg=False)
    va.next = big0
    R2, SLOT2 = 5, 24576
    ring2 = va.alloc('aring2', 24, 4)
    of = va.alloc('aof', 72, 4)
    acc2 = [va.alloc('aacc2_%d' % t, 16, 4) for t in range(6)]
    save_next = va.next
    va.next = vCS[0]
    op('s_mul_i32 %s, %s, 3072' % (S(S_LDSW), S(S_WV)))
    vW2 = p2_voffs(g, va, vL, vT, ['s_lshl_b32 %s, %s, 5' % (S(S_T0), S(S_CH)),
                                  's_lshl_b32 %s, %s, 3' % (S(S_T1), S(S_RG)),
                                  's_add_u32 %s, %s, %s' % (S(S_T0), S(S_T0), S(S_T1))])
    bases2 = tr_bases(g, va, vL, vT, 384, True, 3 * SLOT2, 'atrb2')
    assert va.next + 3 <= big0

    def w2dma(i):
        expr = ['s_mul_i32 %s, %s, 384' % (S(S_WOFF), S(S_S)),
                's_add_u32 %s, %s, %d' % (S(S_WOFF), S(S_WOFF), 64 * i * 1152)]
        return w_dma_groups(vW2, SRD_W2, expr, (i % R2) * SLOT2, ('W', 100 + i))
    for i in range(R2 - 1):
        for grp in w2dma(i):
            emit_group(grp)
    op('v_and_b32 %s, 3, %s' % (V(vT[5]), V(vL)))
    op('v_lshlrev_b32 %s, 11, %s' % (V(vT[5]), V(vT[5])))
    op('s_lshl_b32 %s, %s, 11' % (S(S_T0), S(S_S)))
    op('s_sub_u32 %s, %s, %s' % (S(S_FLAGC), S(S_FLAGOWN), S(S_T0)))
    flag_wait(g, vN, vT[5], S_NONCE, S_FLAGC, 128)
    stamp(g, cfg, 5)
    op('s_mul_i32 %s, %s, 36' % (S(S_T0), S(S_M)))
    op('s_lshl_b32 %s, %s, 1' % (S(S_T1), S(S_CH)))
    op('s_add_u32 %s, %s, %s' % (S(S_T0), S(S_T0), S(S_T1)))
    op('s_lshl_b32 %s, %s, 2' % (S(S_T0), S(S_T0)))
    op('s_add_u32 %s, %s, %s' % (S(S_T0), S(S_T0), S(S_RG)))
    op('s_lshl_b32 %s, %s, 10' % (S(S_T0), S(S_T0)))
    op('s_add_u32 %s, %s, %d' % (S(S_T0), S(S_T0), WS_O))
    for i in range(9):
        for e in range(2):
            op('s_add_u32 %s, %s, %d' % (S(S_T3), S(S_T0), (4 * i + e) * 4096))
            op('buffer_load_dwordx4 %s, %s, %s, %s offen sc1' % (V(of + 8 * i + 4 * e, 4), V(vL16), S(SRD_WS, 4), S(S_T3)), ('o', i, e))
    st2 = []
    for i in range(9):
        st = Stage(idx=100 + i, nt=6, slot_addr=(i % R2) * SLOT2, pitch=384, bases=bases2, set1_off=3 * SLOT2,
                   dma=w2dma(i), issue_at=(i - (R2 - 2) if i >= R2 - 1 else None), waittags=[('W', 100 + i)],
                   acc=acc2, first=(i == 0), colsum=None, restart=False, before=None, after=None, filler=None,
                   after_barrier=[], extra_dma=[])
        st.bfrag = (lambda i: (lambda e: of + 8 * i + 4 * e))(i)
        st.pre = (lambda i: (lambda e: g.wait(vm=('o', i, e))))(i)
        st2.append(st)
    run_pipeline(g, st2, R2, ring2, None)
    stamp(g, cfg, 6)
    op('s_add_u32 %s, %s, 64' % (S(S_T0), S(S_M)))
    op('s_mul_i32 %s, %s, 3' % (S(S_T0), S(S_T0)))
    op('s_add_u32 %s, %s, %s' % (S(S_T0), S(S_T0), S(S_S)))
    op('s_lshl_b32 %s, %s, 2' % (S(S_T0), S(S_T0)))
    op('s_add_u32 %s, %s, %s' % (S(S_T0), S(S_T0), S(S_RG)))
    op('s_mul_i32 %s, %s, 24576' % (S(S_T0), S(S_T0)))
    op('s_add_u32 %s, %s, %d' % (S(S_W2OFF), S(S_T0), WS_P))
    pair_reduce_store(g, va, vL, vT, acc2, None, S_W2OFF, cfg, 'A', ring2)
    stamp(g, cfg, 7)
    g.fence()
    g.label('L_aend')
    store_stamps(g, cfg, vT, 8)
    op('s_endpgm')


def gen_reduce(cfg):
    g = Gen()
    name = 'reduce_kernel'
    kernel_header(g, name)
    op = g.op
    op('s_cmp_ge_u32 s2, 576')
    op('s_cbranch_scc1 L_rexit')
    op('s_load_dwordx2 s[4:5], s[0:1], 0')
    op('s_load_dwordx4 s[20:23], s[0:1], 56')
    op('s_load_dwordx2 s[16:17], s[0:1], 80')
    op('v_lshrrev_b32 v1, 6, v0')
    op('v_and_b32 v2, 63, v0')
    op('v_readfirstlane_b32 s24, v1')
    op('s_lshl_b32 s25, s2, 2')
    op('s_add_u32 s25, s25, s24')
    op('s_and_b32 s26, s25, 1')
    op('s_lshr_b32 s25, s25, 1')
    op('s_mul_hi_u32 s27, s25, 0x2aaaaaab')
    op('s_mul_i32 s28, s27, 6')
    op('s_sub_u32 s28, s25, s28')
    op('s_and_b32 s29, s27, 3')
    op('s_lshr_b32 s27, s27, 2')
    op('s_mul_hi_u32 s30, s27, 0x55555556')
    op('s_mul_i32 s31, s30, 3')
    op('s_sub_u32 s31, s27, s31')
    op('v_and_b32 v3, 15, v2')
    op('v_lshrrev_b32 v4, 4, v2')
    op('s_lshl_b32 s32, s26, 8')
    op('v_lshlrev_b32 v5, 4, v3')
    op('v_lshl_add_u32 v5, v4, 10, v5')
    op('v_add_u32 v5, s32, v5')
    op('s_lshl_b32 s33, s25, 12')
    op('s_add_u32 s33, s33, %d' % WS_P)
    op('s_lshl_b32 s34, s30, 7')
    op('s_lshl_b32 s35, s29, 5')
    op('s_add_u32 s34, s34, s35')
    op('s_lshl_b32 s35, s26, 4')
    op('s_add_u32 s34, s34, s35')
    op('v_add_u32 v6, s34, v3')
    op('v_mul_u32_u24 v6, 1152, v6')
    op('s_mul_i32 s35, s31, 384')
    op('s_lshl_b32 s36, s28, 6')
    op('s_add_u32 s35, s35, s36')
    op('v_lshlrev_b32 v7, 4, v4')
    op('v_add_u32 v7, s35, v7')
    op('v_add_u32 v6, v6, v7')
    g.wait(lg='smem')
    op('s_mov_b32 s6, %d' % (2048 * 1152))
    op('s_mov_b32 s7, 0x20000')
    op('s_mov_b32 s8, s20')
    op('s_mov_b32 s9, s21')
    op('s_mov_b32 s10, 1152')
    op('s_mov_b32 s11, 0x20000')
    op('s_mov_b32 s12, s22')
    op('s_mov_b32 s13, s23')
    op('s_mov_b32 s14, %d' % (2048 * 1152))
    op('s_mov_b32 s15, 0x20000')
    op('s_mov_b32 s18, %d' % WS_SIZE)
    op('s_mov_b32 s19, 0x20000')
    PS = 16 * 3 * 96 * 1024
    for p in range(5):
        for h in range(2):
            op('buffer_load_dwordx4 %s, v5, s[16:19], s33 offen offset:%d' % (V(16 + 8 * p + 4 * h, 4), 512 * h), ('p', p))
        if p < 4:
            op('s_add_u32 s33, s33, %d' % PS)
    op('buffer_load_dwordx4 v[8:11], v6, s[4:7], 0 offen', 'x')
    op('buffer_load_dwordx4 v[12:15], v7, s[8:11], 0 offen', 'b')
    for p in range(1, 5):
        g.wait(vm=('p', p))
        for r in range(8):
            op('v_add_f32 %s, %s, %s' % (V(16 + r), V(16 + r), V(16 + 8 * p + r)))
    g.wait(vm='b')
    for d in range(4):
        for src in (8, 12):
            op('v_lshlrev_b32 v24, 16, %s' % V(src + d))
            op('v_and_b32 v25, 0xffff0000, %s' % V(src + d))
            op('v_add_f32 %s, %s, v24' % (V(16 + 2 * d), V(16 + 2 * d)))
            op('v_add_f32 %s, %s, v25' % (V(17 + 2 * d), V(17 + 2 * d)))
        op('v_cvt_pk_bf16_f32 %s, %s, %s' % (V(28 + d), V(16 + 2 * d), V(17 + 2 * d)))
    op('buffer_store_dwordx4 v[28:31], v6, s[12:15], 0 offen')
    g.label('L_rexit')
    op('s_endpgm')
    return g.finalize(), kernel_desc(name, 56, 48)


def build(cfg, path):
    main_txt, main_desc = gen_main(cfg)
    red_txt, red_desc = gen_reduce(cfg)
    hdr = open('cdna_kernels/%s.s.ref' % NAME).read().split('; Override launch')[0]
    out = hdr
    out += '; @launch kernel=main_kernel grid=(256,1,1) block=(512,1,1) lds=%d\n' % LDS_BYTES
    out += '; @launch kernel=reduce_kernel grid=(576,1,1) block=(256,1,1) lds=0\n'
    out += '.amdgcn_target "amdgcn-amd-amdhsa--gfx950"\n.text\n'
    out += main_txt + red_txt
    out += '.section .rodata,"a"\n' + main_desc + '\n' + red_desc + '\n'
    open(path, 'w').write(out)


if __name__ == '__main__':
    cfg = Cfg()
    path = 'cdna_kernels/%s.s' % NAME
    for a in sys.argv[1:]:
        if a == 'stamps':
            cfg.stamps = True
        elif a == 'nodots':
            cfg.nodots = True
        elif a.startswith('stop='):
            cfg.stop_after = a[5:]
        elif a.startswith('out='):
            path = a[4:]
    build(cfg, path)
    print('wrote', path)
```

```python
import sys, os, struct, math
from collections import deque
sys.path.insert(0, os.path.dirname(os.path.abspath(__file__)))
from asmgen import Gen, RegAlloc, V, S

NAME = 'parallel_sum__sliding_local_dilated__dense_activation_squared_relu__prompt'

WS_PX = 0
WS_KV = WS_PX + 16 * 3 * 16 * 48 * 1024
WS_O = WS_KV + 64 * 32768
WS_CS = WS_O + 16 * 144 * 1024
WS_FLAG = WS_CS + 256 * 2048
WS_DBG = WS_FLAG + 256 * 16 * 128
WS_SIZE = WS_DBG + (2 << 20)

LDS_BYTES = 163840
XRING = 122880
SCRATCH = 155648
SC_NONCE = SCRATCH
SC_CSW = SCRATCH + 1024
SC_STAT = SCRATCH + 1024
SC_VE = SCRATCH + 2048


def f32(x):
    return struct.unpack('<I', struct.pack('<f', x))[0]


class Cfg:
    stamps = False
    budget = 4
    memgap = 2
    pf = 1
    prio = 0
    fine = False
    csearly = 2
    csgap = 4
    xpf = 1
    p1only = False


def kernel_desc(name, vgpr, sgpr):
    acc = (vgpr + 3) // 4 * 4
    return '\n'.join([
        '.p2align 6',
        '.amdhsa_kernel %s' % name,
        '  .amdhsa_next_free_vgpr %d' % vgpr,
        '  .amdhsa_next_free_sgpr %d' % sgpr,
        '  .amdhsa_accum_offset %d' % acc,
        '  .amdhsa_group_segment_fixed_size 0',
        '  .amdhsa_kernarg_size 88',
        '  .amdhsa_user_sgpr_count 2',
        '  .amdhsa_user_sgpr_kernarg_segment_ptr 1',
        '  .amdhsa_system_sgpr_workgroup_id_x 1',
        '.end_amdhsa_kernel'])


SRD_X, SRD_W, SRD_W2, SRD_WS, SRD_B, SRD_DBG = 4, 8, 12, 16, 20, 24
S_M, S_S, S_R, S_WV, S_RG, S_CH = 28, 29, 30, 31, 32, 33
S_T0, S_T1, S_T2, S_T3 = 34, 35, 36, 37
S_WOFF, S_XOFF, S_LDSW, S_LDSX = 38, 39, 40, 41
S_PXW, S_PXR, S_KVW, S_KVR = 42, 43, 44, 45
S_NONCE, S_NN = 46, 47
S_ROLE, S_W2B = 48, 49
S_PERM, S_MYN, S_MASK, S_BLK = 50, 51, 52, 53
S_M0, S_M1 = 54, 55
S_KA = 56
SRD_OUT = 80
S_FLAGOWN, S_FLAGR, S_CSO, S_FLAGCS = 84, 85, 86, 87
S_FLAGO = 88
S_G = [76, 77, 78]
SRD_WO = 24
S_STAMP = 90
S_TS = 92
NSGPR = 96

_uid = [0]


def uid():
    _uid[0] += 1
    return _uid[0]


def stamp(g, cfg, ctx, idx):
    if not cfg.stamps:
        return
    g.op('s_memtime %s' % S(S_TS, 2))
    g.wait(lg='smem')
    g.op('s_sub_u32 %s, %s, %s' % (S(S_TS), S(S_TS), S(S_STAMP)))
    g.op('v_writelane_b32 %s, %s, %d' % (V(ctx['vst']), S(S_TS), idx))


def store_stamps(g, cfg, ctx):
    if not cfg.stamps:
        return
    op = g.op
    g.wait_all()
    stamp(g, cfg, ctx, 13)
    op('s_memrealtime %s' % S(S_TS, 2))
    g.wait(lg='smem')
    op('v_writelane_b32 %s, %s, 15' % (V(ctx['vst']), S(S_TS)))
    op('v_writelane_b32 %s, %s, 14' % (V(ctx['vst']), S(S_MYN)))
    op('s_lshl_b32 %s, s2, 3' % S(S_T0))
    op('s_add_u32 %s, %s, %s' % (S(S_T0), S(S_T0), S(S_WV)))
    op('s_lshl_b32 %s, %s, 8' % (S(S_T0), S(S_T0)))
    op('s_add_u32 %s, %s, %d' % (S(S_T0), S(S_T0), WS_DBG))
    vt = ctx['vT'][0]
    op('v_lshlrev_b32 %s, 2, %s' % (V(vt), V(ctx['vL'])))
    op('buffer_store_dword %s, %s, %s, %s offen' % (V(ctx['vst']), V(vt), S(SRD_WS, 4), S(S_T0)))


def srd_code(d, ka, size):
    return ['s_mov_b32 %s, %s' % (S(d), S(ka)),
            's_mov_b32 %s, %s' % (S(d + 1), S(ka + 1)),
            's_mov_b32 %s, %d' % (S(d + 2), size),
            's_mov_b32 %s, 0x20000' % S(d + 3)]


def emit(g, code):
    for x in code:
        if callable(x):
            x()
        elif isinstance(x, list):
            emit(g, x)
        elif isinstance(x, tuple):
            g.op(x[0], x[1])
        else:
            g.op(x)


class Stage:
    def __init__(self, idx, waittags):
        self.idx, self.waittags = idx, waittags
        self.steps = []
        self.on_barrier = []
        self.pre_barrier = []
        self.hooks = {}

    def hook(self, n, f):
        self.hooks.setdefault(n, []).append(f)


class Step:
    def __init__(self, acc, b, addr, off, hstride, first=False, pre=None):
        self.acc, self.b, self.addr, self.off, self.hstride, self.first, self.pre = acc, b, addr, off, hstride, first, pre


class Unit:
    def __init__(self, ready, deadline, read, ops, tag):
        self.ready, self.deadline, self.read, self.ops, self.tag = ready, deadline, read, ops, tag
        self.code = None


class Pipe:
    def __init__(self, g, ring, rs, cfg):
        self.g, self.ring, self.rs, self.cfg = g, ring, rs, cfg
        self.qm, self.qa, self.ql, self.qs = deque(), deque(), deque(), deque()
        self.slowgap, self.last_slow = 6, -100
        self.slot, self.last_mem, self.bar = 0, -100, -1
        self.units, self.nread, self.nproc, self.opi, self.utmp = [], 0, 0, 0, None

    def mem(self, groups):
        self.qm.extend(groups)

    def side(self, code):
        self.qa.extend(code)

    def _issue_reads(self):
        while (self.nread < len(self.units) and self.nread - self.nproc < len(self.utmp)
               and self.units[self.nread].ready <= self.bar):
            u = self.units[self.nread]
            u.reg = self.utmp[self.nread % len(self.utmp)]
            self.g.op(u.read(u.reg), u.tag)
            u.slot_issued = self.slot
            self.nread += 1

    def _proc(self, budget, force=False):
        while budget > 0 and self.nproc < self.nread:
            u = self.units[self.nproc]
            if u.code is None:
                if not force and self.slot - u.slot_issued < 2:
                    break
                self.g.wait(lg=u.tag)
                u.code = u.ops(u.reg)
                self.opi = 0
            while budget > 0 and self.opi < len(u.code):
                emit(self.g, u.code[self.opi])
                budget -= len(u.code[self.opi])
                self.opi += 1
            if self.opi == len(u.code):
                self.nproc += 1
                self._issue_reads()
        return budget

    def units_deadline(self, j):
        while True:
            pend = [k for k in range(self.nproc, len(self.units)) if self.units[k].deadline <= j
                    and (k >= self.nread or self.units[k].code is None)]
            if not pend:
                return
            if pend[0] < self.nread:
                last = max(x for x in pend if x < self.nread)
                self.g.wait(lg=self.units[last].tag)
                if all(x < self.nread for x in pend):
                    return
            self._issue_reads()
            self._proc(4, force=True)

    def flush_units(self):
        while self.nproc < len(self.units):
            self._issue_reads()
            assert self.nproc < self.nread
            self._proc(1000, force=True)

    def fill(self):
        self.slot += 1
        if self.qm and self.slot - self.last_mem >= self.cfg.memgap:
            emit(self.g, self.qm.popleft())
            self.last_mem = self.slot
        elif self.qs and self.slot - self.last_slow >= self.slowgap:
            emit(self.g, self.qs.popleft())
            self.last_slow = self.slot
        if self.ql:
            emit(self.g, [self.ql.popleft()])
        b = self.cfg.budget
        if self.units:
            self._issue_reads()
            b = b - 2 + self._proc(2)
        while self.qa and b > 0:
            x = self.qa.popleft()
            emit(self.g, [x])
            b -= len(x) if isinstance(x, list) else 1

    def flush_mem(self):
        while self.qm:
            emit(self.g, self.qm.popleft())

    def slow(self, groups, gap):
        self.qs.extend(groups)
        self.slowgap = gap

    def flush_slow(self):
        while self.qs:
            emit(self.g, self.qs.popleft())

    def flush_side(self):
        while self.qa:
            emit(self.g, [self.qa.popleft()])

    def barrier(self, st):
        g = self.g
        self.flush_mem()
        assert not self.ql
        for f in st.pre_barrier:
            f()
        self.units_deadline(st.idx)
        if self.cfg.fine:
            g.op('s_memtime %s' % S(S_TS, 2))
        g.wait(vm=st.waittags)
        g.op('s_barrier')
        if self.cfg.fine:
            g.wait(lg='smem')
            g.op('s_sub_u32 %s, %s, %s' % (S(S_TS), S(S_TS), S(S_STAMP)))
            g.op('v_writelane_b32 v0, %s, %d' % (S(S_TS), 16 + (st.idx if st.idx < 100 else st.idx - 82)))
        self.bar = st.idx
        for f in st.on_barrier:
            f()

    def run(self, stages):
        g = self.g
        seq = [(st, n) for st in stages for n in range(len(st.steps))]
        key = uid()

        def read(k):
            st, n = seq[k]
            if n == 0:
                self.barrier(st)
            sp = st.steps[n]
            r = self.ring + 4 * (k % self.rs)
            for h in range(2):
                g.op('ds_read_b64_tr_b16 %s, %s offset:%d' % (V(r + 2 * h, 2), V(sp.addr), sp.off + h * sp.hstride), ('w', key, k))
        for k in range(self.rs):
            read(k)
        for k, (st, n) in enumerate(seq):
            for f in st.hooks.get(n, []):
                f()
            sp = st.steps[n]
            if sp.pre:
                sp.pre()
            g.wait(lg=('w', key, k))
            c = '0' if sp.first else V(sp.acc, 16)
            g.op('v_mfma_f32_32x32x16_bf16 %s, %s, %s, %s' % (V(sp.acc, 16), V(self.ring + 4 * (k % self.rs), 4), V(sp.b, 4), c))
            if k + self.rs < len(seq):
                read(k + self.rs)
            self.fill()
            if n == len(st.steps) - 1:
                for f in st.hooks.get('end', []):
                    f()


def divmod_code(vL, i, units, magic, vr, vp, vtmp, clamp=None):
    c = ['v_add_u32 %s, %d, %s' % (V(vp), 64 * i, V(vL))]
    if clamp is not None:
        c.append('v_min_u32 %s, %d, %s' % (V(vp), clamp, V(vp)))
    c += ['v_mul_u32_u24 %s, %d, %s' % (V(vr), magic, V(vp)),
          'v_lshrrev_b32 %s, 16, %s' % (V(vr), V(vr)),
          'v_mul_u32_u24 %s, %d, %s' % (V(vtmp), units, V(vr)),
          'v_sub_u32 %s, %s, %s' % (V(vp), V(vp), V(vtmp))]
    return c


def w_dma_groups(voffs, srd_, pre, slot_addr, tag, half_last=False):
    out = []
    for i in range(len(voffs)):
        grp = list(pre) if i == 0 else []
        grp.append('s_add_u32 m0, %s, %d' % (S(S_LDSW), slot_addr + i * 1024))
        hl = half_last and i == len(voffs) - 1
        if hl:
            grp.append('s_mov_b32 exec_hi, 0')
        grp.append(('buffer_load_dwordx4 %s, %s, %s offen lds' % (V(voffs[i]), S(srd_, 4), S(S_WOFF)), tag))
        if hl:
            grp.append('s_mov_b32 exec_hi, -1')
        out.append(grp)
    return out


def lane_tr_code(vL, vT, pitch):
    return ['v_lshrrev_b32 %s, 5, %s' % (V(vT[0]), V(vL)),
            'v_bfe_u32 %s, %s, 2, 2' % (V(vT[1]), V(vL)),
            'v_lshl_add_u32 %s, %s, 2, %s' % (V(vT[0]), V(vT[0]), V(vT[1])),
            'v_mul_u32_u24 %s, %d, %s' % (V(vT[0]), pitch, V(vT[0])),
            'v_bfe_u32 %s, %s, 4, 1' % (V(vT[2]), V(vL)),
            'v_lshl_add_u32 %s, %s, 5, %s' % (V(vT[0]), V(vT[2]), V(vT[0])),
            'v_and_b32 %s, 3, %s' % (V(vT[2]), V(vL)),
            'v_lshl_add_u32 %s, %s, 3, %s' % (V(vT[0]), V(vT[2]), V(vT[0])),
            'v_bfe_u32 %s, %s, 3, 1' % (V(vT[1]), V(vL)),
            'v_lshlrev_b32 %s, 6, %s' % (V(vT[1]), V(vT[1]))]


def tr2_code(vL, vT, regs, set1, own_other):
    c = lane_tr_code(vL, vT, 384)
    c += ['s_mul_i32 %s, %s, 192' % (S(S_T0), S(S_CH)),
          'v_add_u32 %s, %s, %s' % (V(vT[0]), S(S_T0), V(vT[0])),
          's_lshl_b32 %s, %s, 1' % (S(S_T0), S(S_CH)),
          's_sub_u32 %s, 1, %s' % (S(S_T0), S(S_T0)),
          'v_mul_i32_i24 %s, %s, %s' % (V(vT[1]), S(S_T0), V(vT[1]))]
    if own_other:
        c += ['s_mul_i32 %s, %s, %d' % (S(S_T0), S(S_CH), 32 * 384),
              's_sub_u32 %s, %d, %s' % (S(S_T1), 32 * 384, S(S_T0)),
              'v_add3_u32 %s, %s, %s, %s' % (V(regs[(0, 0, 0)]), V(vT[0]), V(vT[1]), S(S_T0)),
              'v_add3_u32 %s, %s, %s, %s' % (V(regs[(1, 0, 0)]), V(vT[0]), V(vT[1]), S(S_T1)),
              'v_sub_u32 %s, %s, %s' % (V(vT[0]), V(vT[0]), V(vT[1])),
              'v_add_u32 %s, %s, %s' % (V(regs[(0, 1, 0)]), S(S_T0), V(vT[0])),
              'v_add_u32 %s, %s, %s' % (V(regs[(1, 1, 0)]), S(S_T1), V(vT[0]))]
        blks = (0, 1)
    else:
        c += ['v_add_u32 %s, %s, %s' % (V(regs[(0, 0, 0)]), V(vT[0]), V(vT[1])),
              'v_sub_u32 %s, %s, %s' % (V(regs[(0, 1, 0)]), V(vT[0]), V(vT[1]))]
        blks = (0,)
    for b in blks:
        for ab in range(2):
            c.append('v_add_u32 %s, %d, %s' % (V(regs[(b, ab, 1)]), set1, V(regs[(b, ab, 0)])))
    return c


def w2_voff_code(vL, vT, vW2, rowbase_code):
    c = list(rowbase_code)
    for i in range(3):
        c += divmod_code(vL, i, 24, 2731, vT[0], vT[1], vT[2])
        c += ['v_bfe_u32 %s, %s, 1, 1' % (V(vT[2]), V(vT[0])),
              'v_lshlrev_b32 %s, 2, %s' % (V(vT[2]), V(vT[2])),
              'v_xor_b32 %s, %s, %s' % (V(vT[1]), V(vT[1]), V(vT[2])),
              'v_add_u32 %s, %s, %s' % (V(vT[0]), S(S_T0), V(vT[0])),
              'v_mul_u32_u24 %s, 1152, %s' % (V(vT[0]), V(vT[0])),
              'v_lshl_add_u32 %s, %s, 4, %s' % (V(vW2[i]), V(vT[1]), V(vT[0]))]
    return c


def flag_store_code(vP, vZero, soff, count, imm=0):
    return ['v_mov_b32 %s, %s' % (V(vP), S(S_NONCE)),
            's_add_u32 %s, %s, %d' % (S(S_T0), S(S_NN), count),
            'v_mov_b32 %s, %s' % (V(vP + 1), S(S_T0)),
            ['s_mov_b64 exec, 1',
             ('buffer_store_dwordx2 %s, %s, %s, %s offen offset:%d sc1' % (V(vP, 2), V(vZero), S(SRD_WS, 4), S(soff), imm), 'flag'),
             's_mov_b64 exec, -1']]


def poll_issue(g, vP, vOff, soff, imm=0):
    g.op('buffer_load_dwordx2 %s, %s, %s, %s offen offset:%d sc1' % (V(vP, 2), V(vOff), S(SRD_WS, 4), S(soff), imm), 'poll')


def poll_check(g, vP, vOff, soff, count, imm=0, bound=1 << 20):
    op = g.op
    u = uid()
    g.wait(vm='poll')
    op('s_mov_b32 %s, 0' % S(S_T2))
    op('s_add_u32 %s, %s, %d' % (S(S_T1), S(S_NN), count))
    g.fence()
    g.label('L_poll%d' % u)
    op('v_xor_b32 %s, %s, %s' % (V(vP), S(S_NONCE), V(vP)))
    op('v_subrev_u32 %s, %s, %s' % (V(vP + 1), S(S_T1), V(vP + 1)))
    op('v_and_b32 %s, -8, %s' % (V(vP + 1), V(vP + 1)))
    op('v_or_b32 %s, %s, %s' % (V(vP), V(vP), V(vP + 1)))
    op('v_cmp_ne_u32 vcc, 0, %s' % V(vP))
    op('s_add_u32 %s, %s, 1' % (S(S_T2), S(S_T2)))
    op('s_nop 0')
    op('s_cmp_eq_u64 vcc, 0')
    op('s_cbranch_scc1 L_pollx%d' % u)
    op('s_cmp_ge_u32 %s, %d' % (S(S_T2), bound))
    op('s_cbranch_scc1 L_pollx%d' % u)
    g.raw('    buffer_load_dwordx2 %s, %s, %s, %s offen offset:%d sc1' % (V(vP, 2), V(vOff), S(SRD_WS, 4), S(soff), imm))
    g.raw('    s_waitcnt vmcnt(0)')
    op('s_branch L_poll%d' % u)
    g.label('L_pollx%d' % u)
    g.fence()


def stats_units(cx, vXS, stat, up):
    out = []
    for i in range(2):
        s_, q_ = stat + 2 * i, stat + 2 * i + 1

        def ops(r, s_=s_, q_=q_):
            code = []
            for d in range(4):
                u = up + 2 * (d & 1)
                code.append(['v_lshlrev_b32 %s, 16, %s' % (V(u), V(r + d)),
                             'v_and_b32 %s, %s, %s' % (V(u + 1), S(S_MASK), V(r + d))])
                code.append(['v_add_f32 %s, %s, %s' % (V(s_), V(s_), V(u)),
                             'v_fmac_f32 %s, %s, %s' % (V(q_), V(u), V(u))])
                code.append(['v_add_f32 %s, %s, %s' % (V(s_), V(s_), V(u + 1)),
                             'v_fmac_f32 %s, %s, %s' % (V(q_), V(u + 1), V(u + 1))])
            return code
        out.append(Unit(2 * cx, 2 * cx + 1 + i,
                        lambda r, i=i: 'ds_read_b128 %s, %s offset:%d' % (V(r, 4), V(vXS), (cx % 2) * 16384 + i * 1024),
                        ops, ('xs', cx, i)))
    return out


def unpack_add(dst, src, t0, t1, first=False):
    if first:
        return ['v_lshlrev_b32 %s, 16, %s' % (V(dst), V(src)),
                'v_and_b32 %s, %s, %s' % (V(dst + 1), S(S_MASK), V(src))]
    return ['v_lshlrev_b32 %s, 16, %s' % (V(t0), V(src)),
            'v_and_b32 %s, %s, %s' % (V(t1), S(S_MASK), V(src)),
            'v_add_f32 %s, %s, %s' % (V(dst), V(dst), V(t0)),
            'v_add_f32 %s, %s, %s' % (V(dst + 1), V(dst + 1), V(t1))]


def bcorr_code(g, vL, t, st2, vRstd, vVe, vBc):
    c = []
    A = c.append
    A(lambda: g.wait(lg='crd'))
    A('v_mul_f32 %s, 0x%x, %s' % (V(t[0]), f32(1.0 / 576.0), V(st2)))
    A('v_mul_f32 %s, 0x%x, %s' % (V(t[1]), f32(1.0 / 576.0), V(st2 + 1)))
    A('v_fma_f32 %s, -%s, %s, %s' % (V(t[1]), V(t[0]), V(t[0]), V(t[1])))
    A('v_max_f32 %s, 0, %s' % (V(t[1]), V(t[1])))
    A('v_add_f32 %s, 0x%x, %s' % (V(vVe), f32(1e-5), V(t[1])))
    A('v_rsq_f32 %s, %s' % (V(vRstd), V(vVe)))
    A('v_xor_b32 %s, 0x80000000, %s' % (V(t[0]), V(t[0])))
    A('v_mul_f32 %s, %s, %s' % (V(t[1]), V(vVe), V(vRstd)))
    A('v_and_b32 %s, %s, %s' % (V(t[4]), S(S_MASK), V(t[0])))
    A('v_sub_f32 %s, %s, %s' % (V(t[2]), V(t[0]), V(t[4])))
    A('v_and_b32 %s, %s, %s' % (V(t[4]), S(S_MASK), V(t[2])))
    A('v_sub_f32 %s, %s, %s' % (V(t[3]), V(t[2]), V(t[4])))
    A('v_perm_b32 %s, %s, %s, %s' % (V(vBc), V(t[2]), V(t[0]), S(S_PERM)))
    A('v_perm_b32 %s, %s, %s, %s' % (V(vBc + 1), V(t[3]), V(t[0]), S(S_PERM)))
    A('v_and_b32 %s, %s, %s' % (V(t[4]), S(S_MASK), V(t[1])))
    A('v_sub_f32 %s, %s, %s' % (V(t[0]), V(t[1]), V(t[4])))
    A('v_mov_b32 %s, %s' % (V(vBc + 2), V(vBc)))
    A('v_and_b32 %s, %s, %s' % (V(t[4]), S(S_MASK), V(t[0])))
    A('v_sub_f32 %s, %s, %s' % (V(t[3]), V(t[0]), V(t[4])))
    A('v_perm_b32 %s, %s, %s, %s' % (V(t[4]), V(t[0]), V(t[1]), S(S_PERM)))
    A('v_lshrrev_b32 %s, 16, %s' % (V(t[3]), V(t[3])))
    A(['v_cmp_gt_u32 vcc, 32, %s' % V(vL),
       'v_cndmask_b32 %s, %s, %s, vcc' % (V(vBc + 3), V(t[3]), V(t[4]))])
    return c


def acorr_code(t, cs, b3, vAc):
    c = ['v_and_b32 %s, %s, %s' % (V(t[4]), S(S_MASK), V(cs)),
         'v_sub_f32 %s, %s, %s' % (V(t[2]), V(cs), V(t[4])),
         'v_and_b32 %s, %s, %s' % (V(t[4]), S(S_MASK), V(t[2])),
         'v_sub_f32 %s, %s, %s' % (V(t[3]), V(t[2]), V(t[4])),
         'v_perm_b32 %s, %s, %s, %s' % (V(vAc), V(cs), V(cs), S(S_PERM)),
         'v_perm_b32 %s, %s, %s, %s' % (V(vAc + 1), V(cs), V(t[2]), S(S_PERM)),
         'v_perm_b32 %s, %s, %s, %s' % (V(vAc + 2), V(t[2]), V(t[3]), S(S_PERM))]
    if b3 is None:
        c.append('v_mov_b32 %s, 0' % V(vAc + 3))
    else:
        c.append('v_lshl_or_b32 %s, %s, 16, %s' % (V(vAc + 3), V(b3), V(b3)))
    return c


def pass_epilogue_code(accs, vScale, vL16, n, tag):
    c = []
    for tt, a0 in enumerate(accs):
        for p in range(2):
            a = a0 + 8 * p
            if vScale is not None:
                c += ['v_mul_f32 %s, %s, %s' % (V(a + r), V(a + r), V(vScale)) for r in range(8)]
            c += ['v_cvt_pk_bf16_f32 %s, %s, %s' % (V(a + d), V(a + 2 * d), V(a + 2 * d + 1)) for d in range(4)]
            c += ['s_add_u32 %s, %s, %d' % (S(S_T3), S(S_PXW), n * 16 * 49152 + tt * 2048),
                  'v_permlane32_swap_b32 %s, %s' % (V(a), V(a + 2)),
                  'v_permlane32_swap_b32 %s, %s' % (V(a + 1), V(a + 3)),
                  ('buffer_store_dwordx4 %s, %s, %s, %s offen offset:%d sc1' % (V(a, 4), V(vL16), S(SRD_WS, 4), S(S_T3), p * 1024), tag)]
    return c


def gen_main(cfg):
    g = Gen()
    name = NAME + '_kernel'
    g.raw('.globl %s' % name)
    g.raw('.p2align 8')
    g.raw('.type %s,@function' % name)
    g.label(name)
    op = g.op
    op('s_cmp_ge_u32 s2, 256')
    op('s_cbranch_scc1 L_exit')
    op('s_load_dwordx4 %s, s[0:1], 0' % S(S_KA, 4))
    op('s_load_dwordx4 %s, s[0:1], 32' % S(S_KA + 8, 4))
    op('s_load_dwordx2 %s, s[0:1], 16' % S(S_KA + 4, 2))
    op('s_load_dwordx8 %s, s[0:1], 48' % S(S_KA + 12, 8))
    op('s_load_dwordx2 %s, s[0:1], 80' % S(S_KA + 20, 2))
    if cfg.stamps:
        op('s_memtime %s' % S(S_STAMP, 2))
    op('s_memrealtime %s' % S(S_KA + 22, 2))
    va = RegAlloc('v', 1, 256)
    vL = va.alloc('lane')
    vT = [va.alloc('t%d' % i) for i in range(6)]
    ctx = dict(vL=vL, vT=vT)
    if cfg.stamps:
        ctx['vst'] = 0
    op('v_lshrrev_b32 %s, 6, v0' % V(vT[0]))
    op('v_and_b32 %s, 63, v0' % V(vL))
    op('v_readfirstlane_b32 %s, %s' % (S(S_WV), V(vT[0])))
    if cfg.stamps:
        op('v_mov_b32 v0, 0')
    op('s_and_b32 %s, s2, 3' % S(S_S))
    op('s_bfe_u32 %s, s2, 0x20003' % S(S_R))
    op('s_lshr_b32 %s, s2, 6' % S(S_T2))
    op('s_bfe_u32 %s, s2, 0x10002' % S(S_T0))
    op('s_bfe_u32 %s, s2, 0x10005' % S(S_T1))
    op('s_lshl_b32 %s, %s, 2' % (S(S_M), S(S_T2)))
    op('s_lshl_b32 %s, %s, 1' % (S(S_T0), S(S_T0)))
    op('s_add_u32 %s, %s, %s' % (S(S_M), S(S_M), S(S_T0)))
    op('s_add_u32 %s, %s, %s' % (S(S_M), S(S_M), S(S_T1)))
    op('s_lshl_b32 %s, %s, 1' % (S(S_T2), S(S_T2)))
    op('s_add_u32 %s, %s, %s' % (S(S_BLK), S(S_T2), S(S_T1)))
    op('s_and_b32 %s, %s, 3' % (S(S_RG), S(S_WV)))
    op('s_lshr_b32 %s, %s, 2' % (S(S_CH), S(S_WV)))
    vXD = [va.alloc('xd%d' % i) for i in range(2)]
    op('s_lshl_b32 %s, %s, 7' % (S(S_T0), S(S_M)))
    op('s_lshl_b32 %s, %s, 4' % (S(S_T1), S(S_WV)))
    op('s_add_u32 %s, %s, %s' % (S(S_T0), S(S_T0), S(S_T1)))
    op('s_mul_i32 %s, %s, 1152' % (S(S_T0), S(S_T0)))
    op('v_lshrrev_b32 %s, 3, %s' % (V(vT[0]), V(vL)))
    op('v_mul_u32_u24 %s, 1152, %s' % (V(vT[0]), V(vT[0])))
    op('v_add_u32 %s, %s, %s' % (V(vT[0]), S(S_T0), V(vT[0])))
    op('v_and_b32 %s, 7, %s' % (V(vT[1]), V(vL)))
    op('v_lshrrev_b32 %s, 4, %s' % (V(vT[2]), V(vL)))
    op('v_xor_b32 %s, %s, %s' % (V(vT[1]), V(vT[1]), V(vT[2])))
    op('v_lshl_add_u32 %s, %s, 4, %s' % (V(vXD[0]), V(vT[1]), V(vT[0])))
    op('v_xor_b32 %s, 4, %s' % (V(vT[1]), V(vT[1])))
    op('v_lshl_add_u32 %s, %s, 4, %s' % (V(vXD[1]), V(vT[1]), V(vT[0])))
    op('v_add_u32 %s, %d, %s' % (V(vXD[1]), 8 * 1152, V(vXD[1])))
    op('s_lshl_b32 %s, %s, 11' % (S(S_LDSX), S(S_WV)))
    op('s_add_u32 %s, %s, %d' % (S(S_LDSX), S(S_LDSX), XRING))
    op('s_lshr_b32 %s, %s, 1' % (S(S_T3), S(S_RG)))
    op('s_lshl_b32 %s, %s, 4' % (S(S_T3), S(S_T3)))
    op('s_and_b32 %s, %s, 1' % (S(S_T1), S(S_RG)))
    op('s_lshl_b32 %s, %s, 2' % (S(S_T1), S(S_T1)))
    op('s_add_u32 %s, %s, %s' % (S(S_T3), S(S_T3), S(S_T1)))
    ctx['vXD'] = vXD

    def xdma(cx):
        return [['s_add_u32 m0, %s, %d' % (S(S_LDSX), (cx % 2) * 16384 + i * 1024),
                 's_movk_i32 %s, %d' % (S(S_XOFF), cx * 128),
                 ('buffer_load_dwordx4 %s, %s, %s offen lds' % (V(vXD[i]), S(SRD_X, 4), S(S_XOFF)), ('x', cx))] for i in range(2)]

    def common_late():
        vXR = [va.alloc('xr%d' % j) for j in range(4)]
        vXS = va.alloc('xs')
        vL16 = va.alloc('l16')
        vZero = va.alloc('zero')
        op('v_and_b32 %s, 31, %s' % (V(vT[0]), V(vL)))
        op('v_lshrrev_b32 %s, 5, %s' % (V(vT[1]), V(vL)))
        op('v_bfe_u32 %s, %s, 1, 3' % (V(vT[2]), V(vL)))
        op('v_xor_b32 %s, %s, %s' % (V(vT[1]), V(vT[1]), V(vT[2])))
        op('s_lshl_b32 %s, %s, 12' % (S(S_T0), S(S_RG)))
        op('s_add_u32 %s, %s, %d' % (S(S_T0), S(S_T0), XRING))
        op('v_lshlrev_b32 %s, 7, %s' % (V(vT[0]), V(vT[0])))
        op('v_add_u32 %s, %s, %s' % (V(vT[0]), S(S_T0), V(vT[0])))
        for j in range(4):
            op('v_xor_b32 %s, %d, %s' % (V(vT[2]), 2 * j, V(vT[1])))
            op('v_lshl_add_u32 %s, %s, 4, %s' % (V(vXR[j]), V(vT[2]), V(vT[0])))
        op('v_lshlrev_b32 %s, 4, %s' % (V(vL16), V(vL)))
        op('v_add_u32 %s, %s, %s' % (V(vXS), S(S_LDSX), V(vL16)))
        op('v_mov_b32 %s, 0' % V(vZero))
        op('s_mov_b32 %s, 0x07060302' % S(S_PERM))
        op('s_mov_b32 %s, 0xffff0000' % S(S_MASK))
        emit(g, srd_code(SRD_WS, S_KA + 20, WS_SIZE))
        emit(g, srd_code(SRD_DBG, S_KA + 18, 256))
        op('s_or_b32 %s, %s, 1' % (S(S_MYN), S(S_KA + 22)))
        op('s_lshl_b32 %s, s2, 3' % S(S_T0))
        op('s_add_u32 %s, %s, %s' % (S(S_T0), S(S_T0), S(S_WV)))
        op('s_lshl_b32 %s, %s, 12' % (S(S_T0), S(S_T0)))
        op('v_mov_b32 %s, %s' % (V(vT[0]), S(S_MYN)))
        op('s_mov_b64 exec, 1')
        op('buffer_store_dword %s, %s, %s, %s offen sc1' % (V(vT[0]), V(vZero), S(SRD_DBG, 4), S(S_T0)), 'nst')
        op('s_mov_b64 exec, -1')
        ctx.update(vXR=vXR, vXS=vXS, vL16=vL16, vZero=vZero)

    op('s_cmp_eq_u32 %s, 3' % S(S_R))
    g.fence()
    op('s_cbranch_scc1 L_roleA')
    state = (g.vm.copy(), g.lg.copy(), va.next)
    gen_role_F(g, va, ctx, xdma, common_late, cfg)
    g.label('L_roleA')
    g.vm, g.lg, va.next = state
    gen_role_A(g, va, ctx, xdma, common_late, cfg)
    g.label('L_exit')
    op('s_endpgm')
    return g.finalize(), kernel_desc(name, 256, NSGPR)


def build_p1(g, pipe, ctx, cfg, R, SLOT, pitch, baseof, nt, w1dma, xdma, acc1, X, U, stride, vCO, vP, first_lead):
    op = g.op
    vXR, vXS, vL, vT, vL16, vZero = ctx['vXR'], ctx['vXS'], ctx['vL'], ctx['vT'], ctx['vL16'], ctx['vZero']
    xf = X
    pipe.utmp = [X + 32, X + 36, X + 40]
    stat, up = X + 44, X + 48
    csl, csa = X + 52, X + 72
    for r in range(stat, stat + 4):
        op('v_mov_b32 %s, 0' % V(r))
    stages = []
    for s in range(18):
        cx, sp = s // 2, s % 2
        st = Stage(s, [('W', s)] + ([('x', cx)] if sp == 0 else []))
        for e in range(2):
            for t in range(nt):
                a, off = baseof((s % R) * SLOT + 16 * e * pitch + t * 64, t & 1)
                j = 2 * sp + e
                st.steps.append(Step(acc1[t], xf + (cx % 2) * 16 + 4 * j, a, off, 8 * pitch, first=(s == 0 and e == 0),
                                     pre=((lambda cx=cx, j=j: g.wait(lg=('xf', cx, j))) if t == 0 else None)))
        stages.append(st)
        if sp == 0:
            pipe.units += stats_units(cx, vXS, stat, up)

        def ob(s=s, cx=cx, sp=sp):
            if sp == 0:
                rd = [('ds_read_b128 %s, %s offset:%d' % (V(xf + (cx % 2) * 16 + 4 * j, 4), V(vXR[j]), (cx % 2) * 16384), ('xf', cx, j))
                      for j in range(4)]
                if s == 0:
                    emit(g, rd)
                else:
                    pipe.ql.extend(rd)
            if sp == 1 and cx + 2 < 9:
                pipe.mem(xdma(cx + 2)[:1])
            if sp == 0 and s >= 2 and cx + 1 < 9:
                pipe.mem(xdma(cx + 1)[1:])
            if s == 0:
                for k in range(first_lead, R - 1):
                    pipe.mem(w1dma(k))
            k = s + R - 2
            if s >= 1 and k < 18:
                pipe.mem(w1dma(k))
        st.on_barrier.append(ob)

    order = [1, 2, 3, 4, 5, 6, 7, 8, 0]

    def cs_load(r):
        return ['s_mov_b32 %s, %d' % (S(S_M0), order[r] * 64 * stride),
                ('buffer_load_dwordx2 %s, %s, %s, %s offen' % (V(csl + 2 * r, 2), V(vCO), S(SRD_W, 4), S(S_M0)), ('csl', r))]
    ctx['cs_early'] = [cs_load(r) for r in range(cfg.csearly)]
    stages[0].on_barrier.append(lambda: pipe.slow([cs_load(r) for r in range(cfg.csearly, 9)], cfg.csgap))
    c = []
    for r in range(9):
        c.append(lambda r=r: g.wait(vm=('csl', r)))
        for d in range(2):
            c += unpack_add(csa + 2 * d, csl + 2 * r + d, vT[0], vT[1], first=(r == 0))
    w = ['s_mul_i32 %s, %s, 1792' % (S(S_T0), S(S_RG)),
         's_mul_i32 %s, %s, %d' % (S(S_T1), S(S_CH), U * 4),
         's_add_u32 %s, %s, %s' % (S(S_T0), S(S_T0), S(S_T1)),
         's_add_u32 %s, %s, %d' % (S(S_T0), S(S_T0), SC_CSW),
         'v_add_u32 %s, %s, %s' % (V(vT[0]), S(S_T0), V(vL16)),
         ['s_mov_b32 exec_hi, 0x%x' % ((1 << (U // 4 - 32)) - 1),
          ('ds_write_b128 %s, %s' % (V(vT[0]), V(csa, 4)), 'csw'),
          's_mov_b32 exec_hi, -1']]
    stages[5].hook(0, lambda: (pipe.flush_slow(), pipe.side(c + w)))
    stages[9].pre_barrier.append(pipe.flush_side)
    stages[9].pre_barrier.append(lambda: g.wait(lg='csw'))
    stages[3].hook(4, lambda: emit(g, ['s_lshl_b32 %s, %s, 12' % (S(S_M0), S(S_WV)),
                                      ('buffer_load_dword %s, %s, %s, %s offen sc1' % (V(vP), V(vZero), S(SRD_DBG, 4), S(S_M0)), 'nld')]))

    def nonce_share():
        u = uid()
        g.wait(vm='nld')
        op('s_mov_b32 %s, 0' % S(S_M1))
        op('s_cmp_lg_u32 %s, 0' % S(S_WV))
        g.fence()
        op('s_cbranch_scc1 L_nx%d' % u)
        g.label('L_nl%d' % u)
        op('v_readfirstlane_b32 %s, %s' % (S(S_M0), V(vP)))
        op('s_add_u32 %s, %s, 1' % (S(S_M1), S(S_M1)))
        op('s_cmp_lg_u32 %s, 0' % S(S_M0))
        op('s_cbranch_scc1 L_nw%d' % u)
        op('s_cmp_ge_u32 %s, %d' % (S(S_M1), 1 << 20))
        op('s_cbranch_scc1 L_nw%d' % u)
        g.raw('    buffer_load_dword %s, %s, %s, 0 offen sc1' % (V(vP), V(vZero), S(SRD_DBG, 4)))
        g.raw('    s_waitcnt vmcnt(0)')
        op('s_branch L_nl%d' % u)
        g.label('L_nw%d' % u)
        g.raw('    v_mov_b32 %s, %d' % (V(vP + 1), SC_NONCE))
        g.raw('    ds_write_b32 %s, %s' % (V(vP + 1), V(vP)))
        g.raw('    s_waitcnt lgkmcnt(0)')
        g.label('L_nx%d' % u)
        g.fence()
    stages[6].hook(4, nonce_share)
    nq = U // 2
    pub = ['v_mov_b32 %s, %d' % (V(vT[1]), SC_NONCE),
           ('ds_read_b32 %s, %s' % (V(vT[2]), V(vT[1])), 'nrd'),
           's_lshl_b32 %s, %s, 10' % (S(S_T0), S(S_WV)),
           'v_add_u32 %s, %s, %s' % (V(vT[3]), S(S_T0), V(vL16)),
           'v_min_u32 %s, %d, %s' % (V(vT[0]), (nq - 1) * 16, V(vT[3])),
           'v_add_u32 %s, %d, %s' % (V(vT[0]), SC_CSW, V(vT[0]))]
    pub += [('ds_read_b128 %s, %s offset:%d' % (V(csl + 4 * k, 4), V(vT[0]), 1792 * k), 'csr0') for k in range(4)]
    pub += [lambda: g.wait(lg='nrd'),
            'v_readfirstlane_b32 %s, %s' % (S(S_NONCE), V(vT[2])),
            ['v_cmp_lt_u32 vcc, 2047, %s' % V(vT[3]), 'v_mov_b32 %s, 0x7fffff00' % V(vT[4]),
             'v_cndmask_b32 %s, %s, %s, vcc' % (V(vT[3]), V(vT[3]), V(vT[4]))],
            's_not_b32 %s, %s' % (S(S_NN), S(S_NONCE)),
            's_lshl_b32 %s, %s, 4' % (S(S_T0), S(S_ROLE)),
            's_lshl_b32 %s, %s, 11' % (S(S_CSO), S(S_T0)),
            's_add_u32 %s, %s, %d' % (S(S_CSO), S(S_CSO), WS_CS),
            's_lshl_b32 %s, %s, 11' % (S(S_T0), S(S_M)),
            's_add_u32 %s, %s, %s' % (S(S_T3), S(S_CSO), S(S_T0)),
            lambda: g.wait(lg='csr0')]
    for r in range(4):
        pub += ['v_add_f32 %s, %s, %s' % (V(csl + r), V(csl + r), V(csl + 4 + r)),
                'v_add_f32 %s, %s, %s' % (V(csl + 8 + r), V(csl + 8 + r), V(csl + 12 + r))]
    pub += ['v_add_f32 %s, %s, %s' % (V(csl + r), V(csl + r), V(csl + 8 + r)) for r in range(4)]
    pub += [('buffer_store_dwordx4 %s, %s, %s, %s offen sc1' % (V(csl, 4), V(vT[3]), S(SRD_WS, 4), S(S_T3)), 'css')]
    pub += ['s_lshl_b32 %s, %s, 4' % (S(S_T0), S(S_M)),
            's_add_u32 %s, %s, %s' % (S(S_T0), S(S_T0), S(S_ROLE)),
            's_lshl_b32 %s, %s, 4' % (S(S_T0), S(S_T0)),
            's_add_u32 %s, %s, %s' % (S(S_T0), S(S_T0), S(S_WV)),
            's_lshl_b32 %s, %s, 7' % (S(S_T0), S(S_T0)),
            's_add_u32 %s, %s, %d' % (S(S_FLAGOWN), S(S_T0), WS_FLAG)]
    stages[9].on_barrier.append(lambda: pipe.side(pub))
    stages[12].hook(0, lambda: pipe.side([lambda: g.wait(vm='css')] + flag_store_code(vP, vZero, S_FLAGOWN, 1, 8 * 128)))
    vPO = csa
    cons = ['s_lshl_b32 %s, %s, 5' % (S(S_T0), S(S_WV)),
            's_add_u32 %s, %s, %s' % (S(S_T0), S(S_T0), S(S_ROLE)),
            's_lshl_b32 %s, %s, 11' % (S(S_T0), S(S_T0)),
            's_add_u32 %s, %s, %d' % (S(S_FLAGCS), S(S_T0), WS_FLAG + 8 * 128),
            'v_and_b32 %s, 1, %s' % (V(vT[0]), V(vL)),
            'v_bfe_u32 %s, %s, 1, 1' % (V(vT[1]), V(vL)),
            'v_lshlrev_b32 %s, 7, %s' % (V(vT[0]), V(vT[0])),
            'v_lshl_add_u32 %s, %s, 15, %s' % (V(vPO), V(vT[1]), V(vT[0])),
            lambda: poll_issue(g, vP, vPO, S_FLAGCS)]
    stages[14].hook(0, lambda: pipe.side(cons))

    def cons2():
        pipe.flush_side()
        poll_check(g, vP, vPO, S_FLAGCS, 1)
        op('s_lshl_b32 %s, %s, 12' % (S(S_T0), S(S_WV)))
        op('s_add_u32 %s, %s, %s' % (S(S_T3), S(S_CSO), S(S_T0)))
        for k in range(4):
            op('buffer_load_dwordx4 %s, %s, %s, %s offen offset:%d sc1' % (V(csl + 4 * k, 4), V(vL16), S(SRD_WS, 4), S(S_T3), 1024 * k), 'csg')
    stages[15].hook(4, cons2)
    fin = [lambda: g.wait(vm='csg')]
    fin += ['v_add_f32 %s, %s, %s' % (V(csl + r), V(csl + r), V(csl + 8 + r)) for r in range(8)]
    fin += [('ds_write_b128 %s, %s offset:%d' % (V(vXS), V(csl + 4 * k, 4), 16384 + 1024 * k), 'pub') for k in range(2)]
    st_pub = []
    for pat in ('quad_perm:[1,0,3,2]', 'quad_perm:[2,3,0,1]', 'row_half_mirror'):
        for r in range(4):
            st_pub.append('v_add_f32_dpp %s, %s, %s %s row_mask:0xf bank_mask:0xf' % (V(stat + r), V(stat + r), V(stat + r), pat))
    st_pub += ['s_lshl_b32 %s, %s, 7' % (S(S_T0), S(S_WV)),
               's_add_u32 %s, %s, %d' % (S(S_T0), S(S_T0), SC_STAT),
               'v_and_b32 %s, 0x38, %s' % (V(vT[0]), V(vL)),
               'v_add_u32 %s, %s, %s' % (V(vT[0]), S(S_T0), V(vT[0])),
               ('ds_write_b64 %s, %s' % (V(vT[0]), V(stat, 2)), 'pub'),
               ('ds_write_b64 %s, %s offset:64' % (V(vT[0]), V(stat + 2, 2)), 'pub')]
    stages[16].hook(2 * nt - 3, lambda: pipe.side(fin))

    def publish():
        pipe.flush_side()
        pipe.flush_units()
        pipe.side(st_pub)
    stages[17].hook(0, publish)
    stages[0].hook(0, lambda: stamp(g, cfg, ctx, 10))
    stages[9].hook(0, lambda: stamp(g, cfg, ctx, 11))

    def corr_read(csr, st2):
        c = ['v_and_b32 %s, 31, %s' % (V(vT[1]), V(vL)),
             'v_lshrrev_b32 %s, 5, %s' % (V(vT[0]), V(vL)),
             'v_lshlrev_b32 %s, 13, %s' % (V(vT[0]), V(vT[0])),
             'v_lshl_add_u32 %s, %s, 2, %s' % (V(vT[0]), V(vT[1]), V(vT[0])),
             's_mul_i32 %s, %s, %d' % (S(S_T0), S(S_CH), U * 4),
             's_add_u32 %s, %s, %d' % (S(S_T0), S(S_T0), XRING + 16384),
             'v_add_u32 %s, %s, %s' % (V(vT[0]), S(S_T0), V(vT[0])),
             's_lshl_b32 %s, %s, 8' % (S(S_T0), S(S_RG)),
             's_add_u32 %s, %s, %d' % (S(S_T0), S(S_T0), SC_STAT),
             'v_lshlrev_b32 %s, 3, %s' % (V(vT[1]), V(vT[1])),
             'v_add_u32 %s, %s, %s' % (V(vT[1]), S(S_T0), V(vT[1])),
             ('ds_read_b64 %s, %s' % (V(st2, 2), V(vT[1])), 'crd')]
        for t in range(nt):
            for k in range(4):
                c.append(('ds_read_b32 %s, %s offset:%d' % (V(csr + 4 * t + k), V(vT[0]), 2048 * k + 128 * t), 'crd2'))
        return c

    def csum(csr):
        c = [lambda: g.wait(lg='crd2')]
        for t in range(nt):
            r = csr + 4 * t
            c += ['v_add_f32 %s, %s, %s' % (V(r), V(r), V(r + 1)),
                  'v_add_f32 %s, %s, %s' % (V(r + 2), V(r + 2), V(r + 3)),
                  'v_add_f32 %s, %s, %s' % (V(r), V(r), V(r + 2))]
        return c
    return stages, corr_read, csum


def early_loads(g, cfg, ctx):
    vL, vT = ctx['vL'], ctx['vT']
    if cfg.xpf:
        emit(g, ['s_lshl_b32 %s, %s, 4' % (S(S_T0), S(S_M)),
                 's_add_u32 %s, %s, %s' % (S(S_T0), S(S_T0), S(S_ROLE)),
                 's_lshl_b32 %s, %s, 3' % (S(S_T0), S(S_T0)),
                 's_add_u32 %s, %s, %s' % (S(S_T0), S(S_T0), S(S_WV)),
                 's_mul_i32 %s, %s, 1152' % (S(S_T0), S(S_T0)),
                 'v_min_u32 %s, 8, %s' % (V(vT[0]), V(vL)),
                 'v_lshlrev_b32 %s, 7, %s' % (V(vT[0]), V(vT[0])),
                 ('buffer_load_dword %s, %s, %s, %s offen' % (V(vT[5]), V(vT[0]), S(SRD_X, 4), S(S_T0)), 'pf')])
    emit(g, ctx['cs_early'])


def pxw_code():
    return ['s_mul_i32 %s, %s, 48' % (S(S_T0), S(S_M)),
            's_add_u32 %s, %s, %s' % (S(S_T0), S(S_T0), S(S_ROLE)),
            's_lshl_b32 %s, %s, 2' % (S(S_T0), S(S_T0)),
            's_add_u32 %s, %s, %s' % (S(S_T0), S(S_T0), S(S_RG)),
            's_lshl_b32 %s, %s, 1' % (S(S_T0), S(S_T0)),
            's_add_u32 %s, %s, %s' % (S(S_T0), S(S_T0), S(S_CH)),
            's_mul_i32 %s, %s, 6144' % (S(S_PXW), S(S_T0))]


def gen_role_F(g, va, ctx, xdma, common_late, cfg):
    op = g.op
    vL, vT, vXD = ctx['vL'], ctx['vT'], ctx['vXD']
    R, SLOT = 5, 24576
    assert WS_PX == 0
    op('s_mul_i32 %s, %s, 3' % (S(S_ROLE), S(S_S)))
    op('s_add_u32 %s, %s, %s' % (S(S_ROLE), S(S_ROLE), S(S_R)))
    op('s_mul_i32 %s, %s, 3072' % (S(S_LDSW), S(S_WV)))
    vW1 = [va.alloc('w1d%d' % i) for i in range(3)]
    op('s_mul_i32 %s, %s, 9216' % (S(S_T0), S(S_T3)))
    op('s_mul_i32 %s, %s, 384' % (S(S_T1), S(S_CH)))
    op('s_mul_i32 %s, %s, 768' % (S(S_T2), S(S_ROLE)))
    op('s_add_u32 %s, %s, %s' % (S(S_T2), S(S_T2), S(S_T1)))
    op('s_add_u32 %s, %s, %s' % (S(S_T0), S(S_T0), S(S_T2)))
    for i in range(3):
        emit(g, divmod_code(vL, i, 24, 2731, vT[0], vT[1], vT[2]))
        op('v_bfe_u32 %s, %s, 1, 1' % (V(vT[2]), V(vT[0])))
        op('v_lshlrev_b32 %s, 2, %s' % (V(vT[2]), V(vT[2])))
        op('v_xor_b32 %s, %s, %s' % (V(vT[1]), V(vT[1]), V(vT[2])))
        op('v_and_b32 %s, 4, %s' % (V(vT[2]), V(vT[0])))
        op('v_add_u32 %s, %s, %s' % (V(vT[0]), V(vT[0]), V(vT[2])))
        op('v_mul_u32_u24 %s, 9216, %s' % (V(vT[0]), V(vT[0])))
        op('v_lshl_add_u32 %s, %s, 4, %s' % (V(vT[0]), V(vT[1]), V(vT[0])))
        op('v_add_u32 %s, %s, %s' % (V(vW1[i]), S(S_T0), V(vT[0])))
    g.wait(lg='smem')
    stamp(g, cfg, ctx, 60)
    emit(g, srd_code(SRD_X, S_KA, 2048 * 1152))
    emit(g, srd_code(SRD_W, S_KA + 8, 576 * 9216))

    def w1dma(s):
        return w_dma_groups(vW1, SRD_W, ['s_mov_b32 %s, %d' % (S(S_WOFF), s * 32 * 9216)], (s % R) * SLOT, ('W', s))
    FIRST = 2
    emit(g, xdma(0) + w1dma(0))
    stamp(g, cfg, ctx, 61)
    vCO = va.alloc('co')
    op('s_lshl_b32 %s, %s, 2' % (S(S_T0), S(S_M)))
    op('s_add_u32 %s, %s, %s' % (S(S_T0), S(S_T0), S(S_RG)))
    op('s_mul_i32 %s, %s, %d' % (S(S_T0), S(S_T0), 9216))
    op('s_add_u32 %s, %s, %s' % (S(S_T0), S(S_T0), S(S_T2)))
    op('v_min_u32 %s, 47, %s' % (V(vT[0]), V(vL)))
    op('v_lshlrev_b32 %s, 3, %s' % (V(vT[0]), V(vT[0])))
    op('v_add_u32 %s, %s, %s' % (V(vCO), S(S_T0), V(vT[0])))
    common_late()
    vL16, vZero, vXR, vXS = ctx['vL16'], ctx['vZero'], ctx['vXR'], ctx['vXS']
    trb = va.alloc('trb', 4, 2)
    emit(g, lane_tr_code(vL, vT, 384))
    op('s_mul_i32 %s, %s, %d' % (S(S_T0), S(S_CH), 32 * 384))
    op('v_add3_u32 %s, %s, %s, %s' % (V(trb), V(vT[0]), V(vT[1]), S(S_T0)))
    op('v_sub_u32 %s, %s, %s' % (V(vT[0]), V(vT[0]), V(vT[1])))
    op('v_add_u32 %s, %s, %s' % (V(trb + 1), S(S_T0), V(vT[0])))
    op('v_add_u32 %s, %d, %s' % (V(trb + 2), 3 * SLOT, V(trb)))
    op('v_add_u32 %s, %d, %s' % (V(trb + 3), 3 * SLOT, V(trb + 1)))
    stamp(g, cfg, ctx, 62)
    emit(g, w1dma(1) + xdma(1))
    stamp(g, cfg, ctx, 63)

    def baseof(off, par):
        if off >= 3 * SLOT:
            return trb + 2 + par, off - 3 * SLOT
        return trb + par, off
    vW2 = va.alloc('w2d')
    vWO = va.alloc('wod')
    vP = va.alloc('poll', 2, 2)
    vP2 = va.alloc('poll2', 2, 2)
    vRstd = va.alloc('rstd')
    vRO, vOO, vFO, vHX = va.alloc('ro'), va.alloc('oo'), va.alloc('fo'), va.alloc('hx')
    tro = [va.alloc('tro%d' % ss) for ss in range(3)]
    print('F misc regs', va.next)
    ring = va.alloc('ring', 24, 4)
    acc1 = [va.alloc('acc1_%d' % t, 16, 4) for t in range(6)]
    X = va.alloc('X', 96, 4)
    csr, vB1, st2, vVe = X + 32, X + 76, X + 82, X + 84
    vAc, vBc = [X + 64, X + 88], X + 92
    pipe = Pipe(g, ring, 6, cfg)
    stages, corr_read, csum = build_p1(g, pipe, ctx, cfg, R, SLOT, 384, baseof, 6, w1dma, xdma, acc1, X, 192, 9216, vCO, vP, FIRST)

    late = srd_code(SRD_W2, S_KA + 12, 4608 * 1152) + srd_code(SRD_B, S_KA + 10, 4608 * 2) + srd_code(SRD_OUT, S_KA + 16, 2048 * 1152)
    late += ['s_mul_i32 %s, %s, 192' % (S(S_T0), S(S_CH)),
             's_mul_i32 %s, %s, 24' % (S(S_T1), S(S_RG)),
             's_add_u32 %s, %s, %s' % (S(S_T0), S(S_T0), S(S_T1)),
             'v_lshrrev_b32 %s, 3, %s' % (V(vT[0]), V(vL)),
             'v_add_u32 %s, %s, %s' % (V(vT[0]), S(S_T0), V(vT[0])),
             'v_mul_u32_u24 %s, 1152, %s' % (V(vT[0]), V(vT[0])),
             'v_bfe_u32 %s, %s, 4, 1' % (V(vT[1]), V(vL)),
             'v_lshlrev_b32 %s, 2, %s' % (V(vT[1]), V(vT[1])),
             'v_and_b32 %s, 7, %s' % (V(vT[2]), V(vL)),
             'v_xor_b32 %s, %s, %s' % (V(vT[1]), V(vT[1]), V(vT[2])),
             'v_lshl_add_u32 %s, %s, 4, %s' % (V(vW2), V(vT[1]), V(vT[0])),
             's_mul_i32 %s, %s, %d' % (S(S_T0), S(S_S), 144 * 1152),
             's_mul_i32 %s, %s, 384' % (S(S_T1), S(S_R)),
             's_add_u32 %s, %s, %s' % (S(S_T0), S(S_T0), S(S_T1)),
             's_mul_i32 %s, %s, %d' % (S(S_T1), S(S_CH), 96 * 1152),
             's_sub_u32 %s, %s, %s' % (S(S_T0), S(S_T0), S(S_T1)),
             'v_add_u32 %s, %s, %s' % (V(vWO), S(S_T0), V(vW2)),
             's_mov_b32 %s, %s' % (S(S_G[2]), S(S_R)),
             's_add_u32 %s, %s, 1' % (S(S_G[0]), S(S_R)),
             ['s_cmp_eq_u32 %s, 3' % S(S_G[0]), 's_cselect_b32 %s, 0, %s' % (S(S_G[0]), S(S_G[0]))],
             's_add_u32 %s, %s, 1' % (S(S_G[1]), S(S_G[0])),
             ['s_cmp_eq_u32 %s, 3' % S(S_G[1]), 's_cselect_b32 %s, 0, %s' % (S(S_G[1]), S(S_G[1]))],
             's_lshl_b32 %s, %s, 4' % (S(S_T0), S(S_M)),
             's_add_u32 %s, %s, %s' % (S(S_T0), S(S_T0), S(S_S)),
             's_add_u32 %s, %s, 12' % (S(S_T0), S(S_T0)),
             's_lshl_b32 %s, %s, 3' % (S(S_T0), S(S_T0)),
             's_add_u32 %s, %s, %s' % (S(S_T0), S(S_T0), S(S_RG)),
             's_lshl_b32 %s, %s, 8' % (S(S_T0), S(S_T0)),
             's_add_u32 %s, %s, %d' % (S(S_FLAGO), S(S_T0), WS_FLAG)]
    late += ['s_mul_i32 %s, %s, %d' % (S(S_W2B), S(S_ROLE), 384 * 1152)] + pxw_code()
    late += ['s_lshl_b32 %s, %s, 12' % (S(S_T0), S(S_CH)),
             's_sub_u32 %s, %s, %s' % (S(S_PXW), S(S_PXW), S(S_T0))]
    late += ['s_mul_i32 %s, %s, 768' % (S(S_T0), S(S_ROLE)),
             's_mul_i32 %s, %s, 384' % (S(S_T1), S(S_CH)),
             's_add_u32 %s, %s, %s' % (S(S_T0), S(S_T0), S(S_T1)),
             'v_and_b32 %s, 31, %s' % (V(vT[0]), V(vL)),
             'v_lshlrev_b32 %s, 1, %s' % (V(vT[0]), V(vT[0]))]
    late += [('buffer_load_ushort %s, %s, %s, %s offen offset:%d' % (V(vB1 + t), V(vT[0]), S(SRD_B, 4), S(S_T0), 64 * t), 'b1')
             for t in range(6)]
    late += ['s_lshl_b32 %s, %s, 3' % (S(S_T0), S(S_ROLE)),
             's_add_u32 %s, %s, %s' % (S(S_T0), S(S_T0), S(S_WV)),
             's_mul_i32 %s, %s, 2731' % (S(S_T1), S(S_T0)),
             's_lshr_b32 %s, %s, 16' % (S(S_T1), S(S_T1)),
             's_mul_i32 %s, %s, 24' % (S(S_T2), S(S_T1)),
             's_sub_u32 %s, %s, %s' % (S(S_T2), S(S_T0), S(S_T2)),
             's_mul_i32 %s, %s, %d' % (S(S_PXR), S(S_M), 48 * 49152),
             's_mul_i32 %s, %s, 12288' % (S(S_T3), S(S_T1)),
             's_add_u32 %s, %s, %s' % (S(S_PXR), S(S_PXR), S(S_T3)),
             's_lshr_b32 %s, %s, 2' % (S(S_T3), S(S_T2)),
             's_lshl_b32 %s, %s, 11' % (S(S_T0), S(S_T3)),
             's_add_u32 %s, %s, %s' % (S(S_PXR), S(S_PXR), S(S_T0)),
             's_and_b32 %s, %s, 3' % (S(S_T2), S(S_T2)),
             's_lshl_b32 %s, %s, 7' % (S(S_T0), S(S_T2)),
             's_add_u32 %s, %s, %s' % (S(S_PXR), S(S_PXR), S(S_T0)),
             'v_lshrrev_b32 %s, 4, %s' % (V(vT[0]), V(vL)),
             'v_and_b32 %s, 15, %s' % (V(vT[1]), V(vL)),
             'v_lshlrev_b32 %s, 3, %s' % (V(vT[1]), V(vT[1])),
             'v_lshl_add_u32 %s, %s, 9, %s' % (V(vRO), V(vT[0]), V(vT[1])),
             's_lshl_b32 %s, %s, 2' % (S(S_T0), S(S_M)),
             's_add_u32 %s, %s, %s' % (S(S_T0), S(S_T0), S(S_T1)),
             's_lshl_b32 %s, %s, 2' % (S(S_T0), S(S_T0)),
             's_add_u32 %s, %s, %s' % (S(S_T0), S(S_T0), S(S_T2)),
             's_lshl_b32 %s, %s, 3' % (S(S_T0), S(S_T0)),
             'v_bfe_u32 %s, %s, 1, 3' % (V(vT[1]), V(vL)),
             'v_add_u32 %s, %s, %s' % (V(vT[1]), S(S_T0), V(vT[1])),
             'v_mul_u32_u24 %s, 1152, %s' % (V(vT[1]), V(vT[1])),
             'v_and_b32 %s, 1, %s' % (V(vT[2]), V(vL)),
             'v_lshlrev_b32 %s, 3, %s' % (V(vT[2]), V(vT[2])),
             'v_lshl_add_u32 %s, %s, 4, %s' % (V(vT[2]), V(vT[0]), V(vT[2])),
             's_lshl_b32 %s, %s, 6' % (S(S_T0), S(S_T3)),
             'v_add3_u32 %s, %s, %s, %s' % (V(vOO), V(vT[1]), V(vT[2]), S(S_T0)),
             's_lshl_b32 %s, %s, 8' % (S(S_T0), S(S_M)),
             's_add_u32 %s, %s, %s' % (S(S_T1), S(S_T0), S(S_T1)),
             's_lshl_b32 %s, %s, 7' % (S(S_T1), S(S_T1)),
             's_add_u32 %s, %s, %d' % (S(S_T1), S(S_T1), WS_FLAG),
             's_and_b32 %s, %s, 1' % (S(S_T0), S(S_T3)),
             's_lshl_b32 %s, %s, 9' % (S(S_T0), S(S_T0)),
             's_add_u32 %s, %s, %s' % (S(S_FLAGR), S(S_T0), S(S_T1)),
             'v_min_u32 %s, 11, %s' % (V(vT[0]), V(vL)),
             'v_lshlrev_b32 %s, 11, %s' % (V(vFO), V(vT[0])),
             's_xor_b32 %s, %s, 4' % (S(S_T0), S(S_WV)),
             's_lshl_b32 %s, %s, 11' % (S(S_T0), S(S_T0)),
             's_add_u32 %s, %s, %d' % (S(S_T0), S(S_T0), XRING),
             'v_add_u32 %s, %s, %s' % (V(vHX), S(S_T0), V(vL16))]
    stages[0].hook(8, lambda: pipe.side(late))
    stages[4].hook(11, pipe.flush_side)

    if cfg.pf:
        vPF = vCO
        pfs = ['s_lshl_b32 %s, %s, 3' % (S(S_T0), S(S_BLK)),
               's_add_u32 %s, %s, %s' % (S(S_T0), S(S_T0), S(S_WV)),
               's_mul_i32 %s, %s, %d' % (S(S_T0), S(S_T0), 6 * 1152),
               's_add_u32 %s, %s, %s' % (S(S_T0), S(S_T0), S(S_W2B)),
               'v_min_u32 %s, 17, %s' % (V(vT[0]), V(vL)),
               'v_mul_u32_u24 %s, 21846, %s' % (V(vT[1]), V(vT[0])),
               'v_lshrrev_b32 %s, 16, %s' % (V(vT[1]), V(vT[1])),
               'v_mul_u32_u24 %s, %d, %s' % (V(vT[1]), 1152 - 384, V(vT[1])),
               'v_lshl_add_u32 %s, %s, 7, %s' % (V(vT[1]), V(vT[0]), V(vT[1])),
               'v_add_u32 %s, %s, %s' % (V(vPF), S(S_T0), V(vT[1]))]
        stages[8].hook(0, lambda: pipe.side(pfs))
        for n in range(3):
            stages[10 + 2 * n].on_barrier.append(lambda n=n: pipe.mem(
                [['s_mul_i32 %s, %s, 384' % (S(S_M0), S(S_G[n])),
                  ('buffer_load_dword %s, %s, %s, %s offen' % (V(vT[5]), V(vPF), S(SRD_W2, 4), S(S_M0)), 'pf')]]))

    tr2 = {(0, 0): vXD[0], (1, 0): vXD[1], (0, 1): vW1[0], (1, 1): vW1[1]}
    c2 = lane_tr_code(vL, vT, 128)
    c2 += ['s_lshl_b32 %s, %s, 6' % (S(S_T0), S(S_CH)),
           'v_xor_b32 %s, %s, %s' % (V(vT[1]), S(S_T0), V(vT[1])),
           'v_add_u32 %s, %s, %s' % (V(vT[0]), V(vT[0]), V(vT[1])),
           's_mul_i32 %s, %s, %d' % (S(S_T0), S(S_CH), 96 * 128),
           's_sub_u32 %s, %d, %s' % (S(S_T1), 96 * 128, S(S_T0)),
           'v_add_u32 %s, %s, %s' % (V(tr2[(0, 0)]), S(S_T0), V(vT[0])),
           'v_add_u32 %s, %s, %s' % (V(tr2[(1, 0)]), S(S_T1), V(vT[0])),
           'v_add_u32 %s, %d, %s' % (V(tr2[(0, 1)]), 2 * SLOT, V(tr2[(0, 0)])),
           'v_add_u32 %s, %d, %s' % (V(tr2[(1, 1)]), 2 * SLOT, V(tr2[(1, 0)])),
           'v_add_u32 %s, %d, %s' % (V(vW1[2]), 4 * SLOT, V(tr2[(0, 0)])),
           'v_add_u32 %s, %d, %s' % (V(vXR[0]), 4 * SLOT, V(tr2[(1, 0)]))]
    tr2[(0, 2)], tr2[(1, 2)] = vW1[2], vXR[0]
    for ss in range(3):
        tr2[(2, ss)] = tro[ss]
        c2.append('v_add_u32 %s, %d, %s' % (V(tr2[(2, ss)]), 2 * SLOT * ss, V(vT[0])))
    stages[16].hook(1, lambda: pipe.side(c2))
    accs = [X, X + 16, X + 32]
    OF = X + 48
    plist = []
    for k in range(9):
        plist += [(k, 0), (k, 1)]
    plist += [(6, 2), (7, 2), (8, 2)]
    NP2 = len(plist)

    def w2dma(q):
        k, hs = plist[q]
        s = 18 + q
        out = []
        for i in range(3):
            grp = []
            if hs < 2:
                if i == 0:
                    grp += ['s_mul_i32 %s, %s, 384' % (S(S_M1), S(S_G[k // 3])),
                            's_add_u32 %s, %s, %s' % (S(S_M1), S(S_M1), S(S_W2B))]
                grp += ['s_add_u32 %s, %s, %d' % (S(S_WOFF), S(S_M1), (96 * hs + 8 * i) * 1152 + 128 * (k % 3)),
                        's_add_u32 m0, %s, %d' % (S(S_LDSW), (s % R) * SLOT + i * 1024),
                        ('buffer_load_dwordx4 %s, %s, %s offen lds' % (V(vW2), S(SRD_W2, 4), S(S_WOFF)), ('W', s))]
            else:
                grp += ['s_mov_b32 %s, %d' % (S(S_WOFF), 8 * i * 1152 + 128 * (k % 3)),
                        's_add_u32 m0, %s, %d' % (S(S_LDSW), (s % R) * SLOT + i * 1024),
                        ('buffer_load_dwordx4 %s, %s, %s offen lds' % (V(vWO), S(SRD_WO, 4), S(S_WOFF)), ('W', s))]
            out.append(grp)
        return out
    p2 = []
    first_of = {}
    for q, (k, hs) in enumerate(plist):
        s = 18 + q
        st = Stage(s, [('W', s)])
        sl = s % R
        first_of.setdefault(k, q)
        if hs < 2:
            for blk in range(2):
                for t in range(3):
                    for e in range(2):
                        off = (sl % 2) * SLOT + (32 * t + 16 * e) * 128
                        st.steps.append(Step(accs[k % 3], acc1[3 * hs + t] + 8 * blk + 4 * e, tr2[(blk, sl // 2)], off, 8 * 128,
                                             first=(hs == 0 and blk == 0 and t == 0 and e == 0)))
        else:
            for ks in range(9):
                off = (sl % 2) * SLOT + 16 * ks * 128
                st.steps.append(Step(accs[k % 3], OF + 4 * ks, tr2[(2, sl // 2)], off, 8 * 128,
                                     pre=((lambda ks=ks: g.wait(vm=('of', ks))) if k == 6 else None)))
        p2.append(st)
    allst = stages + p2
    for j, st in enumerate(allst):
        k = j + R - 2
        if 18 <= k < len(allst):
            st.on_barrier.append(lambda k=k: pipe.mem(w2dma(k - 18)))

    def epi_code(t):
        a = acc1[t]
        c = []
        for d in range(0, 8, 2):
            c += ['v_max_f32 %s, 0, %s' % (V(a + 2 * d + r), V(a + 2 * d + r)) for r in range(4)]
            c += ['v_mul_f32 %s, %s, %s' % (V(a + 2 * d + r), V(a + 2 * d + r), V(a + 2 * d + r)) for r in range(4)]
            c += ['v_cvt_pk_bf16_f32 %s, %s, %s' % (V(a + d + r), V(a + 2 * d + 2 * r), V(a + 2 * d + 2 * r + 1)) for r in range(2)]
        return c

    p2[0].pre_barrier.append(pipe.flush_side)
    p2[0].pre_barrier.append(lambda: g.wait(lg='pub'))

    def after_b18():
        emit(g, corr_read(csr, st2))
        pipe.side(bcorr_code(g, vL, vT, st2, vRstd, vVe, vBc) + csum(csr))
    p2[0].on_barrier.append(after_b18)

    free_slot = (17 % R) * SLOT
    vHW2, vHX2 = vXR[1], vXR[2]

    def transition():
        stamp(g, cfg, ctx, 1)
        pipe.flush_side()
        pipe.flush_mem()
        g.wait(vm='b1')
        for t in range(6):
            emit(g, acorr_code(vT, csr + 4 * t, vB1 + t, vAc[t % 2]))
            op('v_mfma_f32_32x32x16_bf16 %s, %s, %s, %s' % (V(acc1[t], 16), V(vAc[t % 2], 4), V(vBc, 4), V(acc1[t], 16)))
        op('v_mul_f32 %s, %s, %s' % (V(vRstd), V(vRstd), V(vRstd)))
        op('v_add_u32 %s, %d, %s' % (V(vHW2), free_slot - XRING, V(vXS)))
        op('v_add_u32 %s, %d, %s' % (V(vHX2), free_slot - XRING, V(vHX)))
        op('s_barrier')
        for rnd in range(2):
            for i in range(3):
                t = 3 * rnd + i
                emit(g, epi_code(t))
                if rnd == 1 and i == 0:
                    g.wait(lg='hx')
                    op('s_barrier')
                for e in range(2):
                    a, off = (vXS, i * 16384) if i < 2 else (vHW2, 0)
                    op('ds_write_b128 %s, %s offset:%d' % (V(a), V(acc1[t] + 4 * e, 4), off + 1024 * e), 'hw')
            g.wait(lg='hw')
            op('s_barrier')
            for i in range(3):
                t = 3 * rnd + i
                for e in range(2):
                    a, off = (vHX, i * 16384) if i < 2 else (vHX2, 0)
                    op('ds_read_b128 %s, %s offset:%d' % (V(acc1[t] + 8 + 4 * e, 4), V(a), off + 1024 * e), 'hx')
        stamp(g, cfg, ctx, 2)
    stages[17].hook('end', transition)
    p2[0].steps[6].pre = lambda: g.wait(lg='hx')

    def mini_epi(k):
        a0 = accs[k % 3]
        c = ['s_mul_i32 %s, %s, %d' % (S(S_T3), S(S_G[k // 3]), 16 * 49152),
             's_add_u32 %s, %s, %s' % (S(S_T3), S(S_T3), S(S_PXW)),
             's_add_u32 %s, %s, %d' % (S(S_T3), S(S_T3), (k % 3) * 4096)]
        for p in range(2):
            a = a0 + 8 * p
            c += ['v_mul_f32 %s, %s, %s' % (V(a + r), V(a + r), V(vRstd)) for r in range(8)]
            c += ['v_cvt_pk_bf16_f32 %s, %s, %s' % (V(a + d), V(a + 2 * d), V(a + 2 * d + 1)) for d in range(4)]
            c += ['v_permlane32_swap_b32 %s, %s' % (V(a), V(a + 2)),
                  'v_permlane32_swap_b32 %s, %s' % (V(a + 1), V(a + 3)),
                  ('buffer_store_dwordx4 %s, %s, %s, %s offen offset:%d sc1' % (V(a, 4), V(vL16), S(SRD_WS, 4), S(S_T3), p * 1024), ('pst', k))]
        return c
    for k in range(6):
        q = 2 * k + 2
        p2[q].hook(2, lambda k=k: pipe.side(mini_epi(k)))
        p2[q + 1].hook(11, pipe.flush_side)
    p2[19].hook(2, lambda: pipe.side(mini_epi(6)))
    p2[20].hook(2, lambda: pipe.side(mini_epi(7)))
    for z in range(2):
        q = 6 * z + 6
        p2[q + 3].hook(1, lambda z=z: pipe.side([lambda: g.wait(vm=('pst', 3 * z + 2))] + flag_store_code(vP2, vZero, S_FLAGOWN, z + 1)))
        p2[q].hook(0, lambda z=z: stamp(g, cfg, ctx, 3 + z))
    assert vXS == vXR[3] + 1
    SUM = [trb, X + 92, vXR[1]]
    LR = X + 48

    def red_loads(base, z, st=S_T3):
        out = []
        for n in range(3):
            r = (n - 1 - z) % 3
            for sp in range(4):
                k = 4 * n + sp
                out.append(['s_add_u32 %s, %s, %d' % (S(st), S(S_PXR), (n * 16 + 3 * sp + r) * 49152),
                            ('buffer_load_dwordx2 %s, %s, %s, %s offen sc1' % (V(base + 2 * k, 2), V(vRO), S(SRD_WS, 4), S(st)), ('r', z, k))])
        return out

    def red_add(base, z, ns):
        c = []
        for n in ns:
            for sp in range(4):
                k = 4 * n + sp
                c.append(lambda k=k: g.wait(vm=('r', z, k)))
                for d in range(2):
                    c += unpack_add(SUM[n] + 2 * d, base + 2 * k + d, vT[0], vT[1], first=(z == 0 and sp == 0))
        return c
    vPO = vCO

    def o_poll():
        op('v_and_b32 %s, 1, %s' % (V(vPO), V(vL)))
        op('v_lshlrev_b32 %s, 7, %s' % (V(vPO), V(vPO)))
        poll_issue(g, vP, vPO, S_FLAGO)
    p2[15].hook(8, o_poll)

    def o_load():
        pipe.flush_side()
        poll_check(g, vP, vPO, S_FLAGO, 1)
        op('s_mul_i32 %s, %s, 36' % (S(S_T0), S(S_M)))
        op('s_mul_i32 %s, %s, 9' % (S(S_T1), S(S_S)))
        op('s_add_u32 %s, %s, %s' % (S(S_T0), S(S_T0), S(S_T1)))
        op('s_lshl_b32 %s, %s, 2' % (S(S_T0), S(S_T0)))
        op('s_add_u32 %s, %s, %s' % (S(S_T0), S(S_T0), S(S_RG)))
        op('s_lshl_b32 %s, %s, 10' % (S(S_T0), S(S_T0)))
        op('s_add_u32 %s, %s, %d' % (S(S_KVR), S(S_T0), WS_O))
        pipe.slow([['s_add_u32 %s, %s, %d' % (S(S_M0), S(S_KVR), ks * 4096),
                    ('buffer_load_dwordx4 %s, %s, %s, %s offen sc1' % (V(OF + 4 * ks, 4), V(vL16), S(SRD_WS, 4), S(S_M0)), ('of', ks))]
                   for ks in range(9)], 1)
    p2[16].hook(4, o_load)
    p2[18].hook(0, pipe.flush_slow)
    stages[13].hook(0, lambda: pipe.side(srd_code(SRD_WO, S_KA + 4, 576 * 1152)))
    p2[11].hook(4, lambda: poll_issue(g, vP, vFO, S_FLAGR))

    def gl0():
        poll_check(g, vP, vFO, S_FLAGR, 1)
        pipe.slow(red_loads(LR, 0, S_M0), 2)
    p2[12].hook(1, gl0)
    p2[14].hook(6, lambda: (pipe.flush_slow(), pipe.side(red_add(LR, 0, [0, 1, 2]))))
    p2[NP2 - 1].hook(0, lambda: poll_issue(g, vP, vFO, S_FLAGR))

    if cfg.prio:
        op('s_cmp_lg_u32 %s, %d' % (S(S_CH), cfg.prio - 1))
        op('s_cbranch_scc1 L_noprio')
        op('s_setprio 1')
        g.label('L_noprio')
    early_loads(g, cfg, ctx)
    stamp(g, cfg, ctx, 0)
    pipe.run(allst)
    stamp(g, cfg, ctx, 5)

    pipe.flush_mem()
    pipe.flush_side()
    emit(g, mini_epi(8))
    stamp(g, cfg, ctx, 6)
    H = acc1[0]
    XB = H
    L1 = H + 12
    L2 = H + 36
    poll_check(g, vP, vFO, S_FLAGR, 2)
    emit(g, red_loads(L1, 1))
    emit(g, srd_code(SRD_B, S_KA + 14, 1152))
    vCB = ring + 1
    op('s_lshl_b32 %s, %s, 3' % (S(S_T0), S(S_ROLE)))
    op('s_add_u32 %s, %s, %s' % (S(S_T0), S(S_T0), S(S_WV)))
    op('s_mul_i32 %s, %s, 2731' % (S(S_T1), S(S_T0)))
    op('s_lshr_b32 %s, %s, 16' % (S(S_T1), S(S_T1)))
    op('s_mul_i32 %s, %s, 24' % (S(S_T1), S(S_T1)))
    op('s_sub_u32 %s, %s, %s' % (S(S_T0), S(S_T0), S(S_T1)))
    op('s_lshr_b32 %s, %s, 2' % (S(S_T0), S(S_T0)))
    op('s_lshl_b32 %s, %s, 6' % (S(S_T0), S(S_T0)))
    op('v_lshrrev_b32 %s, 4, %s' % (V(vT[2]), V(vL)))
    op('v_and_b32 %s, 1, %s' % (V(vT[3]), V(vL)))
    op('v_lshlrev_b32 %s, 3, %s' % (V(vT[3]), V(vT[3])))
    op('v_lshl_add_u32 %s, %s, 4, %s' % (V(vT[3]), V(vT[2]), V(vT[3])))
    op('v_add_u32 %s, %s, %s' % (V(vCB), S(S_T0), V(vT[3])))
    g.wait(vm=('pst', 8))
    emit(g, flag_store_code(vP, vZero, S_FLAGOWN, 3))
    stamp(g, cfg, ctx, 7)
    for n in range(3):
        op('buffer_load_dwordx2 %s, %s, %s, 0 offen offset:%d' % (V(XB + 2 * n, 2), V(vOO), S(SRD_X, 4), 384 * n), 'xb')
        op('buffer_load_dwordx2 %s, %s, %s, 0 offen offset:%d' % (V(XB + 6 + 2 * n, 2), V(vCB), S(SRD_B, 4), 384 * n), 'xb')
    emit(g, red_add(L1, 1, [0, 1, 2]))
    poll_issue(g, vP, vFO, S_FLAGR)
    g.wait(vm='xb')
    for n in range(3):
        for d in range(2):
            emit(g, unpack_add(SUM[n] + 2 * d, XB + 2 * n + d, vT[0], vT[1]))
            emit(g, unpack_add(SUM[n] + 2 * d, XB + 6 + 2 * n + d, vT[0], vT[1]))
    stamp(g, cfg, ctx, 8)
    poll_check(g, vP, vFO, S_FLAGR, 3)
    stamp(g, cfg, ctx, 9)
    emit(g, red_loads(L2, 2))
    for n in range(3):
        emit(g, red_add(L2, 2, [n]))
        for d in range(2):
            op('v_cvt_pk_bf16_f32 %s, %s, %s' % (V(XB + 2 * n + d), V(SUM[n] + 2 * d), V(SUM[n] + 2 * d + 1)))
        op('buffer_store_dwordx2 %s, %s, %s, 0 offen offset:%d' % (V(XB + 2 * n, 2), V(vOO), S(SRD_OUT, 4), 384 * n))
    store_stamps(g, cfg, ctx)
    op('s_endpgm')


def gen_role_A(g, va, ctx, xdma, common_late, cfg):
    op = g.op
    vL, vT, vXD = ctx['vL'], ctx['vT'], ctx['vXD']
    R, SLOT, PITCH = 4, 28672, 448
    if cfg.p1only:
        op('s_endpgm')
        return
    op('s_add_u32 %s, %s, 12' % (S(S_ROLE), S(S_S)))
    op('s_mul_i32 %s, %s, 3584' % (S(S_LDSW), S(S_WV)))
    vW1 = [va.alloc('aw1d%d' % i) for i in range(4)]
    vCO = va.alloc('aco')
    op('s_mul_i32 %s, %s, 3456' % (S(S_T0), S(S_T3)))
    op('s_mul_i32 %s, %s, 288' % (S(S_T2), S(S_S)))
    op('s_add_u32 %s, %s, %s' % (S(S_T0), S(S_T0), S(S_T2)))
    op('s_mul_i32 %s, %s, 28' % (S(S_T1), S(S_CH)))
    op('v_mov_b32 %s, 2016' % V(vT[3]))
    op('v_mov_b32 %s, -576' % V(vT[4]))

    def colbyte(vu):
        op('v_min_u32 %s, 53, %s' % (V(vu), V(vu)))
        op('v_mov_b32 %s, 1152' % V(vT[2]))
        op('v_cmp_lt_u32 vcc, 17, %s' % V(vu))
        op('v_cndmask_b32 %s, %s, %s, vcc' % (V(vT[2]), V(vT[2]), V(vT[3])))
        op('v_cmp_lt_u32 vcc, 35, %s' % V(vu))
        op('v_cndmask_b32 %s, %s, %s, vcc' % (V(vT[2]), V(vT[2]), V(vT[4])))
        op('v_lshl_add_u32 %s, %s, 4, %s' % (V(vu), V(vu), V(vT[2])))
    for i in range(4):
        emit(g, divmod_code(vL, i, 28, 2341, vT[0], vT[1], vT[2], clamp=(223 if i == 3 else None)))
        op('v_add_u32 %s, %s, %s' % (V(vT[1]), S(S_T1), V(vT[1])))
        colbyte(vT[1])
        op('v_and_b32 %s, 4, %s' % (V(vT[2]), V(vT[0])))
        op('v_add_u32 %s, %s, %s' % (V(vT[0]), V(vT[0]), V(vT[2])))
        op('v_mul_u32_u24 %s, 3456, %s' % (V(vT[0]), V(vT[0])))
        op('v_add3_u32 %s, %s, %s, %s' % (V(vW1[i]), V(vT[0]), V(vT[1]), S(S_T0)))
    g.wait(lg='smem')
    emit(g, srd_code(SRD_X, S_KA, 2048 * 1152))
    emit(g, srd_code(SRD_W, S_KA + 2, 576 * 3456))

    def w1dma(s):
        return w_dma_groups(vW1, SRD_W, ['s_mov_b32 %s, %d' % (S(S_WOFF), s * 32 * 3456)], (s % R) * SLOT, ('W', s), half_last=True)
    FIRST = 2
    emit(g, xdma(0) + w1dma(0))
    op('v_lshrrev_b32 %s, 1, %s' % (V(vT[1]), V(vL)))
    op('v_min_u32 %s, 27, %s' % (V(vT[1]), V(vT[1])))
    op('v_add_u32 %s, %s, %s' % (V(vT[1]), S(S_T1), V(vT[1])))
    colbyte(vT[1])
    op('v_and_b32 %s, 1, %s' % (V(vT[0]), V(vL)))
    op('v_lshl_add_u32 %s, %s, 3, %s' % (V(vT[1]), V(vT[0]), V(vT[1])))
    op('s_lshl_b32 %s, %s, 2' % (S(S_T0), S(S_M)))
    op('s_add_u32 %s, %s, %s' % (S(S_T0), S(S_T0), S(S_RG)))
    op('s_mul_i32 %s, %s, %d' % (S(S_T0), S(S_T0), 3456))
    op('s_add_u32 %s, %s, %s' % (S(S_T0), S(S_T0), S(S_T2)))
    op('v_add_u32 %s, %s, %s' % (V(vCO), S(S_T0), V(vT[1])))
    common_late()
    vL16, vZero, vXR, vXS = ctx['vL16'], ctx['vZero'], ctx['vXR'], ctx['vXS']
    trb = va.alloc('atrb', 2)
    emit(g, lane_tr_code(vL, vT, PITCH)[:8])
    op('s_mul_i32 %s, %s, %d' % (S(S_T0), S(S_CH), 32 * PITCH))
    op('v_add_u32 %s, %s, %s' % (V(trb), S(S_T0), V(vT[0])))
    op('v_add_u32 %s, %d, %s' % (V(trb + 1), 2 * SLOT, V(trb)))
    emit(g, w1dma(1) + xdma(1))

    def baseof(off, par):
        if off >= 2 * SLOT:
            return trb + 1, off - 2 * SLOT
        return trb, off
    vP = va.alloc('apoll', 2, 2)
    vRstd = va.alloc('arstd')
    vA8, vA12, vQ8, vQ12 = [va.alloc('awr%d' % i) for i in range(4)]
    ring = va.alloc('aring', 28, 4)
    X = va.alloc('aX', 80, 4)
    acc1 = [va.alloc('aacc1_%d' % t, 16, 4) for t in range(7)]
    csr, st2, vVe = X + 32, X + 60, X + 62
    vAc, vBc = [X + 64, X + 68], X + 76
    pipe = Pipe(g, ring, 7, cfg)
    stages, corr_read, csum = build_p1(g, pipe, ctx, cfg, R, SLOT, PITCH, baseof, 7, w1dma, xdma, acc1, X, 224, 3456, vCO, vP, FIRST)
    P = 328
    KB, VB, QB = 0, 144 * P, 288 * P
    late = ['s_mov_b32 %s, %s' % (S(S_BLK), S(S_WV)),
             ['s_cmp_eq_u32 %s, 0' % S(S_WV), 's_cselect_b32 %s, 3, %s' % (S(S_BLK), S(S_BLK))],
             ['s_cmp_eq_u32 %s, 3' % S(S_WV), 's_cselect_b32 %s, 0, %s' % (S(S_BLK), S(S_BLK))],
             's_lshl_b32 %s, %s, 2' % (S(S_T0), S(S_M)),
             's_add_u32 %s, %s, %s' % (S(S_T0), S(S_T0), S(S_S)),
             's_lshl_b32 %s, %s, 15' % (S(S_T0), S(S_T0)),
             's_add_u32 %s, %s, %d' % (S(S_KVW), S(S_T0), WS_KV),
             's_sub_u32 %s, %s, %d' % (S(S_KVR), S(S_KVW), 4 * 32768),
             's_mul_i32 %s, %s, %d' % (S(S_T0), S(S_CH), 19 * 1024),
             's_add_u32 %s, %s, %s' % (S(S_KVW), S(S_KVW), S(S_T0)),
             'v_and_b32 %s, 31, %s' % (V(vT[0]), V(vL)),
             's_lshl_b32 %s, %s, 5' % (S(S_T0), S(S_RG)),
             'v_add_u32 %s, %s, %s' % (V(vT[0]), S(S_T0), V(vT[0])),
             'v_mul_u32_u24 %s, %d, %s' % (V(vT[0]), P, V(vT[0])),
             'v_lshrrev_b32 %s, 5, %s' % (V(vT[1]), V(vL)),
             'v_lshl_add_u32 %s, %s, 3, %s' % (V(vA8), V(vT[1]), V(vT[0])),
             'v_lshl_add_u32 %s, %s, 2, %s' % (V(vA12), V(vT[1]), V(vA8)),
             'v_add_u32 %s, %d, %s' % (V(vQ8), QB, V(vA8)),
             'v_add_u32 %s, %d, %s' % (V(vQ12), QB, V(vA12))]
    stages[0].hook(8, lambda: pipe.side(late))
    stages[4].hook(11, pipe.flush_side)

    def midlast():
        pipe.flush_side()
        g.wait(lg='pub')
        op('s_barrier')
        emit(g, corr_read(csr, st2))
        pipe.side(bcorr_code(g, vL, vT, st2, vRstd, vVe, vBc) + csum(csr))
    stages[17].hook(8, midlast)
    early_loads(g, cfg, ctx)
    stamp(g, cfg, ctx, 0)
    pipe.run(stages)
    stamp(g, cfg, ctx, 1)
    pipe.flush_side()
    for t in range(7):
        emit(g, acorr_code(vT, csr + 4 * t, None, vAc[t % 2]))
        op('v_mfma_f32_32x32x16_bf16 %s, %s, %s, %s' % (V(acc1[t], 16), V(vAc[t % 2], 4), V(vBc, 4), V(acc1[t], 16)))
    op('v_and_b32 %s, 31, %s' % (V(vT[0]), V(vL)))
    op('s_lshl_b32 %s, %s, 7' % (S(S_T0), S(S_RG)))
    op('s_add_u32 %s, %s, %d' % (S(S_T0), S(S_T0), SC_VE))
    op('v_lshlrev_b32 %s, 2, %s' % (V(vT[0]), V(vT[0])))
    op('v_add_u32 %s, %s, %s' % (V(vT[0]), S(S_T0), V(vT[0])))
    op('ds_write_b32 %s, %s' % (V(vT[0]), V(vVe)), 'vew')
    G = acc1[0]

    def greg(k):
        return G + 4 * (k // 3) + k % 3
    for k in range(56):
        a = G + 2 * k
        op('v_mul_f32 %s, %s, %s' % (V(a), V(a), V(vRstd)))
        op('v_mul_f32 %s, %s, %s' % (V(a + 1), V(a + 1), V(vRstd)))
        op('v_cvt_pk_bf16_f32 %s, %s, %s' % (V(greg(k)), V(a), V(a + 1)))
    op('s_cmp_lg_u32 %s, 3' % S(S_RG))
    g.fence()
    op('s_cbranch_scc1 L_apub_done')
    for gi in range(19):
        op('v_mov_b32 %s, %s' % (V(G + 4 * gi + 3), S(S_NONCE)))
    op('s_mov_b32 exec_lo, 0xffff0000')
    op('s_mov_b32 exec_hi, 0xffff0000')
    for gi in range(19):
        if gi == 6:
            op('s_cmp_eq_u32 %s, 1' % S(S_CH))
            op('s_cbranch_scc1 L_apub_x')
        if gi % 4 == 0:
            op('s_add_u32 %s, %s, %d' % (S(S_T3), S(S_KVW), gi * 1024))
        op('buffer_store_dwordx4 %s, %s, %s, %s offen offset:%d sc1' % (V(G + 4 * gi, 4), V(vL16), S(SRD_WS, 4), S(S_T3), (gi % 4) * 1024), 'gs')
    g.label('L_apub_x')
    op('s_mov_b64 exec, -1')
    g.fence()
    g.label('L_apub_done')
    g.vm.q = []
    g.wait_all(vm=False, lg=True)
    op('s_barrier')

    def ppos(Pi):
        sec, pw = divmod(Pi, 72)
        return sec, (pw // 9) * 40 + (pw % 9) * 4

    def qkv_writes(ch, regof, nk, rowoff, kvonly=False):
        for k in range(nk):
            t, q4, pp = k // 8, (k % 8) // 2, k % 2
            Pi = 112 * ch + 16 * t + 4 * q4 + pp
            if Pi >= 216:
                continue
            sec, o0 = ppos(Pi)
            sec1, o1 = ppos(Pi + 2)
            assert sec == sec1 and o1 - o0 in (8, 12)
            if sec == 2:
                assert not kvonly
                a, off = (vQ8 if o1 - o0 == 8 else vQ12), o0
            else:
                a, off = (vA8 if o1 - o0 == 8 else vA12), (KB if sec == 0 else VB) + rowoff * P + o0
            op('ds_write_b32 %s, %s offset:%d' % (V(a), V(regof(k)), off), 'qkvw')
    op('s_cmp_eq_u32 %s, 1' % S(S_CH))
    g.fence()
    op('s_cbranch_scc1 L_aw1')
    qkv_writes(0, greg, 56, 16)
    g.fence()
    op('s_branch L_aw2')
    g.label('L_aw1')
    qkv_writes(1, greg, 56, 16)
    g.fence()
    g.label('L_aw2')
    g.wait_all(vm=False, lg=True)
    op('s_barrier')
    stamp(g, cfg, ctx, 2)

    op('s_cmp_lg_u32 %s, 3' % S(S_WV))
    g.fence()
    op('s_cbranch_scc1 L_ahalo_done')
    op('s_mov_b32 exec_lo, 0xffff0000')
    op('s_mov_b32 exec_hi, 0xffff0000')
    op('v_subrev_u32 %s, %d, %s' % (V(vA8), 112 * P, V(vA8)))
    op('v_subrev_u32 %s, %d, %s' % (V(vA12), 112 * P, V(vA12)))
    op('s_cmp_eq_u32 %s, 0' % S(S_M))
    g.fence()
    op('s_cbranch_scc1 L_ahalo_zero')
    op('s_mov_b32 %s, 0' % S(S_T2))
    g.label('L_ahalo_poll')
    for gi in range(25):
        if gi % 4 == 0:
            op('s_add_u32 %s, %s, %d' % (S(S_T3), S(S_KVR), gi * 1024))
        op('buffer_load_dwordx4 %s, %s, %s, %s offen offset:%d sc1' % (V(G + 4 * gi, 4), V(vL16), S(SRD_WS, 4), S(S_T3), (gi % 4) * 1024), ('gl', gi))
    op('v_mov_b32 %s, 0' % V(vT[0]))
    for gi in range(25):
        g.wait(vm=('gl', gi))
        op('v_xor_b32 %s, %s, %s' % (V(vT[1]), S(S_NONCE), V(G + 4 * gi + 3)))
        op('v_or_b32 %s, %s, %s' % (V(vT[0]), V(vT[0]), V(vT[1])))
    op('v_cmp_ne_u32 vcc, 0, %s' % V(vT[0]))
    op('s_add_u32 %s, %s, 1' % (S(S_T2), S(S_T2)))
    op('s_cmp_ge_u32 %s, %d' % (S(S_T2), 1 << 18))
    op('s_cbranch_scc1 L_ahalo_wr')
    op('s_cmp_lg_u64 vcc, 0')
    op('s_cbranch_scc1 L_ahalo_poll')
    g.fence()
    op('s_branch L_ahalo_wr')
    g.label('L_ahalo_zero')
    for i in range(100):
        op('v_mov_b32 %s, 0' % V(G + i))
    g.fence()
    g.label('L_ahalo_wr')
    qkv_writes(0, greg, 56, 0, True)
    qkv_writes(1, lambda k: greg(k) + 76, 16, 0, True)
    op('s_mov_b64 exec, -1')
    g.wait_all(vm=True, lg=True)
    g.fence()
    g.label('L_ahalo_done')
    g.vm.q, g.lg.q = [], []
    stamp(g, cfg, ctx, 3)

    kv = acc1[0]
    qv = acc1[0] + 92
    lgt = ring
    oac = ring + 16
    vf = ring + 52
    vKA, vQA, vOA, vS = ring + 70, ring + 71, ring + 72, ring + 73
    vVE = ring + 74
    op('v_and_b32 %s, 7, %s' % (V(vT[0]), V(vL)))
    op('v_bfe_u32 %s, %s, 3, 1' % (V(vT[1]), V(vL)))
    op('v_lshrrev_b32 %s, 4, %s' % (V(vT[2]), V(vL)))
    op('v_lshl_add_u32 %s, %s, 2, %s' % (V(vT[1]), V(vT[2]), V(vT[1])))
    op('s_lshl_b32 %s, %s, 4' % (S(S_T0), S(S_BLK)))
    op('v_add_u32 %s, %s, %s' % (V(vS), S(S_T0), V(vT[1])))
    op('v_mul_u32_u24 %s, %d, %s' % (V(vT[1]), P, V(vS)))
    op('v_mul_u32_u24 %s, 40, %s' % (V(vT[2]), V(vT[0])))
    op('v_add_u32 %s, %s, %s' % (V(vKA), V(vT[1]), V(vT[2])))
    op('v_add_u32 %s, %d, %s' % (V(vQA), QB, V(vKA)))
    op('v_mul_u32_u24 %s, 36, %s' % (V(vT[2]), V(vT[0])))
    op('v_add_u32 %s, %s, %s' % (V(vOA), V(vT[1]), V(vT[2])))
    op('v_add_u32 %s, %d, %s' % (V(vOA), QB, V(vOA)))
    op('v_lshlrev_b32 %s, 2, %s' % (V(vT[1]), V(vS)))
    op('v_add_u32 %s, %d, %s' % (V(vT[1]), SC_VE, V(vT[1])))
    op('ds_read_b32 %s, %s' % (V(vVE), V(vT[1])), 'q')
    op('ds_read_b32 %s, %s offset:8' % (V(vVE + 1), V(vT[1])), 'q')
    for qi in range(2):
        for p in range(5):
            op('ds_read_b64 %s, %s offset:%d' % (V(qv + 10 * qi + 2 * p, 2), V(vQA), qi * 2 * P + 8 * p), 'q')
    NJ = 9
    for j in range(NJ):
        for p in range(5):
            op('ds_read_b64 %s, %s offset:%d' % (V(kv + 10 * j + 2 * p, 2), V(vKA), KB + (18 - 2 * j) * P + 8 * p), ('k', j))
    pairs = []
    for j in range(NJ):
        if j >= 1:
            pairs.append((lgt + (j - 1), qv, j))
        if j < 8:
            pairs.append((lgt + 8 + j, qv + 10, j))
    for r in range(16):
        op('v_mov_b32 %s, 0' % V(lgt + r))
    for j in range(NJ):
        g.wait(lg=('k', j))
        for d in range(9):
            for (lr, qb, jj) in pairs:
                if jj == j:
                    op('v_dot2c_f32_bf16 %s, %s, %s' % (V(lr), V(qb + d), V(kv + 10 * j + d)))
        for p in range(5):
            op('ds_read_b64 %s, %s offset:%d' % (V(kv + 10 * j + 2 * p, 2), V(vKA), VB + (18 - 2 * j) * P + 8 * p), ('v', j))
    op('s_or_b32 %s, %s, %s' % (S(S_T0), S(S_M), S(S_BLK)))
    op('s_cmp_lg_u32 %s, 0' % S(S_T0))
    g.fence()
    op('s_cbranch_scc1 L_anomask')
    op('v_mov_b32 %s, 0xf149f2ca' % V(vT[0]))
    for qi in range(2):
        for w in range(1, 8):
            lim = 2 * w - 2 * qi
            if lim <= 0:
                continue
            op('v_cmp_gt_u32 vcc, %d, %s' % (lim, V(vS)))
            op('v_cndmask_b32 %s, %s, %s, vcc' % (V(lgt + 8 * qi + w), V(lgt + 8 * qi + w), V(vT[0])))
    g.fence()
    g.label('L_anomask')
    op('s_mov_b32 %s, 0x%x' % (S(S_T0), f32(18 ** -0.5 * math.log2(math.e))))
    for qi in range(2):
        L = lgt + 8 * qi
        m_, s_ = vT[0 + 2 * qi], vT[1 + 2 * qi]
        op('v_max3_f32 %s, %s, %s, %s' % (V(m_), V(L), V(L + 1), V(L + 2)))
        op('v_max3_f32 %s, %s, %s, %s' % (V(m_), V(m_), V(L + 3), V(L + 4)))
        op('v_max3_f32 %s, %s, %s, %s' % (V(m_), V(m_), V(L + 5), V(L + 6)))
        op('v_max_f32 %s, %s, %s' % (V(m_), V(m_), V(L + 7)))
        for w in range(8):
            op('v_sub_f32 %s, %s, %s' % (V(L + w), V(L + w), V(m_)))
        for w in range(8):
            op('v_mul_f32 %s, %s, %s' % (V(L + w), S(S_T0), V(L + w)))
        for w in range(8):
            op('v_exp_f32 %s, %s' % (V(L + w), V(L + w)))
        op('v_add_f32 %s, %s, %s' % (V(s_), V(L), V(L + 1)))
        for w in range(2, 8):
            op('v_add_f32 %s, %s, %s' % (V(s_), V(s_), V(L + w)))
        op('v_rcp_f32 %s, %s' % (V(s_), V(s_)))
        op('v_mul_f32 %s, %s, %s' % (V(s_), V(s_), V(vVE + qi)))
        for w in range(8):
            op('v_mul_f32 %s, %s, %s' % (V(L + w), V(L + w), V(s_)))
    for j in range(NJ):
        g.wait(lg=('v', j))
        for d in range(9):
            op('v_lshlrev_b32 %s, 16, %s' % (V(vf + 2 * d), V(kv + 10 * j + d)))
            op('v_and_b32 %s, %s, %s' % (V(vf + 2 * d + 1), S(S_MASK), V(kv + 10 * j + d)))
        for (lr, qb, jj) in pairs:
            if jj != j:
                continue
            qi = 0 if qb == qv else 1
            first = (j == 1) if qi == 0 else (j == 0)
            for d in range(18):
                if first:
                    op('v_mul_f32 %s, %s, %s' % (V(oac + 18 * qi + d), V(lr), V(vf + d)))
                else:
                    op('v_fmac_f32 %s, %s, %s' % (V(oac + 18 * qi + d), V(lr), V(vf + d)))
    for qi in range(2):
        for d in range(9):
            op('v_cvt_pk_bf16_f32 %s, %s, %s' % (V(oac + 18 * qi + d), V(oac + 18 * qi + 2 * d), V(oac + 18 * qi + 2 * d + 1)))
            op('ds_write_b32 %s, %s offset:%d' % (V(vOA), V(oac + 18 * qi + d), qi * 2 * P + 4 * d), 'ow')
    stamp(g, cfg, ctx, 4)

    op('v_and_b32 %s, 15, %s' % (V(vT[0]), V(vL)))
    op('v_bfe_u32 %s, %s, 4, 1' % (V(vT[1]), V(vL)))
    op('v_lshrrev_b32 %s, 5, %s' % (V(vT[2]), V(vL)))
    op('s_lshl_b32 %s, %s, 4' % (S(S_T0), S(S_BLK)))
    op('v_add_u32 %s, %s, %s' % (V(vT[3]), S(S_T0), V(vT[0])))
    op('v_mul_u32_u24 %s, %d, %s' % (V(vT[3]), P, V(vT[3])))
    op('v_lshl_add_u32 %s, %s, 3, %s' % (V(vT[3]), V(vT[1]), V(vT[3])))
    op('v_lshl_add_u32 %s, %s, 5, %s' % (V(vT[3]), V(vT[2]), V(vT[3])))
    op('v_add_u32 %s, %d, %s' % (V(vT[3]), QB, V(vT[3])))
    op('s_and_b32 %s, %s, 1' % (S(S_T0), S(S_BLK)))
    op('s_lshl_b32 %s, %s, 8' % (S(S_T0), S(S_T0)))
    op('v_lshlrev_b32 %s, 4, %s' % (V(vT[0]), V(vT[0])))
    op('v_lshl_add_u32 %s, %s, 9, %s' % (V(vT[0]), V(vT[1]), V(vT[0])))
    op('v_lshl_add_u32 %s, %s, 12, %s' % (V(vT[0]), V(vT[2]), V(vT[0])))
    op('v_add_u32 %s, %s, %s' % (V(vT[0]), S(S_T0), V(vT[0])))
    op('s_mul_i32 %s, %s, 36' % (S(S_T0), S(S_M)))
    op('s_mul_i32 %s, %s, 9' % (S(S_T1), S(S_S)))
    op('s_add_u32 %s, %s, %s' % (S(S_T0), S(S_T0), S(S_T1)))
    op('s_lshl_b32 %s, %s, 2' % (S(S_T0), S(S_T0)))
    op('s_lshr_b32 %s, %s, 1' % (S(S_T1), S(S_BLK)))
    op('s_add_u32 %s, %s, %s' % (S(S_T0), S(S_T0), S(S_T1)))
    op('s_lshl_b32 %s, %s, 10' % (S(S_T0), S(S_T0)))
    op('s_add_u32 %s, %s, %d' % (S(S_T1), S(S_T0), WS_O))
    op('s_sub_u32 %s, %s, %s' % (S(S_T0), S(S_BLK), S(S_WV)))
    op('s_lshl_b32 %s, %s, 7' % (S(S_T0), S(S_T0)))
    op('s_add_u32 %s, %s, %s' % (S(S_FLAGOWN), S(S_FLAGOWN), S(S_T0)))
    g.wait_all(vm=False, lg=True)
    for i in range(5):
        for h in range(2):
            op('ds_read_b64 %s, %s offset:%d' % (V(kv + 4 * i + 2 * h, 2), V(vT[3]), 64 * i + 16 * h), ('or', i))
    for i in range(5):
        g.wait(lg=('or', i))
        op('s_add_u32 %s, %s, %d' % (S(S_T3), S(S_T1), i * 8192))
        if i == 4:
            op('s_mov_b32 exec_hi, 0')
        op('buffer_store_dwordx4 %s, %s, %s, %s offen sc1' % (V(kv + 4 * i, 4), V(vT[0]), S(SRD_WS, 4), S(S_T3)), 'os')
        if i == 4:
            op('s_mov_b32 exec_hi, -1')
    g.wait_all(vm=True, lg=True)
    emit(g, flag_store_code(vP, vZero, S_FLAGOWN, 1))
    stamp(g, cfg, ctx, 5)
    store_stamps(g, cfg, ctx)
    op('s_endpgm')


def build(cfg, path):
    main_txt, main_desc = gen_main(cfg)
    hdr = open('cdna_kernels/%s.s.ref' % NAME).read().split('; Override launch')[0]
    out = hdr
    out += '; @launch grid=(256,1,1) block=(512,1,1) lds=%d\n' % LDS_BYTES
    out += '.amdgcn_target "amdgcn-amd-amdhsa--gfx950"\n.text\n'
    out += main_txt
    out += '.section .rodata,"a"\n' + main_desc + '\n'
    open(path, 'w').write(out)


if __name__ == '__main__':
    cfg = Cfg()
    path = 'cdna_kernels/%s.s' % NAME
    for a in sys.argv[1:]:
        if a.startswith('out='):
            path = a[4:]
        elif '=' in a:
            k, v = a.split('=')
            setattr(cfg, k, int(v))
        else:
            setattr(cfg, a, True)
    build(cfg, path)
    print('wrote', path)
```

```python
import sys, os, struct, math
from collections import deque
sys.path.insert(0, os.path.dirname(os.path.abspath(__file__)))
from asmgen import Gen, RegAlloc, V, S

NAME = 'parallel_sum__sliding_local_dilated__dense_activation_squared_relu__prompt'

WS_PX = 0
WS_KV = WS_PX + 16 * 3 * 4 * 48 * 1024
WS_O = WS_KV + 64 * 32768
WS_CS = WS_O + 16 * 144 * 1024
WS_ST = WS_CS + 256 * 2048
WS_FLAG = WS_ST + 2048 * 16
WS_DBG = WS_FLAG + 256 * 16 * 128
WS_SIZE = WS_DBG + (2 << 20)

LDS_BYTES = 163840
XRING = 122880
SCRATCH = 155648
SC_NONCE = SCRATCH
SC_CSW = SCRATCH + 1024
SC_STAT = XRING + 16384
SC_VE = SCRATCH + 512


def f32(x):
    return struct.unpack('<I', struct.pack('<f', x))[0]


class Cfg:
    stamps = False
    budget = 6
    memgap = 2
    pf = 1
    prio = 0
    fine = False
    csearly = 2
    csgap = 4
    corrpos = 5
    pubst = 8
    nofast = False
    touch = 0
    cpf = 1
    xpf = 1
    p1only = False


def kernel_desc(name, vgpr, sgpr):
    acc = (vgpr + 3) // 4 * 4
    return '\n'.join([
        '.p2align 6',
        '.amdhsa_kernel %s' % name,
        '  .amdhsa_next_free_vgpr %d' % vgpr,
        '  .amdhsa_next_free_sgpr %d' % sgpr,
        '  .amdhsa_accum_offset %d' % acc,
        '  .amdhsa_group_segment_fixed_size 0',
        '  .amdhsa_kernarg_size 88',
        '  .amdhsa_user_sgpr_count 2',
        '  .amdhsa_user_sgpr_kernarg_segment_ptr 1',
        '  .amdhsa_system_sgpr_workgroup_id_x 1',
        '.end_amdhsa_kernel'])


SRD_X, SRD_W, SRD_W2, SRD_WS, SRD_B, SRD_DBG = 4, 8, 12, 16, 20, 24
S_M, S_S, S_R, S_WV, S_RG, S_CH = 28, 29, 30, 31, 32, 33
S_T0, S_T1, S_T2, S_T3 = 34, 35, 36, 37
S_WOFF, S_XOFF, S_LDSW, S_LDSX = 38, 39, 40, 41
S_PXW, S_PXR, S_KVW, S_KVR = 42, 43, 44, 45
S_NONCE, S_NN = 46, 47
S_ROLE, S_W2B = 48, 49
S_PERM, S_MYN, S_MASK, S_BLK = 50, 51, 52, 53
S_M0, S_M1 = 54, 55
S_KA = 56
SRD_OUT = 80
S_FLAGOWN, S_FLAGR, S_CSO, S_FLAGCS = 84, 85, 86, 87
S_FLAGO = 88
S_WOFF2 = 89
S_ROW = 79
S_XCC, S_SAME, S_FLAGP = 56, 57, 58
S_G = [76, 77, 78]
SRD_WO = 24
S_STAMP = 90
S_TS = 92
NSGPR = 96
S_TS2 = 94

_uid = [0]


def uid():
    _uid[0] += 1
    return _uid[0]


def stamp(g, cfg, ctx, idx):
    if not cfg.stamps:
        return
    g.op('s_memtime %s' % S(S_TS, 2))
    g.wait(lg='smem')
    g.op('s_sub_u32 %s, %s, %s' % (S(S_TS), S(S_TS), S(S_STAMP)))
    g.op('v_writelane_b32 %s, %s, %d' % (V(ctx['vst']), S(S_TS), idx))


def store_stamps(g, cfg, ctx):
    if not cfg.stamps:
        return
    op = g.op
    g.wait_all()
    stamp(g, cfg, ctx, 13)
    op('s_memrealtime %s' % S(S_TS, 2))
    g.wait(lg='smem')
    op('v_writelane_b32 %s, %s, 15' % (V(ctx['vst']), S(S_TS)))
    op('v_writelane_b32 %s, %s, 14' % (V(ctx['vst']), S(S_MYN)))
    op('s_lshl_b32 %s, s2, 3' % S(S_T0))
    op('s_add_u32 %s, %s, %s' % (S(S_T0), S(S_T0), S(S_WV)))
    op('s_lshl_b32 %s, %s, 8' % (S(S_T0), S(S_T0)))
    op('s_add_u32 %s, %s, %d' % (S(S_T0), S(S_T0), WS_DBG))
    vt = ctx['vT'][0]
    op('v_lshlrev_b32 %s, 2, %s' % (V(vt), V(ctx['vL'])))
    op('buffer_store_dword %s, %s, %s, %s offen' % (V(ctx['vst']), V(vt), S(SRD_WS, 4), S(S_T0)))


def srd_code(d, ka, size):
    return ['s_mov_b32 %s, %s' % (S(d), S(ka)),
            's_mov_b32 %s, %s' % (S(d + 1), S(ka + 1)),
            's_mov_b32 %s, %d' % (S(d + 2), size),
            's_mov_b32 %s, 0x20000' % S(d + 3)]


def emit(g, code):
    for x in code:
        if callable(x):
            x()
        elif isinstance(x, list):
            emit(g, x)
        elif isinstance(x, tuple):
            g.op(x[0], x[1])
        else:
            g.op(x)


class Stage:
    def __init__(self, idx, waittags):
        self.idx, self.waittags = idx, waittags
        self.steps = []
        self.on_barrier = []
        self.pre_barrier = []
        self.hooks = {}

    def hook(self, n, f):
        self.hooks.setdefault(n, []).append(f)


class Step:
    def __init__(self, acc, b, addr, off, hstride, first=False, pre=None):
        self.acc, self.b, self.addr, self.off, self.hstride, self.first, self.pre = acc, b, addr, off, hstride, first, pre


class Mark:
    def __init__(self, name):
        self.name = name


class Unit:
    def __init__(self, ready, deadline, read, ops, tag):
        self.ready, self.deadline, self.read, self.ops, self.tag = ready, deadline, read, ops, tag
        self.code = None


class Pipe:
    def __init__(self, g, ring, rs, cfg):
        self.g, self.ring, self.rs, self.cfg = g, ring, rs, cfg
        self.qm, self.qa, self.ql, self.qs = deque(), deque(), deque(), deque()
        self.slowgap, self.last_slow = 6, -100
        self.budget, self.ubudget, self.done = cfg.budget, 2, set()
        self.slot, self.last_mem, self.bar = 0, -100, -1
        self.units, self.nread, self.nproc, self.opi, self.utmp = [], 0, 0, 0, None

    def mem(self, groups):
        self.qm.extend(groups)

    def side(self, code):
        self.qa.extend(code)

    def _issue_reads(self):
        while (self.nread < len(self.units) and self.nread - self.nproc < len(self.utmp)
               and self.units[self.nread].ready <= self.bar):
            u = self.units[self.nread]
            u.reg = self.utmp[self.nread % len(self.utmp)]
            self.g.op(u.read(u.reg), u.tag)
            u.slot_issued = self.slot
            self.nread += 1

    def _proc(self, budget, force=False):
        while budget > 0 and self.nproc < self.nread:
            u = self.units[self.nproc]
            if u.code is None:
                if not force and self.slot - u.slot_issued < 2:
                    break
                self.g.wait(lg=u.tag)
                u.code = u.ops(u.reg)
                self.opi = 0
            while budget > 0 and self.opi < len(u.code):
                emit(self.g, u.code[self.opi])
                budget -= len(u.code[self.opi])
                self.opi += 1
            if self.opi == len(u.code):
                self.nproc += 1
                self._issue_reads()
        return budget

    def units_deadline(self, j):
        while True:
            pend = [k for k in range(self.nproc, len(self.units)) if self.units[k].deadline <= j
                    and (k >= self.nread or self.units[k].code is None)]
            if not pend:
                return
            if pend[0] < self.nread:
                last = max(x for x in pend if x < self.nread)
                self.g.wait(lg=self.units[last].tag)
                if all(x < self.nread for x in pend):
                    return
            self._issue_reads()
            self._proc(4, force=True)

    def flush_units(self):
        while self.nproc < len(self.units):
            self._issue_reads()
            assert self.nproc < self.nread
            self._proc(1000, force=True)

    def fill(self):
        self.slot += 1
        if self.qm and self.slot - self.last_mem >= self.cfg.memgap:
            emit(self.g, self.qm.popleft())
            self.last_mem = self.slot
        elif self.qs and self.slot - self.last_slow >= self.slowgap:
            emit(self.g, self.qs.popleft())
            self.last_slow = self.slot
        if self.ql:
            emit(self.g, [self.ql.popleft()])
        b = self.budget
        if self.units:
            self._issue_reads()
            b = b - self.ubudget + self._proc(self.ubudget)
        while self.qa and b > 0:
            x = self.qa.popleft()
            if isinstance(x, Mark):
                self.done.add(x.name)
                continue
            emit(self.g, [x])
            b -= len(x) if isinstance(x, list) else 1

    def flush_mem(self):
        while self.qm:
            emit(self.g, self.qm.popleft())

    def slow(self, groups, gap):
        self.qs.extend(groups)
        self.slowgap = gap

    def flush_slow(self):
        while self.qs:
            emit(self.g, self.qs.popleft())

    def flush_side(self, until=None):
        while self.qa and not (until is not None and until in self.done):
            x = self.qa.popleft()
            if isinstance(x, Mark):
                self.done.add(x.name)
                continue
            emit(self.g, [x])
        assert until is None or until in self.done, until

    def barrier(self, st):
        g = self.g
        self.flush_mem()
        assert not self.ql
        for f in st.pre_barrier:
            f()
        self.units_deadline(st.idx)
        if self.cfg.fine:
            g.op('s_memtime %s' % S(S_TS, 2))
        g.wait(vm=st.waittags)
        g.op('s_barrier')
        if self.cfg.fine:
            g.wait(lg='smem')
            g.op('s_sub_u32 %s, %s, %s' % (S(S_TS), S(S_TS), S(S_STAMP)))
            g.op('v_writelane_b32 v0, %s, %d' % (S(S_TS), 16 + (st.idx if st.idx < 100 else st.idx - 82)))
        self.bar = st.idx
        for f in st.on_barrier:
            f()

    def run(self, stages):
        g = self.g
        seq = [(st, n) for st in stages for n in range(len(st.steps))]
        key = uid()

        def read(k):
            st, n = seq[k]
            if n == 0:
                self.barrier(st)
            sp = st.steps[n]
            r = self.ring + 4 * (k % self.rs)
            for h in range(2):
                g.op('ds_read_b64_tr_b16 %s, %s offset:%d' % (V(r + 2 * h, 2), V(sp.addr), sp.off + h * sp.hstride), ('w', key, k))
        for k in range(self.rs):
            read(k)
        for k, (st, n) in enumerate(seq):
            for f in st.hooks.get(n, []):
                f()
            sp = st.steps[n]
            if sp.pre:
                sp.pre()
            g.wait(lg=('w', key, k))
            c = '0' if sp.first else V(sp.acc, 16)
            g.op('v_mfma_f32_32x32x16_bf16 %s, %s, %s, %s' % (V(sp.acc, 16), V(self.ring + 4 * (k % self.rs), 4), V(sp.b, 4), c))
            if k + self.rs < len(seq):
                read(k + self.rs)
            self.fill()
            if n == len(st.steps) - 1:
                for f in st.hooks.get('end', []):
                    f()


def divmod_code(vL, i, units, magic, vr, vp, vtmp, clamp=None):
    c = ['v_add_u32 %s, %d, %s' % (V(vp), 64 * i, V(vL))]
    if clamp is not None:
        c.append('v_min_u32 %s, %d, %s' % (V(vp), clamp, V(vp)))
    c += ['v_mul_u32_u24 %s, %d, %s' % (V(vr), magic, V(vp)),
          'v_lshrrev_b32 %s, 16, %s' % (V(vr), V(vr)),
          'v_mul_u32_u24 %s, %d, %s' % (V(vtmp), units, V(vr)),
          'v_sub_u32 %s, %s, %s' % (V(vp), V(vp), V(vtmp))]
    return c


def w_dma_groups(voffs, srd_, pre, slot_addr, tag, half_last=False):
    out = []
    for i in range(len(voffs)):
        grp = list(pre) if i == 0 else []
        grp.append('s_add_u32 m0, %s, %d' % (S(S_LDSW), slot_addr + i * 1024))
        hl = half_last and i == len(voffs) - 1
        if hl:
            grp.append('s_mov_b32 exec_hi, 0')
        grp.append(('buffer_load_dwordx4 %s, %s, %s offen lds' % (V(voffs[i]), S(srd_, 4), S(S_WOFF)), tag))
        if hl:
            grp.append('s_mov_b32 exec_hi, -1')
        out.append(grp)
    return out


def lane_tr_code(vL, vT, pitch):
    return ['v_lshrrev_b32 %s, 5, %s' % (V(vT[0]), V(vL)),
            'v_bfe_u32 %s, %s, 2, 2' % (V(vT[1]), V(vL)),
            'v_lshl_add_u32 %s, %s, 2, %s' % (V(vT[0]), V(vT[0]), V(vT[1])),
            'v_mul_u32_u24 %s, %d, %s' % (V(vT[0]), pitch, V(vT[0])),
            'v_bfe_u32 %s, %s, 4, 1' % (V(vT[2]), V(vL)),
            'v_lshl_add_u32 %s, %s, 5, %s' % (V(vT[0]), V(vT[2]), V(vT[0])),
            'v_and_b32 %s, 3, %s' % (V(vT[2]), V(vL)),
            'v_lshl_add_u32 %s, %s, 3, %s' % (V(vT[0]), V(vT[2]), V(vT[0])),
            'v_bfe_u32 %s, %s, 3, 1' % (V(vT[1]), V(vL)),
            'v_lshlrev_b32 %s, 6, %s' % (V(vT[1]), V(vT[1]))]


def tr2_code(vL, vT, regs, set1, own_other):
    c = lane_tr_code(vL, vT, 384)
    c += ['s_mul_i32 %s, %s, 192' % (S(S_T0), S(S_CH)),
          'v_add_u32 %s, %s, %s' % (V(vT[0]), S(S_T0), V(vT[0])),
          's_lshl_b32 %s, %s, 1' % (S(S_T0), S(S_CH)),
          's_sub_u32 %s, 1, %s' % (S(S_T0), S(S_T0)),
          'v_mul_i32_i24 %s, %s, %s' % (V(vT[1]), S(S_T0), V(vT[1]))]
    if own_other:
        c += ['s_mul_i32 %s, %s, %d' % (S(S_T0), S(S_CH), 32 * 384),
              's_sub_u32 %s, %d, %s' % (S(S_T1), 32 * 384, S(S_T0)),
              'v_add3_u32 %s, %s, %s, %s' % (V(regs[(0, 0, 0)]), V(vT[0]), V(vT[1]), S(S_T0)),
              'v_add3_u32 %s, %s, %s, %s' % (V(regs[(1, 0, 0)]), V(vT[0]), V(vT[1]), S(S_T1)),
              'v_sub_u32 %s, %s, %s' % (V(vT[0]), V(vT[0]), V(vT[1])),
              'v_add_u32 %s, %s, %s' % (V(regs[(0, 1, 0)]), S(S_T0), V(vT[0])),
              'v_add_u32 %s, %s, %s' % (V(regs[(1, 1, 0)]), S(S_T1), V(vT[0]))]
        blks = (0, 1)
    else:
        c += ['v_add_u32 %s, %s, %s' % (V(regs[(0, 0, 0)]), V(vT[0]), V(vT[1])),
              'v_sub_u32 %s, %s, %s' % (V(regs[(0, 1, 0)]), V(vT[0]), V(vT[1]))]
        blks = (0,)
    for b in blks:
        for ab in range(2):
            c.append('v_add_u32 %s, %d, %s' % (V(regs[(b, ab, 1)]), set1, V(regs[(b, ab, 0)])))
    return c


def w2_voff_code(vL, vT, vW2, rowbase_code):
    c = list(rowbase_code)
    for i in range(3):
        c += divmod_code(vL, i, 24, 2731, vT[0], vT[1], vT[2])
        c += ['v_bfe_u32 %s, %s, 1, 1' % (V(vT[2]), V(vT[0])),
              'v_lshlrev_b32 %s, 2, %s' % (V(vT[2]), V(vT[2])),
              'v_xor_b32 %s, %s, %s' % (V(vT[1]), V(vT[1]), V(vT[2])),
              'v_add_u32 %s, %s, %s' % (V(vT[0]), S(S_T0), V(vT[0])),
              'v_mul_u32_u24 %s, 1152, %s' % (V(vT[0]), V(vT[0])),
              'v_lshl_add_u32 %s, %s, 4, %s' % (V(vW2[i]), V(vT[1]), V(vT[0]))]
    return c


def flag_store_code(vP, vZero, soff, count, imm=0):
    return ['v_mov_b32 %s, %s' % (V(vP), S(S_NONCE)),
            's_add_u32 %s, %s, %s' % (S(S_T0), S(S_NN), count),
            'v_mov_b32 %s, %s' % (V(vP + 1), S(S_T0)),
            ['s_mov_b64 exec, 1',
             ('buffer_store_dwordx2 %s, %s, %s, %s offen offset:%d sc1' % (V(vP, 2), V(vZero), S(SRD_WS, 4), S(soff), imm), 'flag'),
             's_mov_b64 exec, -1']]


def poll_issue(g, vP, vOff, soff, imm=0, tag='poll'):
    g.op('buffer_load_dwordx2 %s, %s, %s, %s offen offset:%d sc1' % (V(vP, 2), V(vOff), S(SRD_WS, 4), S(soff), imm), tag)


def poll_check(g, vP, vOff, soff, count, imm=0, bound=1 << 20, ts=None, keep=None, tag='poll'):
    op = g.op
    S_T1, S_T2 = ts if ts else (35, 36)
    u = uid()
    g.wait(vm=tag)
    op('s_mov_b32 %s, 0' % S(S_T2))
    op('s_add_u32 %s, %s, %d' % (S(S_T1), S(S_NN), count))
    g.fence()
    g.label('L_poll%d' % u)
    op('v_xor_b32 %s, %s, %s' % (V(vP), S(S_NONCE), V(vP)))
    op('v_subrev_u32 %s, %s, %s' % (V(vP + 1), S(S_T1), V(vP + 1)))
    if keep is not None:
        op('v_readfirstlane_b32 %s, %s' % (S(keep), V(vP + 1)))
    op('v_and_b32 %s, -8, %s' % (V(vP + 1), V(vP + 1)))
    op('v_or_b32 %s, %s, %s' % (V(vP), V(vP), V(vP + 1)))
    op('v_cmp_ne_u32 vcc, 0, %s' % V(vP))
    op('s_add_u32 %s, %s, 1' % (S(S_T2), S(S_T2)))
    op('s_nop 0')
    op('s_cmp_eq_u64 vcc, 0')
    op('s_cbranch_scc1 L_pollx%d' % u)
    op('s_cmp_ge_u32 %s, %d' % (S(S_T2), bound))
    op('s_cbranch_scc1 L_pollx%d' % u)
    g.raw('    buffer_load_dwordx2 %s, %s, %s, %s offen offset:%d sc1' % (V(vP, 2), V(vOff), S(SRD_WS, 4), S(soff), imm))
    g.raw('    s_waitcnt vmcnt(0)')
    op('s_branch L_poll%d' % u)
    g.label('L_pollx%d' % u)
    g.fence()


def stats_units(cx, vXS, stat, up):
    out = []
    for i in range(2):
        s_, q_ = stat + 2 * i, stat + 2 * i + 1

        def ops(r, s_=s_, q_=q_):
            code = []
            for d in range(4):
                u = up + 2 * (d & 1)
                code.append(['v_lshlrev_b32 %s, 16, %s' % (V(u), V(r + d)),
                             'v_and_b32 %s, %s, %s' % (V(u + 1), S(S_MASK), V(r + d))])
                code.append(['v_add_f32 %s, %s, %s' % (V(s_), V(s_), V(u)),
                             'v_fmac_f32 %s, %s, %s' % (V(q_), V(u), V(u))])
                code.append(['v_add_f32 %s, %s, %s' % (V(s_), V(s_), V(u + 1)),
                             'v_fmac_f32 %s, %s, %s' % (V(q_), V(u + 1), V(u + 1))])
            return code
        out.append(Unit(2 * cx, 2 * cx + 1 + i,
                        lambda r, i=i: 'ds_read_b128 %s, %s offset:%d' % (V(r, 4), V(vXS), (cx % 2) * 16384 + i * 1024),
                        ops, ('xs', cx, i)))
    return out


def unpack_add(dst, src, t0, t1, first=False):
    if first:
        return ['v_lshlrev_b32 %s, 16, %s' % (V(dst), V(src)),
                'v_and_b32 %s, %s, %s' % (V(dst + 1), S(S_MASK), V(src))]
    return ['v_lshlrev_b32 %s, 16, %s' % (V(t0), V(src)),
            'v_and_b32 %s, %s, %s' % (V(t1), S(S_MASK), V(src)),
            'v_add_f32 %s, %s, %s' % (V(dst), V(dst), V(t0)),
            'v_add_f32 %s, %s, %s' % (V(dst + 1), V(dst + 1), V(t1))]


def bcorr_code(g, vL, t, st2, vRstd, vVe, vBc):
    c = []
    A = c.append
    A('v_rsq_f32 %s, %s' % (V(vRstd), V(st2 + 1)))
    A('v_mov_b32 %s, %s' % (V(vVe), V(st2 + 1)))
    A('v_xor_b32 %s, 0x80000000, %s' % (V(t[0]), V(st2)))
    A('v_mul_f32 %s, %s, %s' % (V(t[1]), V(vVe), V(vRstd)))
    A('v_and_b32 %s, %s, %s' % (V(t[4]), S(S_MASK), V(t[0])))
    A('v_sub_f32 %s, %s, %s' % (V(t[2]), V(t[0]), V(t[4])))
    A('v_and_b32 %s, %s, %s' % (V(t[4]), S(S_MASK), V(t[2])))
    A('v_sub_f32 %s, %s, %s' % (V(t[3]), V(t[2]), V(t[4])))
    A('v_perm_b32 %s, %s, %s, %s' % (V(vBc), V(t[2]), V(t[0]), S(S_PERM)))
    A('v_perm_b32 %s, %s, %s, %s' % (V(vBc + 1), V(t[3]), V(t[0]), S(S_PERM)))
    A('v_and_b32 %s, %s, %s' % (V(t[4]), S(S_MASK), V(t[1])))
    A('v_sub_f32 %s, %s, %s' % (V(t[0]), V(t[1]), V(t[4])))
    A('v_mov_b32 %s, %s' % (V(vBc + 2), V(vBc)))
    A('v_and_b32 %s, %s, %s' % (V(t[4]), S(S_MASK), V(t[0])))
    A('v_sub_f32 %s, %s, %s' % (V(t[3]), V(t[0]), V(t[4])))
    A('v_perm_b32 %s, %s, %s, %s' % (V(t[4]), V(t[0]), V(t[1]), S(S_PERM)))
    A('v_lshrrev_b32 %s, 16, %s' % (V(t[3]), V(t[3])))
    A(['v_cmp_gt_u32 vcc, 32, %s' % V(vL),
       'v_cndmask_b32 %s, %s, %s, vcc' % (V(vBc + 3), V(t[3]), V(t[4]))])
    return c


def acorr_code(t, cs, b3, vAc):
    c = ['v_and_b32 %s, %s, %s' % (V(t[4]), S(S_MASK), V(cs)),
         'v_sub_f32 %s, %s, %s' % (V(t[2]), V(cs), V(t[4])),
         'v_and_b32 %s, %s, %s' % (V(t[4]), S(S_MASK), V(t[2])),
         'v_sub_f32 %s, %s, %s' % (V(t[3]), V(t[2]), V(t[4])),
         'v_perm_b32 %s, %s, %s, %s' % (V(vAc), V(cs), V(cs), S(S_PERM)),
         'v_perm_b32 %s, %s, %s, %s' % (V(vAc + 1), V(cs), V(t[2]), S(S_PERM)),
         'v_perm_b32 %s, %s, %s, %s' % (V(vAc + 2), V(t[2]), V(t[3]), S(S_PERM))]
    if b3 is None:
        c.append('v_mov_b32 %s, 0' % V(vAc + 3))
    else:
        c.append('v_lshl_or_b32 %s, %s, 16, %s' % (V(vAc + 3), V(b3), V(b3)))
    return c


def pass_epilogue_code(accs, vScale, vL16, n, tag):
    c = []
    for tt, a0 in enumerate(accs):
        for p in range(2):
            a = a0 + 8 * p
            if vScale is not None:
                c += ['v_mul_f32 %s, %s, %s' % (V(a + r), V(a + r), V(vScale)) for r in range(8)]
            c += ['v_cvt_pk_bf16_f32 %s, %s, %s' % (V(a + d), V(a + 2 * d), V(a + 2 * d + 1)) for d in range(4)]
            c += ['s_add_u32 %s, %s, %d' % (S(S_T3), S(S_PXW), n * 16 * 49152 + tt * 2048),
                  'v_permlane32_swap_b32 %s, %s' % (V(a), V(a + 2)),
                  'v_permlane32_swap_b32 %s, %s' % (V(a + 1), V(a + 3)),
                  ('buffer_store_dwordx4 %s, %s, %s, %s offen offset:%d sc1' % (V(a, 4), V(vL16), S(SRD_WS, 4), S(S_T3), p * 1024), tag)]
    return c


def gen_main(cfg):
    g = Gen()
    name = NAME + '_kernel'
    g.raw('.globl %s' % name)
    g.raw('.p2align 8')
    g.raw('.type %s,@function' % name)
    g.label(name)
    op = g.op
    op('s_cmp_ge_u32 s2, 256')
    op('s_cbranch_scc1 L_exit')
    op('s_load_dwordx4 %s, s[0:1], 0' % S(S_KA, 4))
    op('s_load_dwordx4 %s, s[0:1], 32' % S(S_KA + 8, 4))
    op('s_load_dwordx2 %s, s[0:1], 16' % S(S_KA + 4, 2))
    op('s_load_dwordx8 %s, s[0:1], 48' % S(S_KA + 12, 8))
    op('s_load_dwordx2 %s, s[0:1], 80' % S(S_KA + 20, 2))
    if cfg.stamps:
        op('s_memtime %s' % S(S_STAMP, 2))
    op('s_memrealtime %s' % S(S_KA + 22, 2))
    if cfg.cpf:
        op('s_getpc_b64 %s' % S(S_TS2, 2))
        op('v_lshlrev_b32 v255, 7, v0')
        op('v_min_u32 v255, CODE_LAST, v255')
        op('global_load_dword v254, v255, %s' % S(S_TS2, 2), 'cpf')
    va = RegAlloc('v', 1, 256)
    vL = va.alloc('lane')
    vT = [va.alloc('t%d' % i) for i in range(6)]
    ctx = dict(vL=vL, vT=vT)
    if cfg.stamps:
        ctx['vst'] = 0
    op('v_lshrrev_b32 %s, 6, v0' % V(vT[0]))
    op('v_and_b32 %s, 63, v0' % V(vL))
    op('v_readfirstlane_b32 %s, %s' % (S(S_WV), V(vT[0])))
    if cfg.stamps:
        op('v_mov_b32 v0, 0')
    op('s_and_b32 %s, s2, 3' % S(S_S))
    op('s_bfe_u32 %s, s2, 0x20003' % S(S_R))
    op('s_lshr_b32 %s, s2, 6' % S(S_T2))
    op('s_bfe_u32 %s, s2, 0x10002' % S(S_T0))
    op('s_bfe_u32 %s, s2, 0x10005' % S(S_T1))
    op('s_lshl_b32 %s, %s, 2' % (S(S_M), S(S_T2)))
    op('s_lshl_b32 %s, %s, 1' % (S(S_T0), S(S_T0)))
    op('s_add_u32 %s, %s, %s' % (S(S_M), S(S_M), S(S_T0)))
    op('s_add_u32 %s, %s, %s' % (S(S_M), S(S_M), S(S_T1)))
    op('s_lshl_b32 %s, %s, 1' % (S(S_T2), S(S_T2)))
    op('s_add_u32 %s, %s, %s' % (S(S_BLK), S(S_T2), S(S_T1)))
    op('s_and_b32 %s, %s, 3' % (S(S_RG), S(S_WV)))
    op('s_lshr_b32 %s, %s, 2' % (S(S_CH), S(S_WV)))
    vXD = [va.alloc('xd%d' % i) for i in range(2)]
    op('s_lshl_b32 %s, %s, 7' % (S(S_T0), S(S_M)))
    op('s_lshl_b32 %s, %s, 4' % (S(S_T1), S(S_WV)))
    op('s_add_u32 %s, %s, %s' % (S(S_T0), S(S_T0), S(S_T1)))
    op('s_mul_i32 %s, %s, 1152' % (S(S_T0), S(S_T0)))
    op('v_lshrrev_b32 %s, 3, %s' % (V(vT[0]), V(vL)))
    op('v_mul_u32_u24 %s, 1152, %s' % (V(vT[0]), V(vT[0])))
    op('v_add_u32 %s, %s, %s' % (V(vT[0]), S(S_T0), V(vT[0])))
    op('v_and_b32 %s, 7, %s' % (V(vT[1]), V(vL)))
    op('v_lshrrev_b32 %s, 4, %s' % (V(vT[2]), V(vL)))
    op('v_xor_b32 %s, %s, %s' % (V(vT[1]), V(vT[1]), V(vT[2])))
    op('v_lshl_add_u32 %s, %s, 4, %s' % (V(vXD[0]), V(vT[1]), V(vT[0])))
    op('v_xor_b32 %s, 4, %s' % (V(vT[1]), V(vT[1])))
    op('v_lshl_add_u32 %s, %s, 4, %s' % (V(vXD[1]), V(vT[1]), V(vT[0])))
    op('v_add_u32 %s, %d, %s' % (V(vXD[1]), 8 * 1152, V(vXD[1])))
    op('s_lshl_b32 %s, %s, 11' % (S(S_LDSX), S(S_WV)))
    op('s_add_u32 %s, %s, %d' % (S(S_LDSX), S(S_LDSX), XRING))
    op('s_lshr_b32 %s, %s, 1' % (S(S_T3), S(S_RG)))
    op('s_lshl_b32 %s, %s, 4' % (S(S_T3), S(S_T3)))
    op('s_and_b32 %s, %s, 1' % (S(S_T1), S(S_RG)))
    op('s_lshl_b32 %s, %s, 2' % (S(S_T1), S(S_T1)))
    op('s_add_u32 %s, %s, %s' % (S(S_T3), S(S_T3), S(S_T1)))
    ctx['vXD'] = vXD

    def xdma(cx):
        return [['s_add_u32 m0, %s, %d' % (S(S_LDSX), (cx % 2) * 16384 + i * 1024),
                 's_movk_i32 %s, %d' % (S(S_XOFF), cx * 128),
                 ('buffer_load_dwordx4 %s, %s, %s offen lds' % (V(vXD[i]), S(SRD_X, 4), S(S_XOFF)), ('x', cx))] for i in range(2)]

    def common_late():
        vXR = [va.alloc('xr%d' % j) for j in range(4)]
        vXS = va.alloc('xs')
        vL16 = va.alloc('l16')
        vZero = va.alloc('zero')
        op('v_and_b32 %s, 31, %s' % (V(vT[0]), V(vL)))
        op('v_lshrrev_b32 %s, 5, %s' % (V(vT[1]), V(vL)))
        op('v_bfe_u32 %s, %s, 1, 3' % (V(vT[2]), V(vL)))
        op('v_xor_b32 %s, %s, %s' % (V(vT[1]), V(vT[1]), V(vT[2])))
        op('s_lshl_b32 %s, %s, 12' % (S(S_T0), S(S_RG)))
        op('s_add_u32 %s, %s, %d' % (S(S_T0), S(S_T0), XRING))
        op('v_lshlrev_b32 %s, 7, %s' % (V(vT[0]), V(vT[0])))
        op('v_add_u32 %s, %s, %s' % (V(vT[0]), S(S_T0), V(vT[0])))
        for j in range(4):
            op('v_xor_b32 %s, %d, %s' % (V(vT[2]), 2 * j, V(vT[1])))
            op('v_lshl_add_u32 %s, %s, 4, %s' % (V(vXR[j]), V(vT[2]), V(vT[0])))
        op('v_lshlrev_b32 %s, 4, %s' % (V(vL16), V(vL)))
        op('v_add_u32 %s, %s, %s' % (V(vXS), S(S_LDSX), V(vL16)))
        op('v_mov_b32 %s, 0' % V(vZero))
        op('s_mov_b32 %s, 0x07060302' % S(S_PERM))
        op('s_mov_b32 %s, 0xffff0000' % S(S_MASK))
        emit(g, srd_code(SRD_WS, S_KA + 20, WS_SIZE))
        emit(g, srd_code(SRD_DBG, S_KA + 18, 256))
        op('s_or_b32 %s, %s, 1' % (S(S_MYN), S(S_KA + 22)))
        op('s_lshl_b32 %s, s2, 3' % S(S_T0))
        op('s_add_u32 %s, %s, %s' % (S(S_T0), S(S_T0), S(S_WV)))
        op('s_lshl_b32 %s, %s, 12' % (S(S_T0), S(S_T0)))
        op('v_mov_b32 %s, %s' % (V(vT[0]), S(S_MYN)))
        op('s_mov_b64 exec, 1')
        op('buffer_store_dword %s, %s, %s, %s offen sc1' % (V(vT[0]), V(vZero), S(SRD_DBG, 4), S(S_T0)), 'nst')
        op('s_mov_b64 exec, -1')
        ctx.update(vXR=vXR, vXS=vXS, vL16=vL16, vZero=vZero)

    op('s_cmp_eq_u32 %s, 3' % S(S_R))
    g.fence()
    op('s_cbranch_scc1 L_roleA')
    state = (g.vm.copy(), g.lg.copy(), va.next)
    gen_role_F(g, va, ctx, xdma, common_late, cfg)
    g.label('L_roleA')
    g.vm, g.lg, va.next = state
    gen_role_A(g, va, ctx, xdma, common_late, cfg)
    g.label('L_exit')
    op('s_endpgm')
    g.label('L_code_end')
    g.raw('.set CODE_LAST, L_code_end - %s - 128' % name)
    if cfg.cpf:
        g.raw('.set CODE_F, L_roleA - L_cpfF')
        g.raw('.set CODE_A, L_code_end - L_cpfA - 16')
    return g.finalize(), kernel_desc(name, 256, NSGPR)


def code_prefetch(vtmp, vdst, vL, start_label, nwaves_shift=13):
    return [['s_getpc_b64 %s' % S(S_TS2, 2),
             's_lshl_b32 %s, %s, 13' % (S(S_M0), S(S_WV)),
             'v_lshlrev_b32 %s, 7, %s' % (V(vtmp), V(vL)),
             'v_add_u32 %s, %s, %s' % (V(vtmp), S(S_M0), V(vtmp)),
             'v_min_u32 %s, %s, %s' % (V(vtmp), start_label, V(vtmp)),
             ('global_load_dword %s, %s, %s' % (V(vdst), V(vtmp), S(S_TS2, 2)), 'cpf')]]


def build_p1(g, pipe, ctx, cfg, R, SLOT, pitch, baseof, nt, w1dma, xdma, acc1, X, U, stride, vCO, vP, first_lead,
             vB1, vRstd, vVe):
    op = g.op
    vXR, vXS, vL, vT, vL16, vZero = ctx['vXR'], ctx['vXS'], ctx['vL'], ctx['vT'], ctx['vL16'], ctx['vZero']
    xf = X
    xrow = X + 32
    stg = X + 40
    vBc = X + 44
    csl, csa = X + 52, X + 72
    stages = []
    for s in range(18):
        cx, sp = s // 2, s % 2
        st = Stage(s, [('W', s)] + ([('x', cx)] if sp == 0 else []))
        et = [(e, t) for e in range(2) for t in range(nt)] if s < 17 else [(e, t) for t in range(nt) for e in range(2)]
        for e, t in et:
            a, off = baseof((s % R) * SLOT + 16 * e * pitch + t * 64, t & 1)
            j = 2 * sp + e
            st.steps.append(Step(acc1[t], xf + (cx % 2) * 16 + 4 * j, a, off, 8 * pitch, first=(s == 0 and e == 0),
                                 pre=((lambda cx=cx, j=j: g.wait(lg=('xf', cx, j))) if t == 0 else None)))
        stages.append(st)

        def ob(s=s, cx=cx, sp=sp):
            if sp == 0:
                rd = [('ds_read_b128 %s, %s offset:%d' % (V(xf + (cx % 2) * 16 + 4 * j, 4), V(vXR[j]), (cx % 2) * 16384), ('xf', cx, j))
                      for j in range(4)]
                if s == 0:
                    emit(g, rd)
                else:
                    pipe.ql.extend(rd)
            if sp == 1 and cx + 2 < 9:
                pipe.mem(xdma(cx + 2)[:1])
            if sp == 0 and s >= 2 and cx + 1 < 9:
                pipe.mem(xdma(cx + 1)[1:])
            if s == 0:
                for k in range(first_lead, R - 1):
                    pipe.mem(w1dma(k))
            k = s + R - 2
            if s >= 1 and k < 18:
                pipe.mem(w1dma(k))
        st.on_barrier.append(ob)

    order = [1, 2, 3, 4, 5, 6, 7, 8, 0]

    def cs_load(r):
        return ['s_mov_b32 %s, %d' % (S(S_M0), order[r] * 64 * stride),
                ('buffer_load_dwordx2 %s, %s, %s, %s offen' % (V(csl + 2 * r, 2), V(vCO), S(SRD_W, 4), S(S_M0)), ('csl', r))]
    ctx['early'] = ['s_lshl_b32 %s, %s, 4' % (S(S_T0), S(S_M)),
                    's_add_u32 %s, %s, %s' % (S(S_T0), S(S_T0), S(S_ROLE)),
                    's_lshl_b32 %s, %s, 3' % (S(S_T0), S(S_T0)),
                    's_add_u32 %s, %s, %s' % (S(S_ROW), S(S_T0), S(S_WV)),
                    's_mul_i32 %s, %s, 1152' % (S(S_T0), S(S_ROW)),
                    ('buffer_load_dwordx4 %s, %s, %s, %s offen' % (V(xrow, 4), V(vL16), S(SRD_X, 4), S(S_T0)), 'xrow'),
                    'v_lshlrev_b32 %s, 2, %s' % (V(vT[0]), V(vL)),
                    'v_mov_b32 %s, 0' % V(xrow + 4),
                    's_mov_b32 exec_hi, 0',
                    ('buffer_load_dword %s, %s, %s, %s offen offset:1024' % (V(xrow + 4), V(vT[0]), S(SRD_X, 4), S(S_T0)), 'xrow'),
                    's_mov_b32 exec_hi, -1'] + [cs_load(r) for r in range(cfg.csearly)]
    stages[0].on_barrier.append(lambda: pipe.slow([cs_load(r) for r in range(cfg.csearly, 9)], cfg.csgap))
    s_, q_ = stg, stg + 1
    sc = [lambda: g.wait(vm='xrow')]
    for d in range(5):
        sc += ['v_lshlrev_b32 %s, 16, %s' % (V(vT[0]), V(xrow + d)),
               'v_and_b32 %s, %s, %s' % (V(vT[1]), S(S_MASK), V(xrow + d))]
        if d == 0:
            sc += ['v_add_f32 %s, %s, %s' % (V(s_), V(vT[0]), V(vT[1])),
                   'v_mul_f32 %s, %s, %s' % (V(q_), V(vT[0]), V(vT[0]))]
        else:
            sc += ['v_add_f32 %s, %s, %s' % (V(s_), V(s_), V(vT[0])),
                   'v_fmac_f32 %s, %s, %s' % (V(q_), V(vT[0]), V(vT[0])),
                   'v_add_f32 %s, %s, %s' % (V(s_), V(s_), V(vT[1]))]
        sc += ['v_fmac_f32 %s, %s, %s' % (V(q_), V(vT[1]), V(vT[1]))]
    for pat in ('quad_perm:[1,0,3,2]', 'quad_perm:[2,3,0,1]', 'row_half_mirror', 'row_mirror'):
        for r in (s_, q_):
            sc.append('v_add_f32_dpp %s, %s, %s %s row_mask:0xf bank_mask:0xf' % (V(r), V(r), V(r), pat))
    for sw in ('v_permlane16_swap_b32', 'v_permlane32_swap_b32'):
        sc += ['v_mov_b32 %s, %s' % (V(vT[0]), V(s_)), 'v_mov_b32 %s, %s' % (V(vT[1]), V(q_)),
               '%s %s, %s' % (sw, V(s_), V(vT[0])), '%s %s, %s' % (sw, V(q_), V(vT[1])),
               'v_add_f32 %s, %s, %s' % (V(s_), V(s_), V(vT[0])), 'v_add_f32 %s, %s, %s' % (V(q_), V(q_), V(vT[1]))]
    sc += ['v_mul_f32 %s, 0x%x, %s' % (V(s_), f32(1.0 / 576.0), V(s_)),
           'v_mul_f32 %s, 0x%x, %s' % (V(q_), f32(1.0 / 576.0), V(q_)),
           'v_fma_f32 %s, -%s, %s, %s' % (V(q_), V(s_), V(s_), V(q_)),
           'v_max_f32 %s, 0, %s' % (V(q_), V(q_)),
           'v_add_f32 %s, 0x%x, %s' % (V(q_), f32(1e-5), V(q_)),
           'v_mov_b32 %s, 0' % V(stg + 3)]
    c = []
    for r in range(9):
        c.append(lambda r=r: g.wait(vm=('csl', r)))
        for d in range(2):
            c += unpack_add(csa + 2 * d, csl + 2 * r + d, vT[0], vT[1], first=(r == 0))
    w = ['s_mul_i32 %s, %s, 1792' % (S(S_T0), S(S_RG)),
         's_mul_i32 %s, %s, %d' % (S(S_T1), S(S_CH), U * 4),
         's_add_u32 %s, %s, %s' % (S(S_T0), S(S_T0), S(S_T1)),
         's_add_u32 %s, %s, %d' % (S(S_T0), S(S_T0), SC_CSW),
         'v_add_u32 %s, %s, %s' % (V(vT[0]), S(S_T0), V(vL16)),
         ['s_mov_b32 exec_hi, 0x%x' % ((1 << (U // 4 - 32)) - 1),
          ('ds_write_b128 %s, %s' % (V(vT[0]), V(csa, 4)), 'csw'),
          's_mov_b32 exec_hi, -1']]
    PB = cfg.pubst
    stages[4].hook(0, lambda: pipe.side(sc))
    stages[5].hook(0, lambda: (pipe.flush_slow(), pipe.side(c + w)))
    stages[PB].pre_barrier.append(pipe.flush_side)
    stages[PB].pre_barrier.append(lambda: g.wait(lg='csw'))
    stages[2].hook(4, lambda: emit(g, ['s_lshl_b32 %s, %s, 12' % (S(S_M0), S(S_WV)),
                                      ('buffer_load_dword %s, %s, %s, %s offen sc1' % (V(vP), V(vZero), S(SRD_DBG, 4), S(S_M0)), 'nld')]))

    def nonce_share():
        u = uid()
        g.wait(vm='nld')
        op('s_mov_b32 %s, 0' % S(S_M1))
        op('s_cmp_lg_u32 %s, 0' % S(S_WV))
        g.fence()
        op('s_cbranch_scc1 L_nx%d' % u)
        g.label('L_nl%d' % u)
        op('v_readfirstlane_b32 %s, %s' % (S(S_M0), V(vP)))
        op('s_add_u32 %s, %s, 1' % (S(S_M1), S(S_M1)))
        op('s_cmp_lg_u32 %s, 0' % S(S_M0))
        op('s_cbranch_scc1 L_nw%d' % u)
        op('s_cmp_ge_u32 %s, %d' % (S(S_M1), 1 << 20))
        op('s_cbranch_scc1 L_nw%d' % u)
        g.raw('    buffer_load_dword %s, %s, %s, 0 offen sc1' % (V(vP), V(vZero), S(SRD_DBG, 4)))
        g.raw('    s_waitcnt vmcnt(0)')
        op('s_branch L_nl%d' % u)
        g.label('L_nw%d' % u)
        g.raw('    v_mov_b32 %s, %d' % (V(vP + 1), SC_NONCE))
        g.raw('    ds_write_b32 %s, %s' % (V(vP + 1), V(vP)))
        g.raw('    s_waitcnt lgkmcnt(0)')
        g.label('L_nx%d' % u)
        g.fence()
    stages[5].hook(4, nonce_share)
    nq = U // 2
    pub = ['v_mov_b32 %s, %d' % (V(vT[1]), SC_NONCE),
           ('ds_read_b32 %s, %s' % (V(stg + 2), V(vT[1])), 'nrd'),
           's_lshl_b32 %s, %s, 10' % (S(S_T0), S(S_WV)),
           'v_add_u32 %s, %s, %s' % (V(vT[3]), S(S_T0), V(vL16)),
           'v_min_u32 %s, %d, %s' % (V(vT[0]), (nq - 1) * 16, V(vT[3])),
           'v_add_u32 %s, %d, %s' % (V(vT[0]), SC_CSW, V(vT[0]))]
    pub += [('ds_read_b128 %s, %s offset:%d' % (V(csl + 4 * k, 4), V(vT[0]), 1792 * k), 'csr0') for k in range(4)]
    pub += ['s_lshl_b32 %s, %s, 4' % (S(S_T0), S(S_ROW)),
            's_add_u32 %s, %s, %d' % (S(S_T0), S(S_T0), WS_ST),
            lambda: g.wait(lg='nrd'),
            ['s_mov_b64 exec, 1',
             ('buffer_store_dwordx4 %s, %s, %s, %s offen sc1' % (V(stg, 4), V(vZero), S(SRD_WS, 4), S(S_T0)), 'sts'),
             's_mov_b64 exec, -1'],
            'v_readfirstlane_b32 %s, %s' % (S(S_NONCE), V(stg + 2)),
            ['v_cmp_lt_u32 vcc, 2047, %s' % V(vT[3]), 'v_mov_b32 %s, 0x7fffff00' % V(vT[4]),
             'v_cndmask_b32 %s, %s, %s, vcc' % (V(vT[3]), V(vT[3]), V(vT[4]))],
            's_not_b32 %s, %s' % (S(S_NN), S(S_NONCE)),
            's_lshl_b32 %s, %s, 15' % (S(S_CSO), S(S_ROLE)),
            's_add_u32 %s, %s, %d' % (S(S_CSO), S(S_CSO), WS_CS),
            's_lshl_b32 %s, %s, 11' % (S(S_T0), S(S_M)),
            's_add_u32 %s, %s, %s' % (S(S_T3), S(S_CSO), S(S_T0)),
            lambda: g.wait(lg='csr0')]
    for r in range(4):
        pub += ['v_add_f32 %s, %s, %s' % (V(csl + r), V(csl + r), V(csl + 4 + r)),
                'v_add_f32 %s, %s, %s' % (V(csl + 8 + r), V(csl + 8 + r), V(csl + 12 + r))]
    pub += ['v_add_f32 %s, %s, %s' % (V(csl + r), V(csl + r), V(csl + 8 + r)) for r in range(4)]
    pub += [('buffer_store_dwordx4 %s, %s, %s, %s offen sc1' % (V(csl, 4), V(vT[3]), S(SRD_WS, 4), S(S_T3)), 'css')]
    pub += ['s_lshl_b32 %s, %s, 4' % (S(S_T0), S(S_M)),
            's_add_u32 %s, %s, %s' % (S(S_T0), S(S_T0), S(S_ROLE)),
            's_lshl_b32 %s, %s, 4' % (S(S_T0), S(S_T0)),
            's_add_u32 %s, %s, %s' % (S(S_T0), S(S_T0), S(S_WV)),
            's_lshl_b32 %s, %s, 7' % (S(S_T0), S(S_T0)),
            's_add_u32 %s, %s, %d' % (S(S_FLAGOWN), S(S_T0), WS_FLAG)]
    vPO, vCW, vSO = csa, csa + 1, csa + 2
    pub += ['s_lshr_b32 %s, %s, 1' % (S(S_T0), S(S_WV)),
            's_and_b32 %s, %s, 1' % (S(S_T1), S(S_WV)),
            's_lshl_b32 %s, %s, 6' % (S(S_T2), S(S_T0)),
            's_add_u32 %s, %s, %s' % (S(S_T2), S(S_T2), S(S_ROLE)),
            's_lshl_b32 %s, %s, 4' % (S(S_T2), S(S_T2)),
            's_add_u32 %s, %s, %s' % (S(S_T2), S(S_T2), S(S_T1)),
            's_lshl_b32 %s, %s, 7' % (S(S_T2), S(S_T2)),
            's_add_u32 %s, %s, %d' % (S(S_FLAGCS), S(S_T2), WS_FLAG + 8 * 128),
            'v_and_b32 %s, 3, %s' % (V(vT[0]), V(vL)),
            'v_lshlrev_b32 %s, 15, %s' % (V(vPO), V(vT[0])),
            's_lshl_b32 %s, %s, 13' % (S(S_T2), S(S_T0)),
            's_add_u32 %s, %s, %s' % (S(S_CSO), S(S_CSO), S(S_T2)),
            's_lshl_b32 %s, %s, 10' % (S(S_T2), S(S_T1)),
            's_add_u32 %s, %s, %s' % (S(S_CSO), S(S_CSO), S(S_T2)),
            's_mul_i32 %s, %s, 1792' % (S(S_T0), S(S_T0)),
            's_add_u32 %s, %s, %d' % (S(S_T0), S(S_T0), SC_CSW),
            'v_add_u32 %s, %s, %s' % (V(vT[0]), S(S_T2), V(vL16)),
            ['v_cmp_gt_u32 vcc, 1792, %s' % V(vT[0]), 'v_mov_b32 %s, %d' % (V(vT[1]), SCRATCH + 256),
             'v_add_u32 %s, %s, %s' % (V(vT[0]), S(S_T0), V(vT[0])),
             'v_cndmask_b32 %s, %s, %s, vcc' % (V(vCW), V(vT[1]), V(vT[0]))],
            's_lshl_b32 %s, %s, 2' % (S(S_T0), S(S_M)),
            's_add_u32 %s, %s, %s' % (S(S_T0), S(S_T0), S(S_RG)),
            's_lshl_b32 %s, %s, 9' % (S(S_T0), S(S_T0)),
            's_add_u32 %s, %s, %d' % (S(S_T0), S(S_T0), WS_ST),
            'v_and_b32 %s, 0x1f0, %s' % (V(vT[0]), V(vL16)),
            'v_add_u32 %s, %s, %s' % (V(vSO), S(S_T0), V(vT[0]))]
    stages[PB].on_barrier.append(lambda: pipe.side(pub))
    stages[PB + 2].hook(6, lambda: pipe.side([lambda: g.wait(vm='css')] + flag_store_code(vP, vZero, S_FLAGOWN, 1, 8 * 128)))

    def polls():
        pipe.flush_side()
        op('buffer_load_dwordx4 %s, %s, %s, 0 offen sc1' % (V(xrow, 4), V(vSO), S(SRD_WS, 4)), 'stl')
        poll_issue(g, vP, vPO, S_FLAGCS)
    stages[12].hook(2 * nt - 2, polls)

    def cons2():
        poll_check(g, vP, vPO, S_FLAGCS, 1)
        for k in range(4):
            op('s_add_u32 %s, %s, %d' % (S(S_T3), S(S_CSO), 2048 * k))
            op('buffer_load_dwordx4 %s, %s, %s, %s offen sc1' % (V(csl + 4 * k, 4), V(vL16), S(SRD_WS, 4), S(S_T3)), 'csg')
        u = uid()
        op('s_mov_b32 %s, 0' % S(S_T2))
        g.fence()
        g.label('L_st%d' % u)
        op('v_cmp_ne_u32 vcc, %s, %s' % (S(S_NONCE), V(xrow + 2)))
        op('s_add_u32 %s, %s, 1' % (S(S_T2), S(S_T2)))
        op('s_nop 0')
        op('s_cmp_eq_u64 vcc, 0')
        op('s_cbranch_scc1 L_stx%d' % u)
        op('s_cmp_ge_u32 %s, %d' % (S(S_T2), 1 << 20))
        op('s_cbranch_scc1 L_stx%d' % u)
        g.raw('    buffer_load_dwordx4 %s, %s, %s, 0 offen sc1' % (V(xrow, 4), V(vSO), S(SRD_WS, 4)))
        g.raw('    s_waitcnt vmcnt(0)')
        op('s_branch L_st%d' % u)
        g.label('L_stx%d' % u)
        g.fence()
        pipe.side(bcorr_code(g, vL, vT, xrow, vRstd, vVe, vBc))
    stages[13].hook(2 * nt - 2, cons2)
    fin = [lambda: g.wait(vm='csg')]
    fin += ['v_add_f32 %s, %s, %s' % (V(csl + r), V(csl + r), V(csl + 8 + r)) for r in range(8)]
    fin += ['v_add_f32 %s, %s, %s' % (V(csl + r), V(csl + r), V(csl + 4 + r)) for r in range(4)]
    fin += [('ds_write_b128 %s, %s' % (V(vCW), V(csl, 4)), 'pub1')]
    Ac = X + 52
    csr = X + 32
    fin += ['v_and_b32 %s, 31, %s' % (V(vT[1]), V(vL)),
            'v_lshrrev_b32 %s, 5, %s' % (V(vT[5]), V(vL)),
            'v_mul_u32_u24 %s, 3584, %s' % (V(vT[5]), V(vT[5])),
            'v_lshl_add_u32 %s, %s, 2, %s' % (V(vT[5]), V(vT[1]), V(vT[5])),
            's_mul_i32 %s, %s, %d' % (S(S_T0), S(S_CH), U * 4),
            's_add_u32 %s, %s, %d' % (S(S_T0), S(S_T0), SC_CSW),
            'v_add_u32 %s, %s, %s' % (V(vT[5]), S(S_T0), V(vT[5]))]
    stages[15].hook(0, lambda: pipe.side(fin))
    stages[16].pre_barrier.append(pipe.flush_side)
    stages[16].pre_barrier.append(lambda: g.wait(lg='pub1'))
    creg = [X + 32 + 2 * t if t < 6 else X + 48 for t in range(nt)]
    rd = []
    for t in range(nt):
        rd.append(('ds_read2_b32 %s, %s offset0:%d offset1:%d' % (V(creg[t], 2), V(vT[5]), 0, 0), None))
    rd = []
    for t in range(nt):
        for k in range(2):
            rd.append(('ds_read_b32 %s, %s offset:%d' % (V(creg[t] + k), V(vT[5]), 1792 * k + 128 * t), 'crd2'))
    ac = [lambda: g.wait(lg='crd2')]
    if vB1 is not None:
        ac.append(lambda: g.wait(vm='b1'))
    for t in range(nt):
        ac.append('v_add_f32 %s, %s, %s' % (V(creg[t]), V(creg[t]), V(creg[t] + 1)))
        ac += acorr_code(vT, creg[t], None if vB1 is None else vB1 + t, Ac + 4 * t)
        ac.append('v_mfma_f32_32x32x16_bf16 %s, %s, %s, %s' % (V(acc1[t], 16), V(Ac + 4 * t, 4), V(vBc, 4), V(acc1[t], 16)))
    stages[16].on_barrier.append(lambda: pipe.side(rd + ac))
    stages[17].hook(0, pipe.flush_side)
    stages[0].hook(0, lambda: stamp(g, cfg, ctx, 10))
    stages[9].hook(0, lambda: stamp(g, cfg, ctx, 11))
    return stages


def early_loads(g, cfg, ctx):
    emit(g, ctx['early'])


def pxw_code():
    return ['s_mul_i32 %s, %s, 12' % (S(S_T0), S(S_M)),
            's_add_u32 %s, %s, %s' % (S(S_T0), S(S_T0), S(S_S)),
            's_lshl_b32 %s, %s, 2' % (S(S_T0), S(S_T0)),
            's_add_u32 %s, %s, %s' % (S(S_T0), S(S_T0), S(S_RG)),
            's_mul_i32 %s, %s, 6' % (S(S_T0), S(S_T0)),
            's_add_u32 %s, %s, %s' % (S(S_T0), S(S_T0), S(S_CH)),
            's_lshl_b32 %s, %s, 11' % (S(S_PXW), S(S_T0))]


def gen_role_F(g, va, ctx, xdma, common_late, cfg):
    op = g.op
    vL, vT, vXD = ctx['vL'], ctx['vT'], ctx['vXD']
    R, SLOT = 5, 24576
    assert WS_PX == 0
    op('s_mul_i32 %s, %s, 3' % (S(S_ROLE), S(S_S)))
    op('s_add_u32 %s, %s, %s' % (S(S_ROLE), S(S_ROLE), S(S_R)))
    op('s_mul_i32 %s, %s, 3072' % (S(S_LDSW), S(S_WV)))
    vW1 = [va.alloc('w1d%d' % i) for i in range(3)]
    op('s_mul_i32 %s, %s, 9216' % (S(S_T0), S(S_T3)))
    op('s_mul_i32 %s, %s, 384' % (S(S_T1), S(S_CH)))
    op('s_mul_i32 %s, %s, 768' % (S(S_T2), S(S_ROLE)))
    op('s_add_u32 %s, %s, %s' % (S(S_T2), S(S_T2), S(S_T1)))
    op('s_add_u32 %s, %s, %s' % (S(S_T0), S(S_T0), S(S_T2)))
    for i in range(3):
        emit(g, divmod_code(vL, i, 24, 2731, vT[0], vT[1], vT[2]))
        op('v_bfe_u32 %s, %s, 1, 1' % (V(vT[2]), V(vT[0])))
        op('v_lshlrev_b32 %s, 2, %s' % (V(vT[2]), V(vT[2])))
        op('v_xor_b32 %s, %s, %s' % (V(vT[1]), V(vT[1]), V(vT[2])))
        op('v_and_b32 %s, 4, %s' % (V(vT[2]), V(vT[0])))
        op('v_add_u32 %s, %s, %s' % (V(vT[0]), V(vT[0]), V(vT[2])))
        op('v_mul_u32_u24 %s, 9216, %s' % (V(vT[0]), V(vT[0])))
        op('v_lshl_add_u32 %s, %s, 4, %s' % (V(vT[0]), V(vT[1]), V(vT[0])))
        op('v_add_u32 %s, %s, %s' % (V(vW1[i]), S(S_T0), V(vT[0])))
    g.wait(lg='smem')
    stamp(g, cfg, ctx, 60)
    emit(g, srd_code(SRD_X, S_KA, 2048 * 1152))
    emit(g, srd_code(SRD_W, S_KA + 8, 576 * 9216))

    def w1dma(s):
        return w_dma_groups(vW1, SRD_W, ['s_mov_b32 %s, %d' % (S(S_WOFF), s * 32 * 9216)], (s % R) * SLOT, ('W', s))
    FIRST = 2
    emit(g, xdma(0) + w1dma(0))
    stamp(g, cfg, ctx, 61)
    vCO = va.alloc('co')
    op('s_lshl_b32 %s, %s, 2' % (S(S_T0), S(S_M)))
    op('s_add_u32 %s, %s, %s' % (S(S_T0), S(S_T0), S(S_RG)))
    op('s_mul_i32 %s, %s, %d' % (S(S_T0), S(S_T0), 9216))
    op('s_add_u32 %s, %s, %s' % (S(S_T0), S(S_T0), S(S_T2)))
    op('v_min_u32 %s, 47, %s' % (V(vT[0]), V(vL)))
    op('v_lshlrev_b32 %s, 3, %s' % (V(vT[0]), V(vT[0])))
    op('v_add_u32 %s, %s, %s' % (V(vCO), S(S_T0), V(vT[0])))
    common_late()
    vL16, vZero, vXR, vXS = ctx['vL16'], ctx['vZero'], ctx['vXR'], ctx['vXS']
    trb = va.alloc('trb', 4, 2)
    emit(g, lane_tr_code(vL, vT, 384))
    op('s_mul_i32 %s, %s, %d' % (S(S_T0), S(S_CH), 32 * 384))
    op('v_add3_u32 %s, %s, %s, %s' % (V(trb), V(vT[0]), V(vT[1]), S(S_T0)))
    op('v_sub_u32 %s, %s, %s' % (V(vT[0]), V(vT[0]), V(vT[1])))
    op('v_add_u32 %s, %s, %s' % (V(trb + 1), S(S_T0), V(vT[0])))
    op('v_add_u32 %s, %d, %s' % (V(trb + 2), 3 * SLOT, V(trb)))
    op('v_add_u32 %s, %d, %s' % (V(trb + 3), 3 * SLOT, V(trb + 1)))
    stamp(g, cfg, ctx, 62)
    emit(g, w1dma(1) + xdma(1))
    stamp(g, cfg, ctx, 63)

    def baseof(off, par):
        if off >= 3 * SLOT:
            return trb + 2 + par, off - 3 * SLOT
        return trb + par, off
    vW2 = va.alloc('w2d')
    vWO = va.alloc('wod')
    vP = va.alloc('poll', 2, 2)
    vP2 = va.alloc('poll2', 2, 2)
    vCB = va.alloc('cb')
    vRO, vOO, vFO, vHX = va.alloc('ro'), va.alloc('oo'), va.alloc('fo'), va.alloc('hx')
    tro = [va.alloc('tro%d' % ss) for ss in range(3)]
    print('F misc regs', va.next)
    ring = va.alloc('ring', 24, 4)
    acc1 = [va.alloc('acc1_%d' % t, 16, 4) for t in range(6)]
    X = va.alloc('X', 96, 4)
    vB1, vVe, vRstd = X + 76, X + 84, X + 85
    pipe = Pipe(g, ring, 6, cfg)
    stages = build_p1(g, pipe, ctx, cfg, R, SLOT, 384, baseof, 6, w1dma, xdma, acc1, X, 192, 9216, vCO, vP, FIRST, vB1, vRstd, vVe)

    late = srd_code(SRD_W2, S_KA + 12, 4608 * 1152) + srd_code(SRD_B, S_KA + 10, 4608 * 2) + srd_code(SRD_OUT, S_KA + 16, 2048 * 1152)
    late += ['s_mul_i32 %s, %s, 192' % (S(S_T0), S(S_CH)),
             's_mul_i32 %s, %s, 24' % (S(S_T1), S(S_RG)),
             's_add_u32 %s, %s, %s' % (S(S_T0), S(S_T0), S(S_T1)),
             'v_lshrrev_b32 %s, 3, %s' % (V(vT[0]), V(vL)),
             'v_add_u32 %s, %s, %s' % (V(vT[0]), S(S_T0), V(vT[0])),
             'v_mul_u32_u24 %s, 1152, %s' % (V(vT[0]), V(vT[0])),
             'v_bfe_u32 %s, %s, 4, 1' % (V(vT[1]), V(vL)),
             'v_lshlrev_b32 %s, 2, %s' % (V(vT[1]), V(vT[1])),
             'v_and_b32 %s, 7, %s' % (V(vT[2]), V(vL)),
             'v_xor_b32 %s, %s, %s' % (V(vT[1]), V(vT[1]), V(vT[2])),
             'v_lshl_add_u32 %s, %s, 4, %s' % (V(vW2), V(vT[1]), V(vT[0])),
             's_mul_i32 %s, %s, %d' % (S(S_T0), S(S_S), 144 * 1152),
             's_mul_i32 %s, %s, 384' % (S(S_T1), S(S_R)),
             's_add_u32 %s, %s, %s' % (S(S_T0), S(S_T0), S(S_T1)),
             's_mul_i32 %s, %s, %d' % (S(S_T1), S(S_CH), 96 * 1152),
             's_sub_u32 %s, %s, %s' % (S(S_T0), S(S_T0), S(S_T1)),
             'v_add_u32 %s, %s, %s' % (V(vWO), S(S_T0), V(vW2)),
             's_mov_b32 %s, %s' % (S(S_G[2]), S(S_R)),
             's_add_u32 %s, %s, 1' % (S(S_G[0]), S(S_R)),
             ['s_cmp_eq_u32 %s, 3' % S(S_G[0]), 's_cselect_b32 %s, 0, %s' % (S(S_G[0]), S(S_G[0]))],
             's_add_u32 %s, %s, 1' % (S(S_G[1]), S(S_G[0])),
             ['s_cmp_eq_u32 %s, 3' % S(S_G[1]), 's_cselect_b32 %s, 0, %s' % (S(S_G[1]), S(S_G[1]))],
             's_lshl_b32 %s, %s, 4' % (S(S_T0), S(S_M)),
             's_add_u32 %s, %s, %s' % (S(S_T0), S(S_T0), S(S_S)),
             's_add_u32 %s, %s, 12' % (S(S_T0), S(S_T0)),
             's_lshl_b32 %s, %s, 3' % (S(S_T0), S(S_T0)),
             's_add_u32 %s, %s, %s' % (S(S_T0), S(S_T0), S(S_RG)),
             's_lshl_b32 %s, %s, 8' % (S(S_T0), S(S_T0)),
             's_add_u32 %s, %s, %d' % (S(S_FLAGO), S(S_T0), WS_FLAG)]
    late += ['s_mul_i32 %s, %s, %d' % (S(S_W2B), S(S_ROLE), 384 * 1152)] + pxw_code()
    late += ['s_mul_i32 %s, %s, 768' % (S(S_T0), S(S_ROLE)),
             's_mul_i32 %s, %s, 384' % (S(S_T1), S(S_CH)),
             's_add_u32 %s, %s, %s' % (S(S_T0), S(S_T0), S(S_T1)),
             'v_and_b32 %s, 31, %s' % (V(vT[0]), V(vL)),
             'v_lshlrev_b32 %s, 1, %s' % (V(vT[0]), V(vT[0]))]
    late += [('buffer_load_ushort %s, %s, %s, %s offen offset:%d' % (V(vB1 + t), V(vT[0]), S(SRD_B, 4), S(S_T0), 64 * t), 'b1')
             for t in range(6)]
    late += ['s_lshl_b32 %s, %s, 3' % (S(S_T0), S(S_ROLE)),
             's_add_u32 %s, %s, %s' % (S(S_T0), S(S_T0), S(S_WV)),
             's_mul_i32 %s, %s, 2731' % (S(S_T1), S(S_T0)),
             's_lshr_b32 %s, %s, 16' % (S(S_T1), S(S_T1)),
             's_mul_i32 %s, %s, 24' % (S(S_T2), S(S_T1)),
             's_sub_u32 %s, %s, %s' % (S(S_T2), S(S_T0), S(S_T2)),
             's_mul_i32 %s, %s, %d' % (S(S_PXR), S(S_M), 12 * 49152),
             's_mul_i32 %s, %s, 12288' % (S(S_T3), S(S_T1)),
             's_add_u32 %s, %s, %s' % (S(S_PXR), S(S_PXR), S(S_T3)),
             's_lshr_b32 %s, %s, 2' % (S(S_T3), S(S_T2)),
             's_lshl_b32 %s, %s, 11' % (S(S_T0), S(S_T3)),
             's_add_u32 %s, %s, %s' % (S(S_PXR), S(S_PXR), S(S_T0)),
             's_and_b32 %s, %s, 3' % (S(S_T2), S(S_T2)),
             's_lshl_b32 %s, %s, 7' % (S(S_T0), S(S_T2)),
             's_add_u32 %s, %s, %s' % (S(S_PXR), S(S_PXR), S(S_T0)),
             'v_lshrrev_b32 %s, 4, %s' % (V(vT[0]), V(vL)),
             'v_and_b32 %s, 15, %s' % (V(vT[1]), V(vL)),
             'v_lshlrev_b32 %s, 3, %s' % (V(vT[1]), V(vT[1])),
             'v_lshl_add_u32 %s, %s, 9, %s' % (V(vRO), V(vT[0]), V(vT[1])),
             's_lshl_b32 %s, %s, 2' % (S(S_T0), S(S_M)),
             's_add_u32 %s, %s, %s' % (S(S_T0), S(S_T0), S(S_T1)),
             's_lshl_b32 %s, %s, 2' % (S(S_T0), S(S_T0)),
             's_add_u32 %s, %s, %s' % (S(S_T0), S(S_T0), S(S_T2)),
             's_lshl_b32 %s, %s, 3' % (S(S_T0), S(S_T0)),
             'v_bfe_u32 %s, %s, 1, 3' % (V(vT[1]), V(vL)),
             'v_add_u32 %s, %s, %s' % (V(vT[1]), S(S_T0), V(vT[1])),
             'v_mul_u32_u24 %s, 1152, %s' % (V(vT[1]), V(vT[1])),
             'v_and_b32 %s, 1, %s' % (V(vT[2]), V(vL)),
             'v_lshlrev_b32 %s, 4, %s' % (V(vT[2]), V(vT[2])),
             'v_and_b32 %s, 32, %s' % (V(vT[3]), V(vL)),
             'v_bfe_u32 %s, %s, 4, 1' % (V(vT[4]), V(vL)),
             'v_lshl_add_u32 %s, %s, 3, %s' % (V(vT[3]), V(vT[4]), V(vT[3])),
             's_lshl_b32 %s, %s, 6' % (S(S_T0), S(S_T3)),
             'v_add3_u32 %s, %s, %s, %s' % (V(vCB), V(vT[2]), V(vT[3]), S(S_T0)),
             'v_add_u32 %s, %s, %s' % (V(vOO), V(vT[1]), V(vCB)),
             's_lshl_b32 %s, %s, 8' % (S(S_T0), S(S_M)),
             's_add_u32 %s, %s, %s' % (S(S_T1), S(S_T0), S(S_T1)),
             's_lshl_b32 %s, %s, 7' % (S(S_T1), S(S_T1)),
             's_add_u32 %s, %s, %d' % (S(S_T1), S(S_T1), WS_FLAG),
             's_and_b32 %s, %s, 1' % (S(S_T0), S(S_T3)),
             's_lshl_b32 %s, %s, 9' % (S(S_T0), S(S_T0)),
             's_add_u32 %s, %s, %s' % (S(S_FLAGR), S(S_T0), S(S_T1)),
             'v_min_u32 %s, 11, %s' % (V(vT[0]), V(vL)),
             'v_lshlrev_b32 %s, 11, %s' % (V(vFO), V(vT[0])),
             's_xor_b32 %s, %s, 4' % (S(S_T0), S(S_WV)),
             's_lshl_b32 %s, %s, 11' % (S(S_T0), S(S_T0)),
             's_add_u32 %s, %s, %d' % (S(S_T0), S(S_T0), XRING),
             'v_add_u32 %s, %s, %s' % (V(vHX), S(S_T0), V(vL16))]
    stages[0].hook(8, lambda: pipe.side(late))
    stages[4].hook(11, pipe.flush_side)

    if cfg.pf:
        vPF = vCO
        pfs = ['s_lshl_b32 %s, %s, 3' % (S(S_T0), S(S_BLK)),
               's_add_u32 %s, %s, %s' % (S(S_T0), S(S_T0), S(S_WV)),
               's_mul_i32 %s, %s, %d' % (S(S_T0), S(S_T0), 6 * 1152),
               's_add_u32 %s, %s, %s' % (S(S_T0), S(S_T0), S(S_W2B)),
               'v_min_u32 %s, 17, %s' % (V(vT[0]), V(vL)),
               'v_mul_u32_u24 %s, 21846, %s' % (V(vT[1]), V(vT[0])),
               'v_lshrrev_b32 %s, 16, %s' % (V(vT[1]), V(vT[1])),
               'v_mul_u32_u24 %s, %d, %s' % (V(vT[1]), 1152 - 384, V(vT[1])),
               'v_lshl_add_u32 %s, %s, 7, %s' % (V(vT[1]), V(vT[0]), V(vT[1])),
               'v_add_u32 %s, %s, %s' % (V(vPF), S(S_T0), V(vT[1]))]
        stages[8].hook(0, lambda: pipe.side(pfs))
        for n in range(3):
            stages[10 + 2 * n].on_barrier.append(lambda n=n: pipe.mem(
                [['s_mul_i32 %s, %s, 384' % (S(S_M0), S(S_G[n])),
                  ('buffer_load_dword %s, %s, %s, %s offen' % (V(X + 90), V(vPF), S(SRD_W2, 4), S(S_M0)), 'pf')]]))

    tr2 = {(0, 0): vXD[0], (1, 0): vXD[1], (0, 1): vW1[0], (1, 1): vW1[1]}
    c2 = lane_tr_code(vL, vT, 128)
    c2 += ['s_lshl_b32 %s, %s, 6' % (S(S_T0), S(S_CH)),
           'v_xor_b32 %s, %s, %s' % (V(vT[1]), S(S_T0), V(vT[1])),
           'v_add_u32 %s, %s, %s' % (V(vT[0]), V(vT[0]), V(vT[1])),
           's_mul_i32 %s, %s, %d' % (S(S_T0), S(S_CH), 96 * 128),
           's_sub_u32 %s, %d, %s' % (S(S_T1), 96 * 128, S(S_T0)),
           'v_add_u32 %s, %s, %s' % (V(tr2[(0, 0)]), S(S_T0), V(vT[0])),
           'v_add_u32 %s, %s, %s' % (V(tr2[(1, 0)]), S(S_T1), V(vT[0])),
           'v_add_u32 %s, %d, %s' % (V(tr2[(0, 1)]), 2 * SLOT, V(tr2[(0, 0)])),
           'v_add_u32 %s, %d, %s' % (V(tr2[(1, 1)]), 2 * SLOT, V(tr2[(1, 0)])),
           'v_add_u32 %s, %d, %s' % (V(vW1[2]), 4 * SLOT, V(tr2[(0, 0)])),
           'v_add_u32 %s, %d, %s' % (V(vXR[0]), 4 * SLOT, V(tr2[(1, 0)]))]
    tr2[(0, 2)], tr2[(1, 2)] = vW1[2], vXR[0]
    for ss in range(3):
        tr2[(2, ss)] = tro[ss]
        c2.append('v_add_u32 %s, %d, %s' % (V(tr2[(2, ss)]), 2 * SLOT * ss, V(vT[0])))
    stages[16].hook(0, lambda: pipe.side(c2))
    accs = [X, X + 16, X + 32]
    OF = acc1[0]
    plist = []
    for z in range(3):
        plist += [(3 * z + j, hs) for hs in range(2) for j in range(3)]
    plist += [(6, 2), (7, 2), (8, 2)]
    NP2 = len(plist)

    def w2dma(q):
        k, hs = plist[q]
        s = 18 + q
        out = []
        for i in range(3):
            grp = []
            if hs < 2:
                if i == 0:
                    grp += ['s_mul_i32 %s, %s, 384' % (S(S_M1), S(S_G[k // 3])),
                            's_add_u32 %s, %s, %s' % (S(S_M1), S(S_M1), S(S_W2B))]
                grp += ['s_add_u32 %s, %s, %d' % (S(S_WOFF), S(S_M1), (96 * hs + 8 * i) * 1152 + 128 * (k % 3)),
                        's_add_u32 m0, %s, %d' % (S(S_LDSW), (s % R) * SLOT + i * 1024),
                        ('buffer_load_dwordx4 %s, %s, %s offen lds' % (V(vW2), S(SRD_W2, 4), S(S_WOFF)), ('W', s))]
            else:
                grp += ['s_mov_b32 %s, %d' % (S(S_WOFF), 8 * i * 1152 + 128 * (k % 3)),
                        's_add_u32 m0, %s, %d' % (S(S_LDSW), (s % R) * SLOT + i * 1024),
                        ('buffer_load_dwordx4 %s, %s, %s offen lds' % (V(vWO), S(SRD_WO, 4), S(S_WOFF)), ('W', s))]
            out.append(grp)
        return out
    p2 = []
    first_of = {}
    for q, (k, hs) in enumerate(plist):
        s = 18 + q
        st = Stage(s, [('W', s)])
        sl = s % R
        first_of.setdefault(k, q)
        if hs < 2:
            for blk in range(2):
                for t in range(3):
                    for e in range(2):
                        off = (sl % 2) * SLOT + (32 * t + 16 * e) * 128
                        st.steps.append(Step(accs[k % 3], acc1[3 * hs + t] + 8 * blk + 4 * e, tr2[(blk, sl // 2)], off, 8 * 128,
                                             first=(hs == 0 and blk == 0 and t == 0 and e == 0)))
        else:
            for ks in range(9):
                off = (sl % 2) * SLOT + 16 * ks * 128
                st.steps.append(Step(accs[k % 3], OF + 4 * ks, tr2[(2, sl // 2)], off, 8 * 128,
                                     pre=((lambda ks=ks: g.wait(vm=('of', ks))) if k == 6 else None)))
        p2.append(st)
    allst = stages + p2
    for j, st in enumerate(allst):
        k = j + R - 2
        if k == 21:
            continue
        if k == 22:
            st.on_barrier.append(lambda: pipe.mem(w2dma(3)))
        if 18 <= k < len(allst):
            st.on_barrier.append(lambda k=k: pipe.mem(w2dma(k - 18)))

    def epi_code(t):
        a = acc1[t]
        c = []
        for d in range(0, 8, 2):
            c += ['v_max_f32 %s, 0, %s' % (V(a + 2 * d + r), V(a + 2 * d + r)) for r in range(4)]
            c += ['v_mul_f32 %s, %s, %s' % (V(a + 2 * d + r), V(a + 2 * d + r), V(a + 2 * d + r)) for r in range(4)]
            c += ['v_cvt_pk_bf16_f32 %s, %s, %s' % (V(a + d + r), V(a + 2 * d + 2 * r), V(a + 2 * d + 2 * r + 1)) for r in range(2)]
        return c

    free_slot = (16 % R) * SLOT
    vHW2, vHX2 = vXR[1], vXR[2]
    area = {0: 0, 1: 1, 2: 2, 3: 0, 4: 1, 5: 0}

    def hw_code(t):
        a, off = (vXS, area[t] * 16384) if area[t] < 2 else (vHW2, 0)
        return [('ds_write_b128 %s, %s offset:%d' % (V(a), V(acc1[t] + 4 * e, 4), off + 1024 * e), ('hw', t)) for e in range(2)]

    def hx_read(ts):
        for t in ts:
            a, off = (vHX, area[t] * 16384) if area[t] < 2 else (vHX2, 0)
            for e in range(2):
                op('ds_read_b128 %s, %s offset:%d' % (V(acc1[t] + 8 + 4 * e, 4), V(a), off + 1024 * e), ('hx', t))

    def start_epi():
        stamp(g, cfg, ctx, 1)
        c = ['v_add_u32 %s, %d, %s' % (V(vHW2), free_slot - XRING, V(vXS)),
             'v_add_u32 %s, %d, %s' % (V(vHX2), free_slot - XRING, V(vHX))]
        for t in range(3):
            c += epi_code(t) + [Mark(('e', t))] + hw_code(t)
        pipe.budget = 8
        pipe.side(c + [Mark('r0')])
    stages[17].hook(3, start_epi)
    for t in range(3):
        p2[0].steps[2 * t].pre = (lambda t=t: pipe.flush_side(('e', t)))

    def xbar():
        pipe.flush_side('r0')
        g.wait(lg=('hw', 2))
        op('s_barrier')
        hx_read([0, 1, 2])
        stamp(g, cfg, ctx, 2)
        pipe.budget = cfg.budget
        pipe.side(epi_code(3) + epi_code(4))
    p2[0].hook(5, xbar)
    p2[0].steps[6].pre = lambda: g.wait(lg=('hx', 2))
    p2[1].hook(8, lambda: pipe.side(hw_code(3) + hw_code(4) + epi_code(5)))
    p2[3].pre_barrier.append(lambda: (pipe.flush_side(), g.wait(lg=('hw', 4))))
    p2[3].on_barrier.append(lambda: hx_read([3, 4]))

    def w5():
        g.wait(lg=('hx', 4))
        op('s_barrier')
        emit(g, hw_code(5))
    p2[3].hook(2, w5)
    p2[4].pre_barrier.append(lambda: g.wait(lg=('hw', 5)))
    p2[4].on_barrier.append(lambda: hx_read([5]))
    p2[3].steps[10].pre = lambda: g.wait(lg=('hx', 5))

    LR = X + 48

    def px_off(k, st):
        return ['s_mul_i32 %s, %s, %d' % (S(st), S(S_G[k // 3]), 4 * 49152),
                's_add_u32 %s, %s, %s' % (S(st), S(st), S(S_PXW)),
                's_add_u32 %s, %s, %d' % (S(st), S(st), (k % 3) * 4096)]

    def chain_add(k):
        a0 = accs[k % 3]
        c = [lambda: g.wait(vm=('in', k))]
        for d in range(8):
            c += unpack_add(a0 + 2 * d, LR + 8 * (k % 3) + d, vT[d % 2 * 2], vT[d % 2 * 2 + 1])
        return c

    def chain_loads(z):
        out = []
        for j in range(3):
            k = 3 * z + j
            for p in range(2):
                out.append(px_off(k, S_M0) +
                           [('buffer_load_dwordx4 %s, %s, %s, %s offen offset:%d sc1' % (V(LR + 8 * j + 4 * p, 4), V(vL16), S(SRD_WS, 4), S(S_M0), p * 1024), ('in', k))])
        return out

    def mini_epi(k):
        a0 = accs[k % 3]
        c = px_off(k, S_T3)
        c += ['v_cvt_pk_bf16_f32 %s, %s, %s' % (V(a0 + d), V(a0 + 2 * d), V(a0 + 2 * d + 1)) for d in range(8)]

        def st(p, fl):
            return 'buffer_store_dwordx4 %s, %s, %s, %s offen offset:%d%s' % (V(a0 + 4 * p, 4), V(vL16), S(SRD_WS, 4), S(S_T3), p * 1024, fl)
        c += [(st(p, ' sc1'), ('pst', k)) for p in range(2)]
        return c
    last_of = {}
    for q, (k, hs) in enumerate(plist):
        last_of[k] = q
    epi_at = {0: (4, 2), 1: (5, 2), 2: (6, 2), 3: (11, 5), 4: (12, 2), 5: (13, 2), 6: (19, 2), 7: (20, 2)}
    for k in range(8):
        pre = chain_add(k) if k >= 3 else []
        p2[epi_at[k][0]].hook(epi_at[k][1], lambda k=k, pre=pre: pipe.side(pre + mini_epi(k) + [Mark(('m', k))]))
        if k + 3 < 9:
            p2[first_of[k + 3]].steps[0].pre = (lambda k=k: pipe.flush_side(('m', k)))
    for z, (qf, nf) in enumerate(((8, 0), (15, 0))):
        p2[qf].hook(nf, lambda z=z: pipe.side([lambda: g.wait(vm=('pst', 3 * z + 2))] + flag_store_code(vP2, vZero, S_FLAGOWN, z + 1) + ([lambda: stamp(g, cfg, ctx, 12)] if z == 0 else [])))
        p2[6 * z + 6].hook(0, lambda z=z: stamp(g, cfg, ctx, 3 + z))
    nb = ['s_sub_u32 %s, %s, %s' % (S(S_T0), S(S_G[0]), S(S_R)),
          's_lshl_b32 %s, %s, 11' % (S(S_T0), S(S_T0)),
          's_add_u32 %s, %s, %s' % (S(S_FLAGP), S(S_FLAGOWN), S(S_T0))]
    p2[1].hook(0, lambda: emit(g, nb))
    for z, (qi, ni, qc, nc) in ((1, (9, 6, 10, 2)), (2, (17, 0, 17, 9))):
        p2[qi].hook(ni, lambda: poll_issue(g, vP2, vZero, S_FLAGP, tag='poll2'))

        def gl(z=z):
            if z == 1:
                stamp(g, cfg, ctx, 56)
            pipe.flush_slow()
            poll_check(g, vP2, vZero, S_FLAGP, z, ts=(S_M0, S_WOFF2), tag='poll2')
            if z == 1:
                stamp(g, cfg, ctx, 57)
            ld = chain_loads(z)
            pipe.slow(ld if z == 1 else ld[4:] + ld[:4], 1)
        p2[qc].hook(nc, gl)
    p2[11].hook(1, pipe.flush_slow)
    p2[18].hook(6, pipe.flush_slow)
    p2[19].hook(0, lambda: pipe.side(chain_add(8) + [Mark(('a', 8))]))
    p2[20].hook(0, lambda: pipe.flush_side(('a', 8)))
    SUM = [acc1[3], acc1[3] + 4, acc1[3] + 8]

    def red_loads(base, st=S_T3):
        out = []
        for n in range(3):
            for sp in range(4):
                k = 4 * n + sp
                out.append(['s_add_u32 %s, %s, %d' % (S(st), S(S_PXR), (n * 4 + sp) * 49152),
                            ('buffer_load_dwordx2 %s, %s, %s, %s offen sc1' % (V(base + 2 * k, 2), V(vRO), S(SRD_WS, 4), S(st)), ('r', k))])
        return out

    def red_add(base, n):
        c = []
        for sp in range(4):
            k = 4 * n + sp
            c.append(lambda k=k: g.wait(vm=('r', k)))
            for d in range(2):
                c += unpack_add(SUM[n] + 2 * d, base + 2 * k + d, vT[0], vT[1], first=(sp == 0))
        return c
    vPO = vCO

    def o_poll():
        op('v_and_b32 %s, 1, %s' % (V(vPO), V(vL)))
        op('v_lshlrev_b32 %s, 7, %s' % (V(vPO), V(vPO)))
        poll_issue(g, vP, vPO, S_FLAGO)
    p2[15].hook(6, o_poll)

    def o_load():
        pipe.flush_slow()
        stamp(g, cfg, ctx, 58)
        poll_check(g, vP, vPO, S_FLAGO, 1, ts=(S_M0, S_WOFF2))
        stamp(g, cfg, ctx, 59)
        op('s_mul_i32 %s, %s, 36' % (S(S_M0), S(S_M)))
        op('s_mul_i32 %s, %s, 9' % (S(S_WOFF2), S(S_S)))
        op('s_add_u32 %s, %s, %s' % (S(S_M0), S(S_M0), S(S_WOFF2)))
        op('s_lshl_b32 %s, %s, 2' % (S(S_M0), S(S_M0)))
        op('s_add_u32 %s, %s, %s' % (S(S_M0), S(S_M0), S(S_RG)))
        op('s_lshl_b32 %s, %s, 10' % (S(S_M0), S(S_M0)))
        op('s_add_u32 %s, %s, %d' % (S(S_KVR), S(S_M0), WS_O))
        pipe.slow([['s_add_u32 %s, %s, %d' % (S(S_M0), S(S_KVR), ks * 4096),
                    ('buffer_load_dwordx4 %s, %s, %s, %s offen sc1' % (V(OF + 4 * ks, 4), V(vL16), S(SRD_WS, 4), S(S_M0)), ('of', ks))]
                   for ks in range(9)], 1)
    p2[16].hook(2, o_load)
    wop = srd_code(SRD_WO, S_KA + 4, 576 * 1152)
    wop += ['s_lshl_b32 %s, %s, 3' % (S(S_T0), S(S_BLK)),
            's_add_u32 %s, %s, %s' % (S(S_T0), S(S_T0), S(S_WV)),
            's_mul_i32 %s, %s, 7' % (S(S_T0), S(S_T0)),
            'v_min_u32 %s, 6, %s' % (V(vT[0]), V(vL)),
            'v_add_u32 %s, %s, %s' % (V(vT[0]), S(S_T0), V(vT[0])),
            'v_min_u32 %s, 431, %s' % (V(vT[0]), V(vT[0])),
            'v_mul_u32_u24 %s, 21846, %s' % (V(vT[1]), V(vT[0])),
            'v_lshrrev_b32 %s, 16, %s' % (V(vT[1]), V(vT[1])),
            'v_mul_u32_u24 %s, %d, %s' % (V(vT[1]), 1152 - 384, V(vT[1])),
            'v_lshl_add_u32 %s, %s, 7, %s' % (V(vT[1]), V(vT[0]), V(vT[1])),
            's_mul_i32 %s, %s, %d' % (S(S_T0), S(S_S), 144 * 1152),
            's_mul_i32 %s, %s, 384' % (S(S_T1), S(S_R)),
            's_add_u32 %s, %s, %s' % (S(S_T0), S(S_T0), S(S_T1)),
            ('buffer_load_dword %s, %s, %s, %s offen' % (V(X + 90), V(vT[1]), S(SRD_WO, 4), S(S_T0)), 'pf')]
    p2[9].hook(0, lambda: pipe.side(wop))
    if cfg.cpf:
        stages[10].hook(1, lambda: (g.label('L_cpfF'), emit(g, code_prefetch(X + 89, X + 90, vL, 'CODE_F'))))
    XB = X + 72
    xb = srd_code(SRD_B, S_KA + 14, 1152)
    xb += ['v_sub_u32 %s, %s, %s' % (V(vT[2]), V(vOO), V(vCB)),
           'v_lshrrev_b32 %s, 7, %s' % (V(vT[2]), V(vT[2])),
           'v_mul_u32_u24 %s, 58255, %s' % (V(vT[2]), V(vT[2])),
           'v_lshrrev_b32 %s, 19, %s' % (V(vT[2]), V(vT[2])),
           'v_lshlrev_b32 %s, 4, %s' % (V(vT[2]), V(vT[2])),
           's_mov_b32 %s, %d' % (S(S_T0), WS_ST),
           ('buffer_load_dword %s, %s, %s, %s offen offset:4 sc1' % (V(XB + 12), V(vT[2]), S(SRD_WS, 4), S(S_T0)), 'xb')]
    for n in range(3):
        xb += [('buffer_load_dwordx2 %s, %s, %s, 0 offen offset:%d' % (V(XB + 2 * n, 2), V(vOO), S(SRD_X, 4), 384 * n), 'xb'),
               ('buffer_load_dwordx2 %s, %s, %s, 0 offen offset:%d' % (V(XB + 6 + 2 * n, 2), V(vCB), S(SRD_B, 4), 384 * n), 'xb')]
    p2[7].hook(2, lambda: pipe.side(xb))

    if cfg.prio:
        op('s_cmp_lg_u32 %s, %d' % (S(S_CH), cfg.prio - 1))
        op('s_cbranch_scc1 L_noprio')
        op('s_setprio 1')
        g.label('L_noprio')
    early_loads(g, cfg, ctx)
    if cfg.touch:
        op('v_lshlrev_b32 %s, 21, %s' % (V(vT[0]), V(vL)))
        op('v_min_u32 %s, %d, %s' % (V(vT[0]), WS_FLAG, V(vT[0])))
        op('buffer_load_dword %s, %s, %s, 0 offen' % (V(X + 90), V(vT[0]), S(SRD_WS, 4)), 'touch')
        op('v_min_u32 %s, %d, %s' % (V(vT[0]), 2 << 21, V(vT[0])))
        op('global_load_dword %s, %s, %s' % (V(X + 90), V(vT[0]), S(S_KA + 12, 2)), 'touch')
        op('v_min_u32 %s, %d, %s' % (V(vT[0]), 1 << 21, V(vT[0])))
        op('global_load_dword %s, %s, %s' % (V(X + 90), V(vT[0]), S(S_KA + 16, 2)), 'touch')
        op('global_load_dword %s, %s, %s' % (V(X + 90), V(vZero), S(S_KA + 4, 2)), 'touch')
        op('global_load_dword %s, %s, %s' % (V(X + 90), V(vZero), S(S_KA + 14, 2)), 'touch')
        op('global_load_dword %s, %s, %s' % (V(X + 90), V(vZero), S(S_KA + 10, 2)), 'touch')
    stamp(g, cfg, ctx, 0)
    pipe.run(allst)
    stamp(g, cfg, ctx, 5)

    pipe.flush_mem()
    pipe.flush_side()
    emit(g, mini_epi(8))
    pipe.flush_slow()
    stamp(g, cfg, ctx, 6)
    L2 = acc1[1]
    g.wait(vm=('pst', 8))
    emit(g, flag_store_code(vP2, vZero, S_FLAGOWN, 3))
    stamp(g, cfg, ctx, 7)
    poll_issue(g, vP, vFO, S_FLAGR)
    BS = acc1[4]
    op('v_rcp_f32 %s, %s' % (V(XB + 12), V(XB + 12)))
    for n in range(3):
        for d in range(2):
            emit(g, unpack_add(BS + 4 * n + 2 * d, XB + 2 * n + d, vT[0], vT[1], first=True))
            emit(g, unpack_add(BS + 4 * n + 2 * d, XB + 6 + 2 * n + d, vT[0], vT[1]))
    stamp(g, cfg, ctx, 8)
    poll_check(g, vP, vFO, S_FLAGR, 3)
    stamp(g, cfg, ctx, 9)
    emit(g, red_loads(L2))
    for n in range(3):
        emit(g, red_add(L2, n))
        for r in range(4):
            op('v_fmac_f32 %s, %s, %s' % (V(BS + 4 * n + r), V(SUM[n] + r), V(XB + 12)))
        for d in range(2):
            op('v_cvt_pk_bf16_f32 %s, %s, %s' % (V(XB + 2 * n + d), V(BS + 4 * n + 2 * d), V(BS + 4 * n + 2 * d + 1)))
        op('buffer_store_dwordx2 %s, %s, %s, 0 offen offset:%d' % (V(XB + 2 * n, 2), V(vOO), S(SRD_OUT, 4), 384 * n))
    store_stamps(g, cfg, ctx)
    op('s_endpgm')


def gen_role_A(g, va, ctx, xdma, common_late, cfg):
    op = g.op
    vL, vT, vXD = ctx['vL'], ctx['vT'], ctx['vXD']
    R, SLOT, PITCH = 4, 28672, 448
    if cfg.p1only:
        op('s_endpgm')
        return
    op('s_add_u32 %s, %s, 12' % (S(S_ROLE), S(S_S)))
    op('s_mul_i32 %s, %s, 3584' % (S(S_LDSW), S(S_WV)))
    vW1 = [va.alloc('aw1d%d' % i) for i in range(4)]
    vCO = va.alloc('aco')
    op('s_mul_i32 %s, %s, 3456' % (S(S_T0), S(S_T3)))
    op('s_mul_i32 %s, %s, 288' % (S(S_T2), S(S_S)))
    op('s_add_u32 %s, %s, %s' % (S(S_T0), S(S_T0), S(S_T2)))
    op('s_mul_i32 %s, %s, 28' % (S(S_T1), S(S_CH)))
    op('v_mov_b32 %s, 2016' % V(vT[3]))
    op('v_mov_b32 %s, -576' % V(vT[4]))

    def colbyte(vu):
        op('v_min_u32 %s, 53, %s' % (V(vu), V(vu)))
        op('v_mov_b32 %s, 1152' % V(vT[2]))
        op('v_cmp_lt_u32 vcc, 17, %s' % V(vu))
        op('v_cndmask_b32 %s, %s, %s, vcc' % (V(vT[2]), V(vT[2]), V(vT[3])))
        op('v_cmp_lt_u32 vcc, 35, %s' % V(vu))
        op('v_cndmask_b32 %s, %s, %s, vcc' % (V(vT[2]), V(vT[2]), V(vT[4])))
        op('v_lshl_add_u32 %s, %s, 4, %s' % (V(vu), V(vu), V(vT[2])))
    for i in range(4):
        emit(g, divmod_code(vL, i, 28, 2341, vT[0], vT[1], vT[2], clamp=(223 if i == 3 else None)))
        op('v_add_u32 %s, %s, %s' % (V(vT[1]), S(S_T1), V(vT[1])))
        colbyte(vT[1])
        op('v_and_b32 %s, 4, %s' % (V(vT[2]), V(vT[0])))
        op('v_add_u32 %s, %s, %s' % (V(vT[0]), V(vT[0]), V(vT[2])))
        op('v_mul_u32_u24 %s, 3456, %s' % (V(vT[0]), V(vT[0])))
        op('v_add3_u32 %s, %s, %s, %s' % (V(vW1[i]), V(vT[0]), V(vT[1]), S(S_T0)))
    g.wait(lg='smem')
    emit(g, srd_code(SRD_X, S_KA, 2048 * 1152))
    emit(g, srd_code(SRD_W, S_KA + 2, 576 * 3456))

    def w1dma(s):
        return w_dma_groups(vW1, SRD_W, ['s_mov_b32 %s, %d' % (S(S_WOFF), s * 32 * 3456)], (s % R) * SLOT, ('W', s), half_last=True)
    FIRST = 2
    emit(g, xdma(0) + w1dma(0))
    op('v_lshrrev_b32 %s, 1, %s' % (V(vT[1]), V(vL)))
    op('v_min_u32 %s, 27, %s' % (V(vT[1]), V(vT[1])))
    op('v_add_u32 %s, %s, %s' % (V(vT[1]), S(S_T1), V(vT[1])))
    colbyte(vT[1])
    op('v_and_b32 %s, 1, %s' % (V(vT[0]), V(vL)))
    op('v_lshl_add_u32 %s, %s, 3, %s' % (V(vT[1]), V(vT[0]), V(vT[1])))
    op('s_lshl_b32 %s, %s, 2' % (S(S_T0), S(S_M)))
    op('s_add_u32 %s, %s, %s' % (S(S_T0), S(S_T0), S(S_RG)))
    op('s_mul_i32 %s, %s, %d' % (S(S_T0), S(S_T0), 3456))
    op('s_add_u32 %s, %s, %s' % (S(S_T0), S(S_T0), S(S_T2)))
    op('v_add_u32 %s, %s, %s' % (V(vCO), S(S_T0), V(vT[1])))
    common_late()
    vL16, vZero, vXR, vXS = ctx['vL16'], ctx['vZero'], ctx['vXR'], ctx['vXS']
    trb = va.alloc('atrb', 2)
    emit(g, lane_tr_code(vL, vT, PITCH)[:8])
    op('s_mul_i32 %s, %s, %d' % (S(S_T0), S(S_CH), 32 * PITCH))
    op('v_add_u32 %s, %s, %s' % (V(trb), S(S_T0), V(vT[0])))
    op('v_add_u32 %s, %d, %s' % (V(trb + 1), 2 * SLOT, V(trb)))
    emit(g, w1dma(1) + xdma(1))

    def baseof(off, par):
        if off >= 2 * SLOT:
            return trb + 1, off - 2 * SLOT
        return trb, off
    vP = va.alloc('apoll', 2, 2)
    vRstd = va.alloc('arstd')
    vA8, vA12, vQ8, vQ12 = [va.alloc('awr%d' % i) for i in range(4)]
    ring = va.alloc('aring', 28, 4)
    X = va.alloc('aX', 80, 4)
    acc1 = [va.alloc('aacc1_%d' % t, 16, 4) for t in range(7)]
    vVe = X + 50
    pipe = Pipe(g, ring, 7, cfg)
    stages = build_p1(g, pipe, ctx, cfg, R, SLOT, PITCH, baseof, 7, w1dma, xdma, acc1, X, 224, 3456, vCO, vP, FIRST, None, vRstd, vVe)
    P = 328
    KB, VB, QB = 0, 144 * P, 288 * P
    late = ['s_mov_b32 %s, %s' % (S(S_BLK), S(S_WV)),
             ['s_cmp_eq_u32 %s, 0' % S(S_WV), 's_cselect_b32 %s, 3, %s' % (S(S_BLK), S(S_BLK))],
             ['s_cmp_eq_u32 %s, 3' % S(S_WV), 's_cselect_b32 %s, 0, %s' % (S(S_BLK), S(S_BLK))],
             's_lshl_b32 %s, %s, 2' % (S(S_T0), S(S_M)),
             's_add_u32 %s, %s, %s' % (S(S_T0), S(S_T0), S(S_S)),
             's_lshl_b32 %s, %s, 15' % (S(S_T0), S(S_T0)),
             's_add_u32 %s, %s, %d' % (S(S_KVW), S(S_T0), WS_KV),
             's_sub_u32 %s, %s, %d' % (S(S_KVR), S(S_KVW), 4 * 32768),
             's_mul_i32 %s, %s, %d' % (S(S_T0), S(S_CH), 19 * 1024),
             's_add_u32 %s, %s, %s' % (S(S_KVW), S(S_KVW), S(S_T0)),
             'v_and_b32 %s, 31, %s' % (V(vT[0]), V(vL)),
             's_lshl_b32 %s, %s, 5' % (S(S_T0), S(S_RG)),
             'v_add_u32 %s, %s, %s' % (V(vT[0]), S(S_T0), V(vT[0])),
             'v_mul_u32_u24 %s, %d, %s' % (V(vT[0]), P, V(vT[0])),
             'v_lshrrev_b32 %s, 5, %s' % (V(vT[1]), V(vL)),
             'v_lshl_add_u32 %s, %s, 3, %s' % (V(vA8), V(vT[1]), V(vT[0])),
             'v_lshl_add_u32 %s, %s, 2, %s' % (V(vA12), V(vT[1]), V(vA8)),
             'v_add_u32 %s, %d, %s' % (V(vQ8), QB, V(vA8)),
             'v_add_u32 %s, %d, %s' % (V(vQ12), QB, V(vA12))]
    stages[0].hook(8, lambda: pipe.side(late))
    stages[4].hook(11, pipe.flush_side)

    if cfg.cpf:
        stages[10].hook(1, lambda: (g.label('L_cpfA'), emit(g, code_prefetch(vCO, X + 51, vL, 'CODE_A'))))
    early_loads(g, cfg, ctx)
    stamp(g, cfg, ctx, 0)
    pipe.run(stages)
    stamp(g, cfg, ctx, 1)
    pipe.flush_side()
    op('v_and_b32 %s, 31, %s' % (V(vT[0]), V(vL)))
    op('s_lshl_b32 %s, %s, 7' % (S(S_T0), S(S_RG)))
    op('s_add_u32 %s, %s, %d' % (S(S_T0), S(S_T0), SC_VE))
    op('v_lshlrev_b32 %s, 2, %s' % (V(vT[0]), V(vT[0])))
    op('v_add_u32 %s, %s, %s' % (V(vT[0]), S(S_T0), V(vT[0])))
    op('ds_write_b32 %s, %s' % (V(vT[0]), V(vVe)), 'vew')
    G = acc1[0]

    def greg(k):
        return G + 4 * (k // 3) + k % 3
    for k in range(56):
        a = G + 2 * k
        op('v_mul_f32 %s, %s, %s' % (V(a), V(a), V(vRstd)))
        op('v_mul_f32 %s, %s, %s' % (V(a + 1), V(a + 1), V(vRstd)))
        op('v_cvt_pk_bf16_f32 %s, %s, %s' % (V(greg(k)), V(a), V(a + 1)))
    op('s_cmp_lg_u32 %s, 3' % S(S_RG))
    g.fence()
    op('s_cbranch_scc1 L_apub_done')
    for gi in range(19):
        op('v_mov_b32 %s, %s' % (V(G + 4 * gi + 3), S(S_NONCE)))
    op('s_mov_b32 exec_lo, 0xffff0000')
    op('s_mov_b32 exec_hi, 0xffff0000')
    for gi in range(19):
        if gi == 6:
            op('s_cmp_eq_u32 %s, 1' % S(S_CH))
            op('s_cbranch_scc1 L_apub_x')
        if gi % 4 == 0:
            op('s_add_u32 %s, %s, %d' % (S(S_T3), S(S_KVW), gi * 1024))
        op('buffer_store_dwordx4 %s, %s, %s, %s offen offset:%d sc1' % (V(G + 4 * gi, 4), V(vL16), S(SRD_WS, 4), S(S_T3), (gi % 4) * 1024), 'gs')
    g.label('L_apub_x')
    op('s_mov_b64 exec, -1')
    g.fence()
    g.label('L_apub_done')
    g.vm.q = []
    g.wait_all(vm=False, lg=True)
    op('s_barrier')

    def ppos(Pi):
        sec, pw = divmod(Pi, 72)
        return sec, (pw // 9) * 40 + (pw % 9) * 4

    def qkv_writes(ch, regof, nk, rowoff, kvonly=False):
        for k in range(nk):
            t, q4, pp = k // 8, (k % 8) // 2, k % 2
            Pi = 112 * ch + 16 * t + 4 * q4 + pp
            if Pi >= 216:
                continue
            sec, o0 = ppos(Pi)
            sec1, o1 = ppos(Pi + 2)
            assert sec == sec1 and o1 - o0 in (8, 12)
            if sec == 2:
                assert not kvonly
                a, off = (vQ8 if o1 - o0 == 8 else vQ12), o0
            else:
                a, off = (vA8 if o1 - o0 == 8 else vA12), (KB if sec == 0 else VB) + rowoff * P + o0
            op('ds_write_b32 %s, %s offset:%d' % (V(a), V(regof(k)), off), 'qkvw')
    op('s_cmp_eq_u32 %s, 1' % S(S_CH))
    g.fence()
    op('s_cbranch_scc1 L_aw1')
    qkv_writes(0, greg, 56, 16)
    g.fence()
    op('s_branch L_aw2')
    g.label('L_aw1')
    qkv_writes(1, greg, 56, 16)
    g.fence()
    g.label('L_aw2')
    g.wait_all(vm=False, lg=True)
    op('s_barrier')
    stamp(g, cfg, ctx, 2)

    op('s_cmp_lg_u32 %s, 3' % S(S_WV))
    g.fence()
    op('s_cbranch_scc1 L_ahalo_done')
    op('s_mov_b32 exec_lo, 0xffff0000')
    op('s_mov_b32 exec_hi, 0xffff0000')
    op('v_subrev_u32 %s, %d, %s' % (V(vA8), 112 * P, V(vA8)))
    op('v_subrev_u32 %s, %d, %s' % (V(vA12), 112 * P, V(vA12)))
    op('s_cmp_eq_u32 %s, 0' % S(S_M))
    g.fence()
    op('s_cbranch_scc1 L_ahalo_zero')
    op('s_mov_b32 %s, 0' % S(S_T2))
    g.label('L_ahalo_poll')
    for gi in range(25):
        if gi % 4 == 0:
            op('s_add_u32 %s, %s, %d' % (S(S_T3), S(S_KVR), gi * 1024))
        op('buffer_load_dwordx4 %s, %s, %s, %s offen offset:%d sc1' % (V(G + 4 * gi, 4), V(vL16), S(SRD_WS, 4), S(S_T3), (gi % 4) * 1024), ('gl', gi))
    op('v_mov_b32 %s, 0' % V(vT[0]))
    for gi in range(25):
        g.wait(vm=('gl', gi))
        op('v_xor_b32 %s, %s, %s' % (V(vT[1]), S(S_NONCE), V(G + 4 * gi + 3)))
        op('v_or_b32 %s, %s, %s' % (V(vT[0]), V(vT[0]), V(vT[1])))
    op('v_cmp_ne_u32 vcc, 0, %s' % V(vT[0]))
    op('s_add_u32 %s, %s, 1' % (S(S_T2), S(S_T2)))
    op('s_cmp_ge_u32 %s, %d' % (S(S_T2), 1 << 18))
    op('s_cbranch_scc1 L_ahalo_wr')
    op('s_cmp_lg_u64 vcc, 0')
    op('s_cbranch_scc1 L_ahalo_poll')
    g.fence()
    op('s_branch L_ahalo_wr')
    g.label('L_ahalo_zero')
    for i in range(100):
        op('v_mov_b32 %s, 0' % V(G + i))
    g.fence()
    g.label('L_ahalo_wr')
    qkv_writes(0, greg, 56, 0, True)
    qkv_writes(1, lambda k: greg(k) + 76, 16, 0, True)
    op('s_mov_b64 exec, -1')
    g.wait_all(vm=True, lg=True)
    g.fence()
    g.label('L_ahalo_done')
    g.vm.q, g.lg.q = [], []
    stamp(g, cfg, ctx, 3)

    kv = acc1[0]
    qv = acc1[0] + 92
    lgt = ring
    oac = ring + 16
    vf = ring + 52
    vKA, vQA, vOA, vS = ring + 70, ring + 71, ring + 72, ring + 73
    vVE = ring + 74
    op('v_and_b32 %s, 7, %s' % (V(vT[0]), V(vL)))
    op('v_bfe_u32 %s, %s, 3, 1' % (V(vT[1]), V(vL)))
    op('v_lshrrev_b32 %s, 4, %s' % (V(vT[2]), V(vL)))
    op('v_lshl_add_u32 %s, %s, 2, %s' % (V(vT[1]), V(vT[2]), V(vT[1])))
    op('s_lshl_b32 %s, %s, 4' % (S(S_T0), S(S_BLK)))
    op('v_add_u32 %s, %s, %s' % (V(vS), S(S_T0), V(vT[1])))
    op('v_mul_u32_u24 %s, %d, %s' % (V(vT[1]), P, V(vS)))
    op('v_mul_u32_u24 %s, 40, %s' % (V(vT[2]), V(vT[0])))
    op('v_add_u32 %s, %s, %s' % (V(vKA), V(vT[1]), V(vT[2])))
    op('v_add_u32 %s, %d, %s' % (V(vQA), QB, V(vKA)))
    op('v_mul_u32_u24 %s, 36, %s' % (V(vT[2]), V(vT[0])))
    op('v_add_u32 %s, %s, %s' % (V(vOA), V(vT[1]), V(vT[2])))
    op('v_add_u32 %s, %d, %s' % (V(vOA), QB, V(vOA)))
    op('v_lshlrev_b32 %s, 2, %s' % (V(vT[1]), V(vS)))
    op('v_add_u32 %s, %d, %s' % (V(vT[1]), SC_VE, V(vT[1])))
    op('ds_read_b32 %s, %s' % (V(vVE), V(vT[1])), 'q')
    op('ds_read_b32 %s, %s offset:8' % (V(vVE + 1), V(vT[1])), 'q')
    for qi in range(2):
        for p in range(5):
            op('ds_read_b64 %s, %s offset:%d' % (V(qv + 10 * qi + 2 * p, 2), V(vQA), qi * 2 * P + 8 * p), 'q')
    NJ = 9
    for j in range(NJ):
        for p in range(5):
            op('ds_read_b64 %s, %s offset:%d' % (V(kv + 10 * j + 2 * p, 2), V(vKA), KB + (18 - 2 * j) * P + 8 * p), ('k', j))
    pairs = []
    for j in range(NJ):
        if j >= 1:
            pairs.append((lgt + (j - 1), qv, j))
        if j < 8:
            pairs.append((lgt + 8 + j, qv + 10, j))
    for r in range(16):
        op('v_mov_b32 %s, 0' % V(lgt + r))
    for j in range(NJ):
        g.wait(lg=('k', j))
        for d in range(9):
            for (lr, qb, jj) in pairs:
                if jj == j:
                    op('v_dot2c_f32_bf16 %s, %s, %s' % (V(lr), V(qb + d), V(kv + 10 * j + d)))
        for p in range(5):
            op('ds_read_b64 %s, %s offset:%d' % (V(kv + 10 * j + 2 * p, 2), V(vKA), VB + (18 - 2 * j) * P + 8 * p), ('v', j))
    op('s_or_b32 %s, %s, %s' % (S(S_T0), S(S_M), S(S_BLK)))
    op('s_cmp_lg_u32 %s, 0' % S(S_T0))
    g.fence()
    op('s_cbranch_scc1 L_anomask')
    op('v_mov_b32 %s, 0xf149f2ca' % V(vT[0]))
    for qi in range(2):
        for w in range(1, 8):
            lim = 2 * w - 2 * qi
            if lim <= 0:
                continue
            op('v_cmp_gt_u32 vcc, %d, %s' % (lim, V(vS)))
            op('v_cndmask_b32 %s, %s, %s, vcc' % (V(lgt + 8 * qi + w), V(lgt + 8 * qi + w), V(vT[0])))
    g.fence()
    g.label('L_anomask')
    op('s_mov_b32 %s, 0x%x' % (S(S_T0), f32(18 ** -0.5 * math.log2(math.e))))
    for qi in range(2):
        L = lgt + 8 * qi
        m_, s_ = vT[0 + 2 * qi], vT[1 + 2 * qi]
        op('v_max3_f32 %s, %s, %s, %s' % (V(m_), V(L), V(L + 1), V(L + 2)))
        op('v_max3_f32 %s, %s, %s, %s' % (V(m_), V(m_), V(L + 3), V(L + 4)))
        op('v_max3_f32 %s, %s, %s, %s' % (V(m_), V(m_), V(L + 5), V(L + 6)))
        op('v_max_f32 %s, %s, %s' % (V(m_), V(m_), V(L + 7)))
        for w in range(8):
            op('v_sub_f32 %s, %s, %s' % (V(L + w), V(L + w), V(m_)))
        for w in range(8):
            op('v_mul_f32 %s, %s, %s' % (V(L + w), S(S_T0), V(L + w)))
        for w in range(8):
            op('v_exp_f32 %s, %s' % (V(L + w), V(L + w)))
        op('v_add_f32 %s, %s, %s' % (V(s_), V(L), V(L + 1)))
        for w in range(2, 8):
            op('v_add_f32 %s, %s, %s' % (V(s_), V(s_), V(L + w)))
        op('v_rcp_f32 %s, %s' % (V(s_), V(s_)))
        op('v_mul_f32 %s, %s, %s' % (V(s_), V(s_), V(vVE + qi)))
        for w in range(8):
            op('v_mul_f32 %s, %s, %s' % (V(L + w), V(L + w), V(s_)))
    for j in range(NJ):
        g.wait(lg=('v', j))
        for d in range(9):
            op('v_lshlrev_b32 %s, 16, %s' % (V(vf + 2 * d), V(kv + 10 * j + d)))
            op('v_and_b32 %s, %s, %s' % (V(vf + 2 * d + 1), S(S_MASK), V(kv + 10 * j + d)))
        for (lr, qb, jj) in pairs:
            if jj != j:
                continue
            qi = 0 if qb == qv else 1
            first = (j == 1) if qi == 0 else (j == 0)
            for d in range(18):
                if first:
                    op('v_mul_f32 %s, %s, %s' % (V(oac + 18 * qi + d), V(lr), V(vf + d)))
                else:
                    op('v_fmac_f32 %s, %s, %s' % (V(oac + 18 * qi + d), V(lr), V(vf + d)))
    for qi in range(2):
        for d in range(9):
            op('v_cvt_pk_bf16_f32 %s, %s, %s' % (V(oac + 18 * qi + d), V(oac + 18 * qi + 2 * d), V(oac + 18 * qi + 2 * d + 1)))
            op('ds_write_b32 %s, %s offset:%d' % (V(vOA), V(oac + 18 * qi + d), qi * 2 * P + 4 * d), 'ow')
    stamp(g, cfg, ctx, 4)

    op('v_and_b32 %s, 15, %s' % (V(vT[0]), V(vL)))
    op('v_bfe_u32 %s, %s, 4, 1' % (V(vT[1]), V(vL)))
    op('v_lshrrev_b32 %s, 5, %s' % (V(vT[2]), V(vL)))
    op('s_lshl_b32 %s, %s, 4' % (S(S_T0), S(S_BLK)))
    op('v_add_u32 %s, %s, %s' % (V(vT[3]), S(S_T0), V(vT[0])))
    op('v_mul_u32_u24 %s, %d, %s' % (V(vT[3]), P, V(vT[3])))
    op('v_lshl_add_u32 %s, %s, 3, %s' % (V(vT[3]), V(vT[1]), V(vT[3])))
    op('v_lshl_add_u32 %s, %s, 5, %s' % (V(vT[3]), V(vT[2]), V(vT[3])))
    op('v_add_u32 %s, %d, %s' % (V(vT[3]), QB, V(vT[3])))
    op('s_and_b32 %s, %s, 1' % (S(S_T0), S(S_BLK)))
    op('s_lshl_b32 %s, %s, 8' % (S(S_T0), S(S_T0)))
    op('v_lshlrev_b32 %s, 4, %s' % (V(vT[0]), V(vT[0])))
    op('v_lshl_add_u32 %s, %s, 9, %s' % (V(vT[0]), V(vT[1]), V(vT[0])))
    op('v_lshl_add_u32 %s, %s, 12, %s' % (V(vT[0]), V(vT[2]), V(vT[0])))
    op('v_add_u32 %s, %s, %s' % (V(vT[0]), S(S_T0), V(vT[0])))
    op('s_mul_i32 %s, %s, 36' % (S(S_T0), S(S_M)))
    op('s_mul_i32 %s, %s, 9' % (S(S_T1), S(S_S)))
    op('s_add_u32 %s, %s, %s' % (S(S_T0), S(S_T0), S(S_T1)))
    op('s_lshl_b32 %s, %s, 2' % (S(S_T0), S(S_T0)))
    op('s_lshr_b32 %s, %s, 1' % (S(S_T1), S(S_BLK)))
    op('s_add_u32 %s, %s, %s' % (S(S_T0), S(S_T0), S(S_T1)))
    op('s_lshl_b32 %s, %s, 10' % (S(S_T0), S(S_T0)))
    op('s_add_u32 %s, %s, %d' % (S(S_T1), S(S_T0), WS_O))
    op('s_sub_u32 %s, %s, %s' % (S(S_T0), S(S_BLK), S(S_WV)))
    op('s_lshl_b32 %s, %s, 7' % (S(S_T0), S(S_T0)))
    op('s_add_u32 %s, %s, %s' % (S(S_FLAGOWN), S(S_FLAGOWN), S(S_T0)))
    g.wait_all(vm=False, lg=True)
    for i in range(5):
        for h in range(2):
            op('ds_read_b64 %s, %s offset:%d' % (V(kv + 4 * i + 2 * h, 2), V(vT[3]), 64 * i + 16 * h), ('or', i))
    for i in range(5):
        g.wait(lg=('or', i))
        op('s_add_u32 %s, %s, %d' % (S(S_T3), S(S_T1), i * 8192))
        if i == 4:
            op('s_mov_b32 exec_hi, 0')
        op('buffer_store_dwordx4 %s, %s, %s, %s offen sc1' % (V(kv + 4 * i, 4), V(vT[0]), S(SRD_WS, 4), S(S_T3)), 'os')
        if i == 4:
            op('s_mov_b32 exec_hi, -1')
    g.wait_all(vm=True, lg=True)
    emit(g, flag_store_code(vP, vZero, S_FLAGOWN, 1))
    stamp(g, cfg, ctx, 5)
    store_stamps(g, cfg, ctx)
    op('s_endpgm')


def build(cfg, path):
    main_txt, main_desc = gen_main(cfg)
    hdr = open('cdna_kernels/%s.s.ref' % NAME).read().split('; Override launch')[0]
    out = hdr
    out += '; @launch grid=(256,1,1) block=(512,1,1) lds=%d\n' % LDS_BYTES
    out += '.amdgcn_target "amdgcn-amd-amdhsa--gfx950"\n.text\n'
    out += main_txt
    out += '.section .rodata,"a"\n' + main_desc + '\n'
    open(path, 'w').write(out)


if __name__ == '__main__':
    cfg = Cfg()
    path = 'cdna_kernels/%s.s' % NAME
    for a in sys.argv[1:]:
        if a.startswith('out='):
            path = a[4:]
        elif '=' in a:
            k, v = a.split('=')
            setattr(cfg, k, int(v))
        else:
            setattr(cfg, a, True)
    build(cfg, path)
    print('wrote', path)
```

```python
import sys, os, struct, math
from collections import deque, defaultdict
sys.path.insert(0, os.path.dirname(os.path.abspath(__file__)))
from asmgen import Gen, RegAlloc, V, S

NAME = 'parallel_sum__sliding_local_dilated__dense_activation_squared_relu__prompt'

WS_PX = 0
WS_KV = WS_PX + 16 * 3 * 12 * 48 * 1024
WS_O = WS_KV + 64 * 32768
WS_CS = WS_O + 16 * 144 * 1024
WS_ST = WS_CS + 256 * 2048
WS_FLAG = WS_ST + 2048 * 16
WS_DBG = WS_FLAG + 256 * 16 * 128
WS_SIZE = WS_DBG + (2 << 20)

LDS_BYTES = 163840
XRING = 122880
SCRATCH = 155648
NV = 168
NW = 12


def f32(x):
    return struct.unpack('<I', struct.pack('<f', x))[0]


class Cfg:
    stamps = False
    fine = False
    budget = 5
    prio = 2
    cpf = 1
    hprio = 0
    nozf = False
    nopf = False
    touch = 0
    pf2 = 0
    early = 1


def kernel_desc(name, vgpr, sgpr):
    return '\n'.join([
        '.p2align 6',
        '.amdhsa_kernel %s' % name,
        '  .amdhsa_next_free_vgpr %d' % vgpr,
        '  .amdhsa_next_free_sgpr %d' % sgpr,
        '  .amdhsa_accum_offset %d' % ((vgpr + 3) // 4 * 4),
        '  .amdhsa_group_segment_fixed_size 0',
        '  .amdhsa_kernarg_size 88',
        '  .amdhsa_user_sgpr_count 2',
        '  .amdhsa_user_sgpr_kernarg_segment_ptr 1',
        '  .amdhsa_system_sgpr_workgroup_id_x 1',
        '.end_amdhsa_kernel'])


SRD_X, SRD_W, SRD_W2, SRD_WS, SRD_B, SRD_DBG = 4, 8, 12, 16, 20, 24
S_M, S_S, S_R, S_WV, S_RG, S_CH = 28, 29, 30, 31, 32, 33
S_T0, S_T1, S_T2, S_T3 = 34, 35, 36, 37
S_WOFF, S_LDSW, S_LDSX = 38, 40, 41
S_PXR, S_OB, S_KVW, S_KVR = 42, 43, 44, 45
S_NONCE, S_NN = 46, 47
S_ROLE, S_XROW = 48, 49
S_PERM, S_MYN, S_MASK, S_BLK = 50, 51, 52, 53
S_M0, S_M1 = 54, 55
S_KA = 56
S_PXG = [56, 57, 58]
S_W2G = [59, 60, 61]
S_FLAGM, S_ZB, S_WOP, S_XB = 62, 63, 64, 65
SRD_WO, SRD_B2 = 68, 72
S_CSPUB, S_STPUB = 76, 77
SRD_OUT = 80
S_FLAGOWN, S_CSO, S_FLAGCS, S_FLAGO, S_FL0 = 84, 85, 86, 87, 88
S_STAMP, S_TS, S_TS2 = 90, 92, 94
S_G = [96, 97, 98]
NSGPR = 100

_uid = [0]


def uid():
    _uid[0] += 1
    return _uid[0]


def stamp(g, cfg, idx):
    if not cfg.stamps:
        return
    g.op('s_memtime %s' % S(S_TS, 2))
    g.wait(lg='smem')
    g.op('s_sub_u32 %s, %s, %s' % (S(S_TS), S(S_TS), S(S_STAMP)))
    g.op('v_writelane_b32 v0, %s, %d' % (S(S_TS), idx))


def store_stamps(g, cfg, vL16, vt):
    if not cfg.stamps:
        return
    op = g.op
    g.wait_all()
    stamp(g, cfg, 13)
    op('s_memrealtime %s' % S(S_TS, 2))
    g.wait(lg='smem')
    op('v_writelane_b32 v0, %s, 15' % S(S_TS))
    op('v_writelane_b32 v0, %s, 14' % S(S_MYN))
    op('s_mul_i32 %s, s2, %d' % (S(S_T0), NW))
    op('s_add_u32 %s, %s, %s' % (S(S_T0), S(S_T0), S(S_WV)))
    op('s_lshl_b32 %s, %s, 8' % (S(S_T0), S(S_T0)))
    op('s_add_u32 %s, %s, %d' % (S(S_T0), S(S_T0), WS_DBG))
    op('v_lshrrev_b32 %s, 2, %s' % (V(vt), V(vL16)))
    op('buffer_store_dword v0, %s, %s, %s offen' % (V(vt), S(SRD_WS, 4), S(S_T0)))


def srd_code(d, ka, size):
    return ['s_mov_b32 %s, %s' % (S(d), S(ka)), 's_mov_b32 %s, %s' % (S(d + 1), S(ka + 1)),
            's_mov_b32 %s, %d' % (S(d + 2), size), 's_mov_b32 %s, 0x20000' % S(d + 3)]


def emit(g, code):
    for x in code:
        if callable(x):
            x()
        elif isinstance(x, list):
            emit(g, x)
        elif isinstance(x, tuple):
            g.op(x[0], x[1])
        else:
            g.op(x)


class Stage:
    def __init__(self, idx):
        self.idx = idx
        self.steps, self.on_barrier, self.pre_barrier, self.hooks = [], [], [], {}

    def hook(self, n, f):
        self.hooks.setdefault(n, []).append(f)


class Step:
    def __init__(self, acc, b, addr, off, hstride, first=False, pre=None):
        self.acc, self.b, self.addr, self.off, self.hstride, self.first, self.pre = acc, b, addr, off, hstride, first, pre


class Mark:
    def __init__(self, name):
        self.name = name


class Pipe:
    def __init__(self, g, ring, rs, cfg):
        self.g, self.ring, self.rs, self.cfg = g, ring, rs, cfg
        self.qa = deque()
        self.budget, self.done, self.events = cfg.budget, set(), []

    def side(self, code):
        self.qa.extend(code)

    def _pop(self):
        x = self.qa.popleft()
        if isinstance(x, Mark):
            self.done.add(x.name)
            return 0
        emit(self.g, [x])
        return len(x) if isinstance(x, list) else 1

    def fill(self):
        b = self.budget
        while self.qa and b > 0:
            b -= self._pop()

    def flush_side(self, until=None):
        while self.qa and not (until is not None and until in self.done):
            self._pop()
        assert until is None or until in self.done, until

    def bar(self, key):
        g = self.g
        fine = self.cfg.fine and isinstance(key, int)
        if fine:
            g.op('s_memtime %s' % S(S_TS, 2))
        g.op('s_barrier')
        if fine:
            g.wait(lg='smem')
            g.op('s_sub_u32 %s, %s, %s' % (S(S_TS), S(S_TS), S(S_STAMP)))
            g.op('v_writelane_b32 v0, %s, %d' % (S(S_TS), min(55, 16 + key)))
        self.events.append(key)

    def run(self, stages):
        g = self.g
        seq = [(st, n) for st in stages for n in range(len(st.steps))]
        key = uid()

        def read(k):
            st, n = seq[k]
            if n == 0:
                for f in st.pre_barrier:
                    f()
                if not getattr(st, 'nobar', False):
                    self.bar(st.idx)
                for f in st.on_barrier:
                    f()
            sp = st.steps[n]
            r = self.ring + 4 * (k % self.rs)
            for h in range(2):
                g.op('ds_read_b64_tr_b16 %s, %s offset:%d' % (V(r + 2 * h, 2), V(sp.addr), sp.off + h * sp.hstride), ('w', key, k))
        for k in range(self.rs):
            read(k)
        for k, (st, n) in enumerate(seq):
            for f in st.hooks.get(n, []):
                f()
            sp = st.steps[n]
            if sp.pre:
                sp.pre()
            g.wait(lg=('w', key, k))
            c = '0' if sp.first else V(sp.acc, 16)
            g.op('v_mfma_f32_32x32x16_bf16 %s, %s, %s, %s' % (V(sp.acc, 16), V(self.ring + 4 * (k % self.rs), 4), V(sp.b, 4), c))
            for f in st.hooks.get(('post', n), []):
                f()
            if k + self.rs < len(seq):
                read(k + self.rs)
            self.fill()


def run_helper(g, events, H, HW):
    emit(g, H.get('pre', []))
    emit(g, H.get('pre1', []))
    for key in events:
        vm, lg = HW.get(key, ([], []))
        g.wait(vm=vm if vm else None, lg=lg if lg else None)
        g.op('s_barrier')
        emit(g, H.get(key, []))


def divmod_code(vL, i, units, magic, vr, vp, vtmp, clamp=None):
    c = ['v_add_u32 %s, %d, %s' % (V(vp), 64 * i, V(vL))]
    if clamp is not None:
        c.append('v_min_u32 %s, %d, %s' % (V(vp), clamp, V(vp)))
    c += ['v_mul_u32_u24 %s, %d, %s' % (V(vr), magic, V(vp)),
          'v_lshrrev_b32 %s, 16, %s' % (V(vr), V(vr)),
          'v_mul_u32_u24 %s, %d, %s' % (V(vtmp), units, V(vr)),
          'v_sub_u32 %s, %s, %s' % (V(vp), V(vp), V(vtmp))]
    return c


def lane_tr_code(vL16, vT, pitch):
    return ['v_lshrrev_b32 %s, 9, %s' % (V(vT[0]), V(vL16)),
            'v_bfe_u32 %s, %s, 6, 2' % (V(vT[1]), V(vL16)),
            'v_lshl_add_u32 %s, %s, 2, %s' % (V(vT[0]), V(vT[0]), V(vT[1])),
            'v_mul_u32_u24 %s, %d, %s' % (V(vT[0]), pitch, V(vT[0])),
            'v_bfe_u32 %s, %s, 8, 1' % (V(vT[2]), V(vL16)),
            'v_lshl_add_u32 %s, %s, 5, %s' % (V(vT[0]), V(vT[2]), V(vT[0])),
            'v_bfe_u32 %s, %s, 4, 2' % (V(vT[2]), V(vL16)),
            'v_lshl_add_u32 %s, %s, 3, %s' % (V(vT[0]), V(vT[2]), V(vT[0])),
            'v_bfe_u32 %s, %s, 7, 1' % (V(vT[1]), V(vL16)),
            'v_lshlrev_b32 %s, 6, %s' % (V(vT[1]), V(vT[1]))]


def xr_code(vL16, vT, vXR):
    c = ['v_bfe_u32 %s, %s, 4, 5' % (V(vT[0]), V(vL16)),
         'v_lshrrev_b32 %s, 9, %s' % (V(vT[1]), V(vL16)),
         'v_bfe_u32 %s, %s, 5, 3' % (V(vT[2]), V(vL16)),
         'v_xor_b32 %s, %s, %s' % (V(vT[1]), V(vT[1]), V(vT[2])),
         's_lshl_b32 %s, %s, 12' % (S(S_T0), S(S_RG)),
         's_add_u32 %s, %s, %d' % (S(S_T0), S(S_T0), XRING),
         'v_lshlrev_b32 %s, 7, %s' % (V(vT[0]), V(vT[0])),
         'v_add_u32 %s, %s, %s' % (V(vT[0]), S(S_T0), V(vT[0]))]
    for j in range(4):
        c += ['v_xor_b32 %s, %d, %s' % (V(vT[2]), 2 * j, V(vT[1])),
              'v_lshl_add_u32 %s, %s, 4, %s' % (V(vXR[j]), V(vT[2]), V(vT[0]))]
    return c


def flag_store_code(vP, vZero, soff, count, imm=0):
    return ['v_mov_b32 %s, %s' % (V(vP), S(S_NONCE)),
            's_add_u32 %s, %s, %s' % (S(S_M0), S(S_NN), count),
            'v_mov_b32 %s, %s' % (V(vP + 1), S(S_M0)),
            's_mov_b64 exec, 1',
            ('buffer_store_dwordx2 %s, %s, %s, %s offen offset:%d sc1' % (V(vP, 2), V(vZero), S(SRD_WS, 4), S(soff), imm), 'flag'),
            's_mov_b64 exec, -1']


def poll_issue(g, vP, vOff, soff, imm=0, tag='poll'):
    g.op('buffer_load_dwordx2 %s, %s, %s, %s offen offset:%d sc1' % (V(vP, 2), V(vOff), S(SRD_WS, 4), S(soff), imm), tag)


def poll_check(g, vP, vOff, soff, count, imm=0, bound=1 << 20, tag='poll'):
    op = g.op
    u = uid()
    g.wait(vm=tag)
    op('s_mov_b32 %s, 0' % S(S_M1))
    op('s_add_u32 %s, %s, %d' % (S(S_M0), S(S_NN), count))
    g.fence()
    g.label('L_poll%d' % u)
    op('v_xor_b32 %s, %s, %s' % (V(vP), S(S_NONCE), V(vP)))
    op('v_subrev_u32 %s, %s, %s' % (V(vP + 1), S(S_M0), V(vP + 1)))
    op('v_and_b32 %s, -8, %s' % (V(vP + 1), V(vP + 1)))
    op('v_or_b32 %s, %s, %s' % (V(vP), V(vP), V(vP + 1)))
    op('v_cmp_ne_u32 vcc, 0, %s' % V(vP))
    op('s_add_u32 %s, %s, 1' % (S(S_M1), S(S_M1)))
    op('s_nop 0')
    op('s_cmp_eq_u64 vcc, 0')
    op('s_cbranch_scc1 L_pollx%d' % u)
    op('s_cmp_ge_u32 %s, %d' % (S(S_M1), bound))
    op('s_cbranch_scc1 L_pollx%d' % u)
    g.raw('    buffer_load_dwordx2 %s, %s, %s, %s offen offset:%d sc1' % (V(vP, 2), V(vOff), S(SRD_WS, 4), S(soff), imm))
    g.raw('    s_waitcnt vmcnt(0)')
    op('s_branch L_poll%d' % u)
    g.label('L_pollx%d' % u)
    g.fence()


def unpack_add(dst, src, t0, t1, first=False):
    if first:
        return ['v_lshlrev_b32 %s, 16, %s' % (V(dst), V(src)),
                'v_and_b32 %s, %s, %s' % (V(dst + 1), S(S_MASK), V(src))]
    return ['v_lshlrev_b32 %s, 16, %s' % (V(t0), V(src)),
            'v_and_b32 %s, %s, %s' % (V(t1), S(S_MASK), V(src)),
            'v_add_f32 %s, %s, %s' % (V(dst), V(dst), V(t0)),
            'v_add_f32 %s, %s, %s' % (V(dst + 1), V(dst + 1), V(t1))]


def bcorr_code(vL16, t, st2, vRstd, vBc):
    return ['v_rsq_f32 %s, %s' % (V(vRstd), V(st2 + 1)),
            'v_xor_b32 %s, 0x80000000, %s' % (V(t[0]), V(st2)),
            'v_mul_f32 %s, %s, %s' % (V(t[1]), V(st2 + 1), V(vRstd)),
            'v_and_b32 %s, %s, %s' % (V(t[4]), S(S_MASK), V(t[0])),
            'v_sub_f32 %s, %s, %s' % (V(t[2]), V(t[0]), V(t[4])),
            'v_and_b32 %s, %s, %s' % (V(t[4]), S(S_MASK), V(t[2])),
            'v_sub_f32 %s, %s, %s' % (V(t[3]), V(t[2]), V(t[4])),
            'v_perm_b32 %s, %s, %s, %s' % (V(vBc), V(t[2]), V(t[0]), S(S_PERM)),
            'v_perm_b32 %s, %s, %s, %s' % (V(vBc + 1), V(t[3]), V(t[0]), S(S_PERM)),
            'v_and_b32 %s, %s, %s' % (V(t[4]), S(S_MASK), V(t[1])),
            'v_sub_f32 %s, %s, %s' % (V(t[0]), V(t[1]), V(t[4])),
            'v_mov_b32 %s, %s' % (V(vBc + 2), V(vBc)),
            'v_and_b32 %s, %s, %s' % (V(t[4]), S(S_MASK), V(t[0])),
            'v_sub_f32 %s, %s, %s' % (V(t[3]), V(t[0]), V(t[4])),
            'v_perm_b32 %s, %s, %s, %s' % (V(t[4]), V(t[0]), V(t[1]), S(S_PERM)),
            'v_lshrrev_b32 %s, 16, %s' % (V(t[3]), V(t[3])),
            ['v_cmp_gt_u32 vcc, 512, %s' % V(vL16),
             'v_cndmask_b32 %s, %s, %s, vcc' % (V(vBc + 3), V(t[3]), V(t[4]))]]


def acorr_code(t, cs, b3, vAc):
    c = ['v_and_b32 %s, %s, %s' % (V(t[0]), S(S_MASK), V(cs)),
         'v_sub_f32 %s, %s, %s' % (V(t[1]), V(cs), V(t[0])),
         'v_and_b32 %s, %s, %s' % (V(t[0]), S(S_MASK), V(t[1])),
         'v_sub_f32 %s, %s, %s' % (V(t[2]), V(t[1]), V(t[0])),
         'v_perm_b32 %s, %s, %s, %s' % (V(vAc), V(cs), V(cs), S(S_PERM)),
         'v_perm_b32 %s, %s, %s, %s' % (V(vAc + 1), V(cs), V(t[1]), S(S_PERM)),
         'v_perm_b32 %s, %s, %s, %s' % (V(vAc + 2), V(t[1]), V(t[2]), S(S_PERM))]
    if b3 is None:
        c.append('v_mov_b32 %s, 0' % V(vAc + 3))
    else:
        c.append('v_lshl_or_b32 %s, %s, 16, %s' % (V(vAc + 3), V(b3), V(b3)))
    return c


class Win:
    def __init__(self, regs):
        self.regs, self.cur = regs, 0

    def move(self, g, new):
        if new != self.cur:
            for r in self.regs:
                g.op('v_add_u32 %s, %d, %s' % (V(r), new - self.cur, V(r)))
            self.cur = new


def p1_stages(g, pipe, R, SLOT, pitch, wstep, tr, win, nt, acc1, xf, xf17, vXR, tilemajor):
    op = g.op
    stages = []

    def xread(s, e, reg):
        cx, j = s // 2, 2 * (s % 2) + e
        op('ds_read_b128 %s, %s offset:%d' % (V(reg, 4), V(vXR[j]), (cx % 2) * 16384), ('xf', s, e))
    for s in range(18):
        st = Stage(s)
        w = ((s % R) // wstep) * wstep * SLOT
        tm = tilemajor and s == 17
        et = [(e, t) for t in range(nt) for e in range(2)] if tm else [(e, t) for e in range(2) for t in range(nt)]
        for e, t in et:
            b = xf17 if (tm and e == 1) else xf + 4 * e
            st.steps.append(Step(acc1[t], b, tr[t & 1], (s % R) * SLOT - w + 16 * e * pitch + t * 64, 8 * pitch,
                                 first=(s == 0 and e == 0),
                                 pre=((lambda s=s, e=e: g.wait(lg=('xf', s, e))) if t == 0 else None)))

        def ob(s=s, w=w, tm=tm):
            win.move(g, w)
            xread(s, 0, xf)
            if s == 0:
                xread(0, 1, xf + 4)
            if tm:
                xread(s, 1, xf17)
        st.on_barrier.append(ob)
        if s > 0 and not tm:
            st.hook(0, lambda s=s: xread(s, 1, xf + 4))
        stages.append(st)
    return stages


def helper_p1(g, cfg, H, HW, hv, R, w1dma, xdma, U, stride, CSW, CP, STAT, extra_flag_wait):
    op = g.op
    vL, vL16, vZero, vT, vP, vCO, B = hv['vL'], hv['vL16'], hv['vZero'], hv['vT'], hv['vP'], hv['vCO'], hv['B']
    csl, csa, xrow, stg = B, B + 36, B + 44, B + 56
    vXO, vX4, vCW1, vCR1, vCS, vPO, vSO, vSW, vSP = [B + 60 + i for i in range(9)]
    nq = U // 2
    H['pre0'] = xdma(0) + w1dma(0)
    H['pre1'] = w1dma(1) + xdma(1)
    H[0] += w1dma(2)
    for s in range(18):
        HW[s] = ([('W', s)] + ([('x', s // 2)] if s % 2 == 0 else []), [])
        if s % 2 == 0 and s >= 2 and s // 2 + 1 < 9:
            H[s] += xdma(s // 2 + 1)
        ks = list(range(3, R - 1)) if s == 0 else [s + R - 2]
        for k in ks:
            if 3 <= k < 18:
                H[s] += w1dma(k)
    H['pre'] += ['s_lshl_b32 %s, %s, 4' % (S(S_T0), S(S_M)),
                 's_add_u32 %s, %s, %s' % (S(S_T0), S(S_T0), S(S_ROLE)),
                 's_lshl_b32 %s, %s, 2' % (S(S_T1), S(S_T0)),
                 's_add_u32 %s, %s, %s' % (S(S_T1), S(S_T1), S(S_RG)),
                 's_lshl_b32 %s, %s, 1' % (S(S_T1), S(S_T1)),
                 's_mul_i32 %s, %s, 1152' % (S(S_XROW), S(S_T1)),
                 's_lshl_b32 %s, %s, 4' % (S(S_T1), S(S_T1)),
                 's_add_u32 %s, %s, %d' % (S(S_STPUB), S(S_T1), WS_ST),
                 's_lshl_b32 %s, %s, 11' % (S(S_T0), S(S_T0)),
                 's_add_u32 %s, %s, %d' % (S(S_FL0), S(S_T0), WS_FLAG),
                 's_lshl_b32 %s, %s, 7' % (S(S_T0), S(S_RG)),
                 's_add_u32 %s, %s, %s' % (S(S_FLAGOWN), S(S_FL0), S(S_T0)),
                 'v_lshrrev_b32 %s, 5, %s' % (V(vT[0]), V(vL)),
                 'v_lshlrev_b32 %s, 4, %s' % (V(vSP), V(vT[0])),
                 'v_mul_u32_u24 %s, 1152, %s' % (V(vT[0]), V(vT[0])),
                 'v_and_b32 %s, 31, %s' % (V(vT[1]), V(vL)),
                 'v_lshl_add_u32 %s, %s, 4, %s' % (V(vXO), V(vT[1]), V(vT[0])),
                 'v_lshl_add_u32 %s, %s, 2, %s' % (V(vX4), V(vT[1]), V(vT[0])),
                 's_mul_i32 %s, %s, %d' % (S(S_T0), S(S_RG), CP),
                 's_add_u32 %s, %s, %d' % (S(S_T0), S(S_T0), CSW),
                 'v_lshlrev_b32 %s, 1, %s' % (V(vT[0]), V(vL16)),
                 'v_add_u32 %s, %s, %s' % (V(vCW1), S(S_T0), V(vT[0])),
                 'v_add_u32 %s, %s, %s' % (V(hv['vCW2']), S(S_T0), V(vL16)),
                 's_lshl_b32 %s, %s, 10' % (S(S_T0), S(S_RG)),
                 'v_add_u32 %s, %s, %s' % (V(vT[3]), S(S_T0), V(vL16)),
                 'v_min_u32 %s, %d, %s' % (V(vT[0]), (nq - 1) * 16, V(vT[3])),
                 'v_add_u32 %s, %d, %s' % (V(vCR1), CSW, V(vT[0])),
                 'v_cmp_lt_u32 vcc, 2047, %s' % V(vT[3]),
                 'v_mov_b32 %s, 0x7fffff00' % V(vT[4]),
                 'v_cndmask_b32 %s, %s, %s, vcc' % (V(vCS), V(vT[3]), V(vT[4])),
                 's_lshl_b32 %s, %s, 15' % (S(S_CSO), S(S_ROLE)),
                 's_add_u32 %s, %s, %d' % (S(S_CSO), S(S_CSO), WS_CS),
                 's_lshl_b32 %s, %s, 11' % (S(S_T0), S(S_M)),
                 's_add_u32 %s, %s, %s' % (S(S_CSPUB), S(S_CSO), S(S_T0)),
                 's_lshl_b32 %s, %s, 13' % (S(S_T0), S(S_RG)),
                 's_add_u32 %s, %s, %s' % (S(S_CSO), S(S_CSO), S(S_T0)),
                 's_lshl_b32 %s, %s, 6' % (S(S_T0), S(S_RG)),
                 's_add_u32 %s, %s, %s' % (S(S_T0), S(S_T0), S(S_ROLE)),
                 's_lshl_b32 %s, %s, 11' % (S(S_T0), S(S_T0)),
                 's_add_u32 %s, %s, %d' % (S(S_FLAGCS), S(S_T0), WS_FLAG + 8 * 128),
                 'v_and_b32 %s, 3, %s' % (V(vT[0]), V(vL)),
                 'v_bfe_u32 %s, %s, 2, 1' % (V(vT[1]), V(vL)),
                 'v_lshlrev_b32 %s, 7, %s' % (V(vT[1]), V(vT[1])),
                 'v_lshl_add_u32 %s, %s, 15, %s' % (V(vPO), V(vT[0]), V(vT[1])),
                 's_lshl_b32 %s, %s, 2' % (S(S_T0), S(S_M)),
                 's_add_u32 %s, %s, %s' % (S(S_T0), S(S_T0), S(S_RG)),
                 's_lshl_b32 %s, %s, 9' % (S(S_T0), S(S_T0)),
                 's_add_u32 %s, %s, %d' % (S(S_T0), S(S_T0), WS_ST),
                 'v_and_b32 %s, 0x1f0, %s' % (V(vT[0]), V(vL16)),
                 'v_add_u32 %s, %s, %s' % (V(vSO), S(S_T0), V(vT[0])),
                 'v_lshrrev_b32 %s, 1, %s' % (V(vT[0]), V(vT[0])),
                 's_lshl_b32 %s, %s, 8' % (S(S_T0), S(S_RG)),
                 's_add_u32 %s, %s, %d' % (S(S_T0), S(S_T0), STAT),
                 'v_add_u32 %s, %s, %s' % (V(vSW), S(S_T0), V(vT[0])),
                 'v_mov_b32 %s, 0' % V(stg + 3)]
    order = [1, 2, 3, 4, 5, 6, 7, 8, 0]

    def cs_load(r):
        return ['s_mov_b32 %s, %d' % (S(S_M0), order[r] * 64 * stride),
                ('buffer_load_dwordx4 %s, %s, %s, %s offen' % (V(csl + 4 * r, 4), V(vCO), S(SRD_W, 4), S(S_M0)), ('csl', r))]
    H[0] += [('buffer_load_dwordx4 %s, %s, %s, %s offen' % (V(xrow, 4), V(vXO), S(SRD_X, 4), S(S_XROW)), 'xrow'),
             ('buffer_load_dwordx4 %s, %s, %s, %s offen offset:512' % (V(xrow + 4, 4), V(vXO), S(SRD_X, 4), S(S_XROW)), 'xrow'),
             ('buffer_load_dword %s, %s, %s, %s offen offset:1024' % (V(xrow + 8), V(vX4), S(SRD_X, 4), S(S_XROW)), 'xrow')]
    for r in range(9):
        H[0 if r < 3 else 2] += cs_load(r)
    H[2] += [('buffer_load_dword %s, %s, %s, 0 offen sc1' % (V(stg + 2), V(vZero), S(SRD_DBG, 4)), 'nld')]
    s_, q_ = stg, stg + 1
    sc = [lambda: g.wait(vm='xrow')]
    for d in range(9):
        sc += ['v_lshlrev_b32 %s, 16, %s' % (V(vT[0]), V(xrow + d)),
               'v_and_b32 %s, %s, %s' % (V(vT[1]), S(S_MASK), V(xrow + d))]
        if d == 0:
            sc += ['v_add_f32 %s, %s, %s' % (V(s_), V(vT[0]), V(vT[1])),
                   'v_mul_f32 %s, %s, %s' % (V(q_), V(vT[0]), V(vT[0]))]
        else:
            sc += ['v_add_f32 %s, %s, %s' % (V(s_), V(s_), V(vT[0])),
                   'v_fmac_f32 %s, %s, %s' % (V(q_), V(vT[0]), V(vT[0])),
                   'v_add_f32 %s, %s, %s' % (V(s_), V(s_), V(vT[1]))]
        sc += ['v_fmac_f32 %s, %s, %s' % (V(q_), V(vT[1]), V(vT[1]))]
    for pat in ('quad_perm:[1,0,3,2]', 'quad_perm:[2,3,0,1]', 'row_half_mirror', 'row_mirror'):
        sc += ['v_add_f32_dpp %s, %s, %s %s row_mask:0xf bank_mask:0xf' % (V(r), V(r), V(r), pat) for r in (s_, q_)]
    sc += ['v_mov_b32 %s, %s' % (V(vT[2]), V(s_)), 'v_mov_b32 %s, %s' % (V(vT[3]), V(q_)),
           'v_permlane16_swap_b32 %s, %s' % (V(s_), V(vT[2])), 'v_permlane16_swap_b32 %s, %s' % (V(q_), V(vT[3])),
           'v_add_f32 %s, %s, %s' % (V(s_), V(s_), V(vT[2])), 'v_add_f32 %s, %s, %s' % (V(q_), V(q_), V(vT[3])),
           'v_mul_f32 %s, 0x%x, %s' % (V(s_), f32(1.0 / 576.0), V(s_)),
           'v_mul_f32 %s, 0x%x, %s' % (V(q_), f32(1.0 / 576.0), V(q_)),
           'v_fma_f32 %s, -%s, %s, %s' % (V(q_), V(s_), V(s_), V(q_)),
           'v_max_f32 %s, 0, %s' % (V(q_), V(q_)),
           'v_add_f32 %s, 0x%x, %s' % (V(q_), f32(1e-5), V(q_))]

    def nonce():
        u = uid()
        g.wait(vm='nld')
        op('s_mov_b32 %s, 0' % S(S_M1))
        g.fence()
        g.label('L_nl%d' % u)
        op('v_readfirstlane_b32 %s, %s' % (S(S_NONCE), V(stg + 2)))
        op('s_add_u32 %s, %s, 1' % (S(S_M1), S(S_M1)))
        op('s_cmp_lg_u32 %s, 0' % S(S_NONCE))
        op('s_cbranch_scc1 L_nw%d' % u)
        op('s_cmp_ge_u32 %s, %d' % (S(S_M1), 1 << 20))
        op('s_cbranch_scc1 L_nw%d' % u)
        g.raw('    buffer_load_dword %s, %s, %s, 0 offen sc1' % (V(stg + 2), V(vZero), S(SRD_DBG, 4)))
        g.raw('    s_waitcnt vmcnt(0)')
        op('s_branch L_nl%d' % u)
        g.label('L_nw%d' % u)
        g.fence()
        op('s_not_b32 %s, %s' % (S(S_NN), S(S_NONCE)))
    H[1] += []
    H[3] += sc
    H[4] += [nonce, 's_mov_b32 exec_lo, 1', 's_mov_b32 exec_hi, 1',
                  ('buffer_store_dwordx4 %s, %s, %s, %s offen sc1' % (V(stg, 4), V(vSP), S(SRD_WS, 4), S(S_STPUB)), 'sts'),
                  's_mov_b64 exec, -1']
    for r in range(9):
        c = [lambda r=r: g.wait(vm=('csl', r))]
        for d in range(4):
            c += unpack_add(csa + 2 * d, csl + 4 * r + d, vT[0 + 2 * (d & 1)], vT[1 + 2 * (d & 1)], first=(r == 0))
        H[4 + (r + 1) // 4] += c
    H[6] += ['s_mov_b32 exec_hi, 0x%x' % ((1 << (U // 4 - 32)) - 1),
             ('ds_write_b128 %s, %s' % (V(vCW1), V(csa, 4)), 'csw'),
             ('ds_write_b128 %s, %s offset:16' % (V(vCW1), V(csa + 4, 4)), 'csw'),
             's_mov_b32 exec_hi, -1']
    HW[7][1].append('csw')
    HW[8][1].append('csw')
    H[7] = [('ds_read_b128 %s, %s offset:%d' % (V(csl + 4 * k, 4), V(vCR1), CP * k), 'csr0') for k in range(4)] + H[7]
    H[7] += [lambda: g.wait(lg='csr0')]
    for r in range(4):
        H[7] += ['v_add_f32 %s, %s, %s' % (V(csl + r), V(csl + r), V(csl + 4 + r)),
                 'v_add_f32 %s, %s, %s' % (V(csl + 8 + r), V(csl + 8 + r), V(csl + 12 + r))]
    H[7] += ['v_add_f32 %s, %s, %s' % (V(csl + r), V(csl + r), V(csl + 8 + r)) for r in range(4)]
    H[7] += [('buffer_store_dwordx4 %s, %s, %s, %s offen sc1' % (V(csl, 4), V(vCS), S(SRD_WS, 4), S(S_CSPUB)), 'css')]
    H[9] += [lambda: g.wait(vm='css')] + flag_store_code(vP, vZero, S_FLAGOWN, 1, 8 * 128)
    E = cfg.early
    H[12 - E] += [('buffer_load_dwordx4 %s, %s, %s, 0 offen sc1' % (V(xrow, 4), V(vSO), S(SRD_WS, 4)), 'stl'),
              lambda: poll_issue(g, vP, vPO, S_FLAGCS)]

    def cons():
        poll_check(g, vP, vPO, S_FLAGCS, 1)
        for k in range(4):
            op('s_add_u32 %s, %s, %d' % (S(S_M0), S(S_CSO), 2048 * k))
            for h in range(2):
                op('buffer_load_dwordx4 %s, %s, %s, %s offen offset:%d sc1' % (V(csl + 8 * k + 4 * h, 4), V(vL16), S(SRD_WS, 4), S(S_M0), 1024 * h), 'csg')
        u = uid()
        op('s_mov_b32 %s, 0' % S(S_M1))
        g.fence()
        g.label('L_st%d' % u)
        op('v_cmp_ne_u32 vcc, %s, %s' % (S(S_NONCE), V(xrow + 2)))
        op('s_add_u32 %s, %s, 1' % (S(S_M1), S(S_M1)))
        op('s_nop 0')
        op('s_cmp_eq_u64 vcc, 0')
        op('s_cbranch_scc1 L_stx%d' % u)
        op('s_cmp_ge_u32 %s, %d' % (S(S_M1), 1 << 20))
        op('s_cbranch_scc1 L_stx%d' % u)
        g.raw('    buffer_load_dwordx4 %s, %s, %s, 0 offen sc1' % (V(xrow, 4), V(vSO), S(SRD_WS, 4)))
        g.raw('    s_waitcnt vmcnt(0)')
        op('s_branch L_st%d' % u)
        g.label('L_stx%d' % u)
        g.fence()
        op('ds_write_b64 %s, %s' % (V(vSW), V(xrow, 2)), 'pub')
    H[14 - E] += [cons]
    H[16 - E] += [lambda: g.wait(vm='csg')]
    H[16 - E] += ['v_add_f32 %s, %s, %s' % (V(csl + r), V(csl + r), V(csl + 16 + r)) for r in range(16)]
    H[16 - E] += ['v_add_f32 %s, %s, %s' % (V(csl + r), V(csl + r), V(csl + 8 + r)) for r in range(8)]
    H[16 - E] += [('ds_write_b128 %s, %s' % (V(hv['vCW2']), V(csl, 4)), 'pub'),
              's_mov_b32 exec_lo, 0x%x' % (0xffffffff if nq - 64 >= 32 else (1 << (nq - 64)) - 1),
              's_mov_b32 exec_hi, 0x%x' % ((1 << max(nq - 96, 0)) - 1),
              ('ds_write_b128 %s, %s offset:1024' % (V(hv['vCW2']), V(csl + 4, 4)), 'pub'),
              's_mov_b64 exec, -1']
    HW[17 - E][1].append('pub')
    HW[15 - E][1].append('pub')


def corr_code(g, vL16, t5, creg, st2, vRstd, vBc, Ac, acc1, nt, U, CSW, CP, STAT, B1L, vb):
    rd = ['v_bfe_u32 %s, %s, 4, 5' % (V(t5[1]), V(vL16)),
          'v_lshrrev_b32 %s, 9, %s' % (V(t5[0]), V(vL16)),
          'v_mul_u32_u24 %s, %d, %s' % (V(t5[0]), 2 * CP, V(t5[0])),
          'v_lshl_add_u32 %s, %s, 2, %s' % (V(t5[0]), V(t5[1]), V(t5[0])),
          's_mul_i32 %s, %s, %d' % (S(S_T0), S(S_CH), U * 4),
          's_add_u32 %s, %s, %d' % (S(S_T0), S(S_T0), CSW),
          'v_add_u32 %s, %s, %s' % (V(t5[0]), S(S_T0), V(t5[0])),
          's_lshl_b32 %s, %s, 8' % (S(S_T0), S(S_RG)),
          's_add_u32 %s, %s, %d' % (S(S_T0), S(S_T0), STAT),
          'v_lshlrev_b32 %s, 3, %s' % (V(t5[2]), V(t5[1])),
          'v_add_u32 %s, %s, %s' % (V(t5[2]), S(S_T0), V(t5[2])),
          ('ds_read_b64 %s, %s' % (V(st2, 2), V(t5[2])), 'crd')]
    for t in range(nt):
        for k in range(2):
            rd.append(('ds_read_b32 %s, %s offset:%d' % (V(creg[t] + k), V(t5[0]), CP * k + 128 * t), 'crd'))
    if B1L is not None:
        rd += ['s_mul_i32 %s, %s, 384' % (S(S_T0), S(S_CH)),
               's_add_u32 %s, %s, %d' % (S(S_T0), S(S_T0), B1L),
               'v_lshlrev_b32 %s, 1, %s' % (V(t5[1]), V(t5[1])),
               'v_add_u32 %s, %s, %s' % (V(vb), S(S_T0), V(t5[1]))]
    c = [lambda: g.wait(lg='crd')] + bcorr_code(vL16, t5, st2, vRstd, vBc)
    c += ['v_add_f32 %s, %s, %s' % (V(creg[t]), V(creg[t]), V(creg[t] + 1)) for t in range(nt)]
    if B1L is not None:
        c += [('ds_read_u16 %s, %s offset:%d' % (V(creg[t] + 1), V(vb), 64 * t), 'b1r') for t in range(nt)]
    for t in range(nt):
        a = acorr_code(t5, creg[t], None if B1L is None else creg[t] + 1, Ac)
        if t == 0 and B1L is not None:
            a.insert(7, lambda: g.wait(lg='b1r'))
        c += a
        c.append('v_mfma_f32_32x32x16_bf16 %s, %s, %s, %s' % (V(acc1[t], 16), V(Ac, 4), V(vBc, 4), V(acc1[t], 16)))
    return rd, c


def gen_main(cfg):
    g = Gen()
    name = NAME + '_kernel'
    g.raw('.globl %s' % name)
    g.raw('.p2align 8')
    g.raw('.type %s,@function' % name)
    g.label(name)
    op = g.op
    op('s_cmp_ge_u32 s2, 256')
    op('s_cbranch_scc1 L_exit')
    op('s_load_dwordx4 %s, s[0:1], 0' % S(S_KA, 4))
    op('s_load_dwordx4 %s, s[0:1], 32' % S(S_KA + 8, 4))
    op('s_load_dwordx2 %s, s[0:1], 16' % S(S_KA + 4, 2))
    op('s_load_dwordx8 %s, s[0:1], 48' % S(S_KA + 12, 8))
    op('s_load_dwordx2 %s, s[0:1], 80' % S(S_KA + 20, 2))
    if cfg.stamps:
        op('s_memtime %s' % S(S_STAMP, 2))
    op('s_memrealtime %s' % S(S_KA + 22, 2))
    op('v_lshrrev_b32 v2, 6, v0')
    op('v_and_b32 v3, 63, v0')
    op('v_readfirstlane_b32 %s, v2' % S(S_WV))
    op('v_lshlrev_b32 v1, 4, v3')
    op('s_and_b32 %s, s2, 3' % S(S_S))
    op('s_bfe_u32 %s, s2, 0x20003' % S(S_R))
    op('s_lshr_b32 %s, s2, 6' % S(S_T2))
    op('s_bfe_u32 %s, s2, 0x10002' % S(S_T0))
    op('s_bfe_u32 %s, s2, 0x10005' % S(S_T1))
    op('s_lshl_b32 %s, %s, 2' % (S(S_M), S(S_T2)))
    op('s_lshl_b32 %s, %s, 1' % (S(S_T0), S(S_T0)))
    op('s_add_u32 %s, %s, %s' % (S(S_M), S(S_M), S(S_T0)))
    op('s_add_u32 %s, %s, %s' % (S(S_M), S(S_M), S(S_T1)))
    op('s_lshl_b32 %s, %s, 1' % (S(S_T2), S(S_T2)))
    op('s_add_u32 %s, %s, %s' % (S(S_BLK), S(S_T2), S(S_T1)))
    op('s_and_b32 %s, %s, 3' % (S(S_RG), S(S_WV)))
    op('s_lshr_b32 %s, %s, 2' % (S(S_CH), S(S_WV)))
    op('s_mov_b32 %s, 0x07060302' % S(S_PERM))
    op('s_mov_b32 %s, 0xffff0000' % S(S_MASK))
    op('s_mul_i32 %s, %s, 3' % (S(S_ROLE), S(S_S)))
    op('s_add_u32 %s, %s, %s' % (S(S_ROLE), S(S_ROLE), S(S_R)))
    op('s_add_u32 %s, %s, 12' % (S(S_T0), S(S_S)))
    op('s_cmp_eq_u32 %s, 3' % S(S_R))
    op('s_cselect_b32 %s, %s, %s' % (S(S_ROLE), S(S_T0), S(S_ROLE)))
    g.fence()
    op('s_cbranch_scc1 L_roleA')
    st0 = (g.vm.copy(), g.lg.copy())
    gen_role_F(g, cfg)
    g.label('L_roleA')
    g.vm, g.lg = st0
    gen_role_A(g, cfg)
    g.label('L_exit')
    op('s_endpgm')
    g.label('L_code_end')
    g.raw('.set CODE_LAST, L_code_end - L_cpf0F - 128')
    g.raw('.set CODE_F, L_roleA - L_tgtF')
    g.raw('.set CODE_A, L_code_end - L_tgtA - 16')
    return g.finalize(), kernel_desc(name, NV, NSGPR)


def compute_common(g, cfg, label):
    op = g.op
    if cfg.cpf and label:
        g.label(label)
        op('s_getpc_b64 %s' % S(S_TS2, 2))
        op('s_bfe_u32 %s, s2, 0x30005' % S(S_M0))
        op('s_lshl_b32 %s, %s, 13' % (S(S_M0), S(S_M0)))
        op('v_lshrrev_b32 v2, 3, v0')
        op('v_lshlrev_b32 v2, 7, v2')
        op('v_add_u32 v2, %s, v2' % S(S_M0))
        op('v_min_u32 v2, CODE_LAST, v2')
        op('global_load_dword v16, v2, %s' % S(S_TS2, 2), 'cpf')
    elif label:
        g.label(label)
    if cfg.stamps:
        op('v_mov_b32 v0, 0')
    g.wait(lg='smem')
    emit(g, srd_code(SRD_WS, S_KA + 20, WS_SIZE))
    op('s_or_b32 %s, %s, 1' % (S(S_MYN), S(S_KA + 22)))
    if cfg.prio:
        op('s_setprio %d' % cfg.prio)


def helper_common(g, cfg, hv):
    op = g.op
    vL, vT, vXD = hv['vL'], hv['vT'], hv['vXD']
    if cfg.hprio:
        op('s_setprio %d' % cfg.hprio)
    if cfg.stamps:
        op('v_mov_b32 v0, 0')
    op('s_lshl_b32 %s, %s, 7' % (S(S_T0), S(S_M)))
    op('s_lshl_b32 %s, %s, 4' % (S(S_T1), S(S_RG)))
    op('s_add_u32 %s, %s, %s' % (S(S_T0), S(S_T0), S(S_T1)))
    op('s_mul_i32 %s, %s, 1152' % (S(S_T0), S(S_T0)))
    op('v_lshrrev_b32 %s, 3, %s' % (V(vT[0]), V(vL)))
    op('v_mul_u32_u24 %s, 1152, %s' % (V(vT[0]), V(vT[0])))
    op('v_add_u32 %s, %s, %s' % (V(vT[0]), S(S_T0), V(vT[0])))
    op('v_and_b32 %s, 7, %s' % (V(vT[1]), V(vL)))
    op('v_lshrrev_b32 %s, 4, %s' % (V(vT[2]), V(vL)))
    op('v_xor_b32 %s, %s, %s' % (V(vT[1]), V(vT[1]), V(vT[2])))
    op('v_lshl_add_u32 %s, %s, 4, %s' % (V(vXD[0]), V(vT[1]), V(vT[0])))
    op('v_xor_b32 %s, 4, %s' % (V(vT[1]), V(vT[1])))
    op('v_lshl_add_u32 %s, %s, 4, %s' % (V(vXD[1]), V(vT[1]), V(vT[0])))
    op('v_add_u32 %s, %d, %s' % (V(vXD[1]), 8 * 1152, V(vXD[1])))
    op('s_lshl_b32 %s, %s, 11' % (S(S_LDSX), S(S_RG)))
    op('s_add_u32 %s, %s, %d' % (S(S_LDSX), S(S_LDSX), XRING))
    op('s_lshr_b32 %s, %s, 1' % (S(S_T3), S(S_RG)))
    op('s_lshl_b32 %s, %s, 4' % (S(S_T3), S(S_T3)))
    op('s_and_b32 %s, %s, 1' % (S(S_T1), S(S_RG)))
    op('s_lshl_b32 %s, %s, 2' % (S(S_T1), S(S_T1)))
    op('s_add_u32 %s, %s, %s' % (S(S_T3), S(S_T3), S(S_T1)))

    def xdma(cx):
        out = []
        for c in range(2):
            for i in range(2):
                out += ['s_add_u32 m0, %s, %d' % (S(S_LDSX), (cx % 2) * 16384 + c * 8192 + i * 1024),
                        's_mov_b32 %s, %d' % (S(S_WOFF), cx * 128 + c * 64 * 1152),
                        ('buffer_load_dwordx4 %s, %s, %s offen lds' % (V(vXD[i]), S(SRD_X, 4), S(S_WOFF)), ('x', cx))]
        return out
    return xdma


def helper_after_first(g, hv):
    op = g.op
    op('v_mov_b32 %s, 0' % V(hv['vZero']))
    emit(g, srd_code(SRD_DBG, S_KA + 18, 256))
    emit(g, srd_code(SRD_WS, S_KA + 20, WS_SIZE))
    op('s_or_b32 %s, %s, 1' % (S(S_MYN), S(S_KA + 22)))
    op('s_lshl_b32 %s, s2, 2' % S(S_T0))
    op('s_add_u32 %s, %s, %s' % (S(S_T0), S(S_T0), S(S_RG)))
    op('s_lshl_b32 %s, %s, 12' % (S(S_T0), S(S_T0)))
    op('v_mov_b32 %s, %s' % (V(hv['vT'][0]), S(S_MYN)))
    op('s_mov_b64 exec, 1')
    op('buffer_store_dword %s, %s, %s, %s offen sc1' % (V(hv['vT'][0]), V(hv['vZero']), S(SRD_DBG, 4), S(S_T0)), 'nst')
    op('s_mov_b64 exec, -1')


def code_prefetch(g, label, target, vtmp, vdst, vL, span_sym):
    return ['s_getpc_b64 %s' % S(S_TS2, 2),
            lambda: g.label(label),
            's_sub_u32 %s, %s, %s-%s' % (S(S_TS2), S(S_TS2), label, target),
            's_subb_u32 %s, %s, 0' % (S(S_TS2 + 1), S(S_TS2 + 1)),
            's_bfe_u32 %s, s2, 0x30005' % S(S_M0),
            's_lshl_b32 %s, %s, 2' % (S(S_M0), S(S_M0)),
            's_add_u32 %s, %s, %s' % (S(S_M0), S(S_M0), S(S_RG)),
            's_lshl_b32 %s, %s, 10' % (S(S_M0), S(S_M0)),
            'v_and_b32 %s, 7, %s' % (V(vtmp), V(vL)),
            'v_lshlrev_b32 %s, 7, %s' % (V(vtmp), V(vtmp)),
            'v_add_u32 %s, %s, %s' % (V(vtmp), S(S_M0), V(vtmp)),
            'v_min_u32 %s, %s, %s' % (V(vtmp), span_sym, V(vtmp)),
            ('global_load_dword %s, %s, %s' % (V(vdst), V(vtmp), S(S_TS2, 2)), 'pf')]


def groups_code():
    return ['s_mov_b32 %s, %s' % (S(S_G[2]), S(S_R)),
            's_add_u32 %s, %s, 1' % (S(S_G[0]), S(S_R)),
            's_cmp_eq_u32 %s, 3' % S(S_G[0]), 's_cselect_b32 %s, 0, %s' % (S(S_G[0]), S(S_G[0])),
            's_add_u32 %s, %s, 1' % (S(S_G[1]), S(S_G[0])),
            's_cmp_eq_u32 %s, 3' % S(S_G[1]), 's_cselect_b32 %s, 0, %s' % (S(S_G[1]), S(S_G[1]))]


def gen_role_F(g, cfg):
    op = g.op
    R, SLOT = 5, 24576
    CSW, CP, STAT, B1L = SCRATCH + 2048, 1536, SCRATCH, SCRATCH + 1024
    OL = XRING
    op('s_cmp_ge_u32 %s, 8' % S(S_WV))
    op('s_cbranch_scc1 L_helperF')
    st0 = (g.vm.copy(), g.lg.copy())
    vL16 = 1
    tr = [2, 3]
    vT = [4, 5, 6, 7]
    vXR = [8, 9, 10, 11]
    vXS, vHX, vH2, vX2 = 12, 13, 14, 15
    ring = 16
    acc1 = [40 + 16 * t for t in range(6)]
    Y = 136
    xf, xf17 = Y, Y + 8
    compute_common(g, cfg, 'L_cpf0F')
    emit(g, xr_code(vL16, vT, vXR))
    emit(g, lane_tr_code(vL16, vT, 384))
    op('s_mul_i32 %s, %s, %d' % (S(S_T0), S(S_CH), 32 * 384))
    op('v_add3_u32 %s, %s, %s, %s' % (V(tr[0]), V(vT[0]), V(vT[1]), S(S_T0)))
    op('v_sub_u32 %s, %s, %s' % (V(vT[0]), V(vT[0]), V(vT[1])))
    op('v_add_u32 %s, %s, %s' % (V(tr[1]), S(S_T0), V(vT[0])))
    op('s_lshl_b32 %s, %s, 11' % (S(S_T0), S(S_WV)))
    op('s_add_u32 %s, %s, %d' % (S(S_T0), S(S_T0), XRING))
    op('v_add_u32 %s, %s, %s' % (V(vXS), S(S_T0), V(vL16)))
    op('s_xor_b32 %s, %s, 4' % (S(S_T0), S(S_WV)))
    op('s_lshl_b32 %s, %s, 11' % (S(S_T0), S(S_T0)))
    op('s_add_u32 %s, %s, %d' % (S(S_T0), S(S_T0), XRING))
    op('v_add_u32 %s, %s, %s' % (V(vHX), S(S_T0), V(vL16)))
    op('v_add_u32 %s, %d, %s' % (V(vH2), (16 % R) * SLOT - XRING, V(vXS)))
    op('v_add_u32 %s, %d, %s' % (V(vX2), (16 % R) * SLOT - XRING, V(vHX)))
    assert (17 % R) == (16 % R) + 1
    emit(g, groups_code())
    op('s_mul_i32 %s, %s, 36' % (S(S_T0), S(S_M)))
    op('s_add_u32 %s, %s, %s' % (S(S_T0), S(S_T0), S(S_ROLE)))
    op('s_lshl_b32 %s, %s, 2' % (S(S_T0), S(S_T0)))
    op('s_add_u32 %s, %s, %s' % (S(S_T0), S(S_T0), S(S_RG)))
    op('s_mul_i32 %s, %s, 6' % (S(S_T0), S(S_T0)))
    op('s_add_u32 %s, %s, %s' % (S(S_T0), S(S_T0), S(S_CH)))
    op('s_lshl_b32 %s, %s, 11' % (S(S_T0), S(S_T0)))
    for z in range(3):
        op('s_mul_i32 %s, %s, %d' % (S(S_PXG[z]), S(S_G[z]), 12 * 49152))
        op('s_add_u32 %s, %s, %s' % (S(S_PXG[z]), S(S_PXG[z]), S(S_T0)))
    g.wait(vm='cpf')
    pipe = Pipe(g, ring, 6, cfg)
    win = Win(tr)
    stages = p1_stages(g, pipe, R, SLOT, 384, 3, tr, win, 6, acc1, xf, xf17, vXR, True)
    creg = [Y + 12 + 2 * t for t in range(6)]
    vBc, Ac = Y + 24, Y + 28
    t5 = vT + [Y + 8]
    rd, cc = corr_code(g, vL16, t5, creg, Y + 10, Y + 9, vBc, Ac, acc1, 6, 192, CSW, CP, STAT, B1L, Y + 28)
    vCA = Y + 29
    NONCE_L = SCRATCH + 1792
    nr = ['v_mov_b32 %s, %d' % (V(Y + 30), NONCE_L), ('ds_read_b32 %s, %s' % (V(Y + 31), V(Y + 30)), 'crd')]
    nr2 = ['v_readfirstlane_b32 %s, %s' % (S(S_NONCE), V(Y + 31)),
           's_lshl_b32 %s, %s, 4' % (S(S_T0), S(S_M)),
           's_add_u32 %s, %s, %s' % (S(S_T0), S(S_T0), S(S_ROLE)),
           's_lshl_b32 %s, %s, 4' % (S(S_T0), S(S_T0)),
           's_add_u32 %s, %s, %s' % (S(S_T0), S(S_T0), S(S_WV)),
           's_lshl_b32 %s, %s, 7' % (S(S_T0), S(S_T0)),
           's_add_u32 %s, %s, %d' % (S(S_FLAGOWN), S(S_T0), WS_FLAG),
           's_not_b32 %s, %s' % (S(S_NN), S(S_NONCE))]
    stages[15 - cfg.early].on_barrier.append(lambda: pipe.side(nr + rd[:12] + ['v_mov_b32 %s, %s' % (V(vCA), V(t5[0]))] + rd[24:] + cc[:18] + nr2 + [Mark('bc')]))
    stages[17 - cfg.early].pre_barrier.append(lambda: pipe.flush_side('bc'))
    stages[17 - cfg.early].on_barrier.append(lambda: (emit(g, [(x[0].replace(', ' + V(t5[0]) + ' ', ', ' + V(vCA) + ' '), x[1]) for x in rd[12:24]]),
                                          pipe.side([cc[0]] + cc[18:])))
    stages[0].hook(0, lambda: stamp(g, cfg, 10))
    stages[13].hook(0, lambda: g.label('L_tgtF'))
    tr2 = [vXR[0], vXR[1]]
    win2 = Win(tr2)
    c2 = lane_tr_code(vL16, vT, 128)
    c2 += ['s_lshl_b32 %s, %s, 6' % (S(S_T0), S(S_CH)),
           'v_xor_b32 %s, %s, %s' % (V(vT[1]), S(S_T0), V(vT[1])),
           's_mul_i32 %s, %s, %d' % (S(S_T2), S(S_CH), 96 * 128),
           's_sub_u32 %s, %d, %s' % (S(S_T1), 96 * 128, S(S_T2)),
           'v_add3_u32 %s, %s, %s, %s' % (V(tr2[0]), V(vT[0]), V(vT[1]), S(S_T2)),
           'v_add3_u32 %s, %s, %s, %s' % (V(tr2[1]), V(vT[0]), V(vT[1]), S(S_T1)), Mark('c2')]
    stages[16].hook(2, lambda: pipe.side(c2))
    if not cfg.early:
        stages[16].hook(6, lambda: setattr(pipe, 'budget', 8))
    accs = [Y, Y + 16]
    plist = [(0, 0), (1, 0), (0, 1), (1, 1), (2, 0), (2, 1)] + [(k, hs) for k in range(3, 8) for hs in range(2)] + \
            [(6, 2), (7, 2), (8, 0), (8, 1), (8, 2)]
    NP2 = len(plist)
    OB = [4, 12]
    vOT, vOA = tr[0], tr[1]
    p2, first_of, last_of = [], {}, {}
    for q, (k, hs) in enumerate(plist):
        s = 18 + q
        st = Stage(s)
        sl = s % R
        w = (sl // 2) * 2 * SLOT
        first_of.setdefault(k, q)
        last_of[k] = q
        if hs < 2:
            for blk in range(2):
                for t in range(3):
                    for e in range(2):
                        st.steps.append(Step(accs[k % 2], acc1[3 * hs + t] + 8 * blk + 4 * e, tr2[blk],
                                             (sl % 2) * SLOT + (32 * t + 16 * e) * 128, 8 * 128,
                                             first=(hs == 0 and blk == 0 and t == 0 and e == 0)))
            st.on_barrier.append(lambda w=w: win2.move(g, w))
        else:
            def oread(q, ks):
                op('ds_read_b128 %s, %s offset:%d' % (V(OB[ks % 2], 4), V(vOA), ks * 4096), ('of', q, ks))
            for ks in range(9):
                st.steps.append(Step(accs[k % 2], OB[ks % 2], vOT, (sl % 2) * SLOT + 16 * ks * 128, 8 * 128,
                                     pre=(lambda q=q, ks=ks: g.wait(lg=('of', q, ks)))))
                if ks + 2 < 9:
                    st.hooks.setdefault(('post', ks), []).append(lambda q=q, ks=ks: oread(q, ks + 2))

            def ob(w=w):
                win2.move(g, w)
                op('v_subrev_u32 %s, %s, %s' % (V(vOT), S(S_T2), V(tr2[0])))
            st.on_barrier.append(ob)
            prev = p2[q - 1]
            n = len(prev.steps)
            if plist[q - 1][1] == 2:
                prev.hooks.setdefault(('post', 7), []).append(lambda q=q: oread(q, 1))
                prev.hooks.setdefault(('post', 8), []).append(lambda q=q: oread(q, 0))
            else:
                prev.hook(n - 3, lambda q=q: (oread(q, 0), oread(q, 1)))
        p2.append(st)
    p2[0].pre_barrier.append(lambda: pipe.flush_side('c2'))
    p2[-1].nobar = True
    p2[-2].nobar = True
    allst = stages + p2

    def epi_code(t):
        a = acc1[t]
        c = []
        for d in range(0, 8, 2):
            c += ['v_max_f32 %s, 0, %s' % (V(a + 2 * d + r), V(a + 2 * d + r)) for r in range(4)]
            c += ['v_mul_f32 %s, %s, %s' % (V(a + 2 * d + r), V(a + 2 * d + r), V(a + 2 * d + r)) for r in range(4)]
            c += ['v_cvt_pk_bf16_f32 %s, %s, %s' % (V(a + d + r), V(a + 2 * d + 2 * r), V(a + 2 * d + 2 * r + 1)) for r in range(2)]
        return c

    def area(t, wr):
        if t % 3 < 2:
            return (vXS if wr else vHX), (t % 3) * 16384
        return (vH2 if wr else vX2), (SLOT if t == 5 else 0)

    def hw_code(t):
        a, off = area(t, True)
        return [('ds_write_b128 %s, %s offset:%d' % (V(a), V(acc1[t] + 4 * e, 4), off + 1024 * e), ('hw', t)) for e in range(2)]

    def hx_read(ts):
        for t in ts:
            a, off = area(t, False)
            for e in range(2):
                op('ds_read_b128 %s, %s offset:%d' % (V(acc1[t] + 8 + 4 * e, 4), V(a), off + 1024 * e), ('hx', t))

    def start_epi():
        stamp(g, cfg, 1)
        pipe.budget = 8
        pipe.side(epi_code(0) + [Mark(('e', 0))])
    stages[17].hook(3, start_epi)
    stages[17].hook(8, lambda: pipe.side(hw_code(0) + epi_code(1) + [Mark(('e', 1))] + hw_code(1) + epi_code(2) + [Mark(('e', 2))] +
                                         hw_code(2) + [Mark('r0')]))
    for t in range(3):
        p2[0].steps[2 * t].pre = (lambda t=t: pipe.flush_side(('e', t)))

    def xbar():
        pipe.flush_side('r0')
        g.wait(lg=('hw', 2))
        pipe.bar('X1')
        hx_read([0, 1, 2])
        stamp(g, cfg, 2)
        pipe.budget = 7
        pipe.side(epi_code(3))
    p2[0].hook(5, xbar)
    p2[0].steps[6].pre = lambda: g.wait(lg=('hx', 2))
    p2[0].hook(8, lambda: pipe.side(hw_code(3) + epi_code(4) + hw_code(4) + epi_code(5) + hw_code(5)))

    def xbar2():
        pipe.flush_side()
        g.wait(lg=('hw', 5))
        pipe.bar('X2')
        hx_read([3, 4, 5])
        pipe.budget = cfg.budget
    p2[2].hook(0, xbar2)
    p2[2].steps[6].pre = lambda: g.wait(lg=('hx', 5))
    p2[4].hook(4, lambda: emit(g, ['s_lshl_b32 %s, %s, 10' % (S(S_T0), S(S_RG)),
                                   's_add_u32 %s, %s, %d' % (S(S_T0), S(S_T0), OL),
                                   'v_add_u32 %s, %s, %s' % (V(vOA), S(S_T0), V(vL16))]))

    def mini_epi(k):
        a0 = accs[k % 2]
        c = ['s_add_u32 %s, %s, %d' % (S(S_T3), S(S_PXG[k // 3]), (k % 3) * 4096)]
        for p in range(2):
            c += ['v_cvt_pk_bf16_f32 %s, %s, %s' % (V(a0 + d), V(a0 + 2 * d), V(a0 + 2 * d + 1)) for d in range(4 * p, 4 * p + 4)]
            c += [('buffer_store_dwordx4 %s, %s, %s, %s offen offset:%d sc1' % (V(a0 + 4 * p, 4), V(vL16), S(SRD_WS, 4), S(S_T3), p * 1024), ('pst', k))]
        return c
    for k in range(8):
        p2[last_of[k] + 1].hook(2, lambda k=k: pipe.side(mini_epi(k) + [Mark(('m', k))]))
        if k + 2 < 9:
            p2[first_of[k + 2]].hook(0, lambda k=k: pipe.flush_side(('m', k)))
    FL = {2: 9, 5: 15}
    for k in FL:
        p2[FL[k]].pre_barrier.append(lambda k=k: g.wait(vm=('pst', k)))
    for z in range(2):
        p2[6 * z + 6].hook(0, lambda z=z: stamp(g, cfg, 3 + z))
    vFP = acc1[0]
    stamp(g, cfg, 0)
    pipe.run(allst)
    stamp(g, cfg, 5)
    pipe.flush_side()
    emit(g, mini_epi(8))
    g.wait(vm=('pst', 7))
    emit(g, flag_store_code(vFP, vL16, S_FLAGOWN, 1))
    g.wait(vm=('pst', 8))
    emit(g, flag_store_code(vFP + 2, vL16, S_FLAGOWN, 2))
    store_stamps(g, cfg, vL16, 2)
    op('s_endpgm')

    g.label('L_helperF')
    g.vm, g.lg = st0
    hv = dict(vL=3, vL16=1, vZero=2, vT=[4, 5, 6, 7, 8, 9], vXD=[10, 11], vP=12, vCO=14, vCW2=15, B=40)
    vL, vT, vZero, vP = 3, hv['vT'], 2, 12
    vW1 = [16, 17, 18]
    vW2, vWO, vPF, vWP, vDm, vOO, vCB, vFO, vVO, vP2, vFO8 = 19, 20, 21, 22, 23, 24, 25, 26, 27, 28, 30
    xdma = helper_common(g, cfg, hv)
    op('s_mul_i32 %s, %s, 3072' % (S(S_LDSW), S(S_RG)))
    op('s_mul_i32 %s, %s, 9216' % (S(S_T0), S(S_T3)))
    op('s_mul_i32 %s, %s, 768' % (S(S_M1), S(S_ROLE)))
    op('s_add_u32 %s, %s, %s' % (S(S_T0), S(S_T0), S(S_M1)))
    for i in range(3):
        emit(g, divmod_code(vL, i, 24, 2731, vT[0], vT[1], vT[2]))
        op('v_bfe_u32 %s, %s, 1, 1' % (V(vT[2]), V(vT[0])))
        op('v_lshlrev_b32 %s, 2, %s' % (V(vT[2]), V(vT[2])))
        op('v_xor_b32 %s, %s, %s' % (V(vT[1]), V(vT[1]), V(vT[2])))
        op('v_and_b32 %s, 4, %s' % (V(vT[2]), V(vT[0])))
        op('v_add_u32 %s, %s, %s' % (V(vT[0]), V(vT[0]), V(vT[2])))
        op('v_mul_u32_u24 %s, 9216, %s' % (V(vT[0]), V(vT[0])))
        op('v_lshl_add_u32 %s, %s, 4, %s' % (V(vT[0]), V(vT[1]), V(vT[0])))
        op('v_add_u32 %s, %s, %s' % (V(vW1[i]), S(S_T0), V(vT[0])))
    g.wait(lg='smem')
    emit(g, srd_code(SRD_X, S_KA, 2048 * 1152))
    emit(g, srd_code(SRD_W, S_KA + 8, 576 * 9216))

    def w1dma(s):
        out = []
        for c in range(2):
            for i in range(3):
                out += ['s_add_u32 m0, %s, %d' % (S(S_LDSW), (s % R) * SLOT + c * 12288 + i * 1024),
                        's_mov_b32 %s, %d' % (S(S_WOFF), s * 32 * 9216 + 384 * c),
                        ('buffer_load_dwordx4 %s, %s, %s offen lds' % (V(vW1[i]), S(SRD_W, 4), S(S_WOFF)), ('W', s))]
        return out

    def w2dma(q):
        k, hs = plist[q]
        s = 18 + q
        out = []
        for c in range(2):
            for i in range(3):
                out.append('s_add_u32 m0, %s, %d' % (S(S_LDSW), (s % R) * SLOT + c * 12288 + i * 1024))
                if hs < 2:
                    out += ['s_add_u32 %s, %s, %d' % (S(S_WOFF), S(S_W2G[k // 3]), (192 * c + 96 * hs + 8 * i) * 1152 + 128 * (k % 3)),
                            ('buffer_load_dwordx4 %s, %s, %s offen lds' % (V(vW2), S(SRD_W2, 4), S(S_WOFF)), ('W', s))]
                else:
                    out += ['s_add_u32 %s, %s, %d' % (S(S_WOFF), S(S_WOP), (96 * c + 8 * i) * 1152 + 128 * (k % 3)),
                            ('buffer_load_dwordx4 %s, %s, %s offen lds' % (V(vW2), S(SRD_WO, 4), S(S_WOFF)), ('W', s))]
        return out
    H, HW = defaultdict(list), {}
    helper_p1(g, cfg, H, HW, hv, R, w1dma, xdma, 192, 9216, CSW, CP, STAT, ['zf'])
    emit(g, H.pop('pre0'))
    stamp(g, cfg, 61)
    helper_after_first(g, hv)
    emit(g, srd_code(SRD_W2, S_KA + 12, 4608 * 1152) + srd_code(SRD_B, S_KA + 10, 4608 * 2) + srd_code(SRD_OUT, S_KA + 16, 2048 * 1152))
    emit(g, srd_code(SRD_B2, S_KA + 14, 1152) + srd_code(SRD_WO, S_KA + 4, 576 * 1152))
    emit(g, ['s_mov_b32 m0, %d' % B1L,
             's_mov_b32 exec_hi, 0xffff',
             ('buffer_load_dwordx4 %s, %s, %s offen lds' % (V(hv['vL16']), S(SRD_B, 4), S(S_M1)), 'b1'),
             's_mov_b32 exec_hi, -1',
             's_lshl_b32 %s, %s, 2' % (S(S_T0), S(S_M)),
             's_add_u32 %s, %s, %s' % (S(S_T0), S(S_T0), S(S_RG)),
             's_mul_i32 %s, %s, 9216' % (S(S_T0), S(S_T0)),
             's_add_u32 %s, %s, %s' % (S(S_T0), S(S_T0), S(S_M1)),
             'v_min_u32 %s, %d, %s' % (V(vT[0]), 47 * 16, V(hv['vL16'])),
             'v_add_u32 %s, %s, %s' % (V(hv['vCO']), S(S_T0), V(vT[0]))])
    ZR = 164
    LD = 40
    SUM = 104
    XB = 140
    vRs = 31
    vP3 = 32
    post = groups_code()
    post += ['s_mul_i32 %s, %s, 24' % (S(S_T0), S(S_RG)),
             'v_lshrrev_b32 %s, 3, %s' % (V(vT[0]), V(vL)),
             'v_add_u32 %s, %s, %s' % (V(vT[0]), S(S_T0), V(vT[0])),
             'v_mul_u32_u24 %s, 1152, %s' % (V(vT[0]), V(vT[0])),
             'v_bfe_u32 %s, %s, 4, 1' % (V(vT[1]), V(vL)),
             'v_lshlrev_b32 %s, 2, %s' % (V(vT[1]), V(vT[1])),
             'v_and_b32 %s, 7, %s' % (V(vT[2]), V(vL)),
             'v_xor_b32 %s, %s, %s' % (V(vT[1]), V(vT[1]), V(vT[2])),
             'v_lshl_add_u32 %s, %s, 4, %s' % (V(vW2), V(vT[1]), V(vT[0])),
             's_mul_i32 %s, %s, %d' % (S(S_T0), S(S_S), 144 * 1152),
             's_mul_i32 %s, %s, 384' % (S(S_T1), S(S_R)),
             's_add_u32 %s, %s, %s' % (S(S_WOP), S(S_T0), S(S_T1)),
             's_mul_i32 %s, %s, %d' % (S(S_T1), S(S_ROLE), 384 * 1152)]
    for z in range(3):
        post += ['s_mul_i32 %s, %s, 384' % (S(S_W2G[z]), S(S_G[z])),
                 's_add_u32 %s, %s, %s' % (S(S_W2G[z]), S(S_W2G[z]), S(S_T1))]
    post += [
             's_lshl_b32 %s, %s, 4' % (S(S_T0), S(S_M)),
             's_lshl_b32 %s, %s, 11' % (S(S_FLAGM), S(S_T0)),
             's_add_u32 %s, %s, %d' % (S(S_FLAGM), S(S_FLAGM), WS_FLAG),
             's_add_u32 %s, %s, 12' % (S(S_T0), S(S_S)),
             's_lshl_b32 %s, %s, 11' % (S(S_T0), S(S_T0)),
             's_add_u32 %s, %s, %s' % (S(S_FLAGO), S(S_T0), S(S_FLAGM)),
             'v_and_b32 %s, 7, %s' % (V(vT[0]), V(vL)),
             'v_lshlrev_b32 %s, 7, %s' % (V(vFO8), V(vT[0])),
             's_lshl_b32 %s, %s, 2' % (S(S_T0), S(S_M)),
             's_add_u32 %s, %s, %s' % (S(S_T0), S(S_T0), S(S_S)),
             's_mul_i32 %s, %s, 36' % (S(S_T0), S(S_T0)),
             's_add_u32 %s, %s, %s' % (S(S_T0), S(S_T0), S(S_RG)),
             's_lshl_b32 %s, %s, 10' % (S(S_T0), S(S_T0)),
             's_add_u32 %s, %s, %d' % (S(S_OB), S(S_T0), WS_O),
             's_mul_i32 %s, %s, 3' % (S(S_T0), S(S_M)),
             's_add_u32 %s, %s, %s' % (S(S_T0), S(S_T0), S(S_R)),
             's_mul_i32 %s, %s, %d' % (S(S_T0), S(S_T0), 12 * 49152),
             's_lshl_b32 %s, %s, 10' % (S(S_T1), S(S_RG)),
             's_add_u32 %s, %s, %s' % (S(S_T0), S(S_T0), S(S_T1)),
             's_mul_i32 %s, %s, 12288' % (S(S_T1), S(S_S)),
             's_add_u32 %s, %s, %s' % (S(S_PXR), S(S_T0), S(S_T1)),
             'v_and_b32 %s, 3, %s' % (V(vT[0]), V(vL)),
             'v_mul_u32_u24 %s, %d, %s' % (V(vFO), 3 * 2048, V(vT[0])),
             's_lshl_b32 %s, %s, 2' % (S(S_T0), S(S_M)),
             's_add_u32 %s, %s, %s' % (S(S_T0), S(S_T0), S(S_S)),
             's_lshl_b32 %s, %s, 5' % (S(S_T0), S(S_T0)),
             'v_and_b32 %s, 31, %s' % (V(vT[0]), V(vL)),
             'v_add_u32 %s, %s, %s' % (V(vT[0]), S(S_T0), V(vT[0])),
             'v_lshlrev_b32 %s, 4, %s' % (V(vT[1]), V(vT[0])),
             'v_add_u32 %s, %d, %s' % (V(vVO), WS_ST + 4, V(vT[1])),
             'v_mul_u32_u24 %s, 1152, %s' % (V(vT[0]), V(vT[0])),
             's_mul_i32 %s, %s, 384' % (S(S_T0), S(S_R)),
             's_lshl_b32 %s, %s, 5' % (S(S_T1), S(S_RG)),
             's_add_u32 %s, %s, %s' % (S(S_T0), S(S_T0), S(S_T1)),
             'v_lshrrev_b32 %s, 5, %s' % (V(vT[1]), V(vL)),
             'v_lshlrev_b32 %s, 4, %s' % (V(vT[1]), V(vT[1])),
             'v_add_u32 %s, %s, %s' % (V(vCB), S(S_T0), V(vT[1])),
             'v_add_u32 %s, %s, %s' % (V(vOO), V(vT[0]), V(vCB)),
             's_lshl_b32 %s, %s, 2' % (S(S_T0), S(S_BLK)),
             's_add_u32 %s, %s, %s' % (S(S_T0), S(S_T0), S(S_RG)),
             's_mul_i32 %s, %s, %d' % (S(S_T1), S(S_T0), 12 * 1152),
             'v_min_u32 %s, 35, %s' % (V(vT[0]), V(vL)),
             'v_mul_u32_u24 %s, 21846, %s' % (V(vT[1]), V(vT[0])),
             'v_lshrrev_b32 %s, 16, %s' % (V(vT[1]), V(vT[1])),
             'v_mul_u32_u24 %s, %d, %s' % (V(vT[1]), 1152 - 384, V(vT[1])),
             'v_lshl_add_u32 %s, %s, 7, %s' % (V(vT[1]), V(vT[0]), V(vT[1])),
             'v_add_u32 %s, %s, %s' % (V(vPF), S(S_T1), V(vT[1])),
             's_mul_i32 %s, %s, 14' % (S(S_T0), S(S_T0)),
             'v_min_u32 %s, 13, %s' % (V(vT[0]), V(vL)),
             'v_add_u32 %s, %s, %s' % (V(vT[0]), S(S_T0), V(vT[0])),
             'v_min_u32 %s, 431, %s' % (V(vT[0]), V(vT[0])),
             'v_mul_u32_u24 %s, 21846, %s' % (V(vT[1]), V(vT[0])),
             'v_lshrrev_b32 %s, 16, %s' % (V(vT[1]), V(vT[1])),
             'v_mul_u32_u24 %s, %d, %s' % (V(vT[1]), 1152 - 384, V(vT[1])),
             'v_lshl_add_u32 %s, %s, 7, %s' % (V(vWP), V(vT[0]), V(vT[1]))]
    H['pre'] += post
    H[7] += ['v_mov_b32 %s, %d' % (V(ZR), NONCE_L), 'v_mov_b32 %s, %s' % (V(ZR + 1), S(S_NONCE)), ('ds_write_b32 %s, %s' % (V(ZR), V(ZR + 1)), 'csw')]
    HW[13][0].append('b1')
    for n in range(0 if cfg.nopf else 3):
        H[6 + 2 * n] += [('buffer_load_dword %s, %s, %s, %s offen' % (V(vDm), V(vPF), S(SRD_W2, 4), S(S_W2G[n])), 'pf')]
    H[10] += [('buffer_load_dword %s, %s, %s, %s offen' % (V(vDm), V(vWP), S(SRD_WO, 4), S(S_WOP)), 'pf')]
    H[10] += code_prefetch(g, 'L_cpfF', 'L_tgtF', hv['vCO'], vDm, vL, 'CODE_F')
    if cfg.touch:
        H[cfg.touch] += ['s_mul_i32 %s, %s, %d' % (S(S_M0), S(S_M), 36 * 49152),
                         'v_and_b32 %s, 1, %s' % (V(vT[0]), V(vL)),
                         'v_mul_u32_u24 %s, %d, %s' % (V(vT[0]), 36 * 49152 - 128, V(vT[0])),
                         ('buffer_load_dword %s, %s, %s, %s offen' % (V(vDm), V(vT[0]), S(SRD_WS, 4), S(S_M0)), 'pf'),
                         ('buffer_load_dword %s, %s, %s, %s offen' % (V(vDm), V(vZero), S(SRD_WS, 4), S(S_OB)), 'pf'),
                         ('buffer_load_dword %s, %s, %s, 0 offen' % (V(vDm), V(vZero), S(SRD_B2, 4)), 'pf'),
                         's_mov_b64 exec, 1',
                         ('buffer_load_dword %s, %s, %s, 0 offen' % (V(vDm), V(vOO), S(SRD_OUT, 4)), 'pf'),
                         's_mov_b64 exec, -1']
    for q in range(NP2):
        s = 18 + q
        HW[s] = ([('W', s)], [])
        at = {21: 19, 22: 21}.get(s, s - (R - 2))
        if s == 22:
            H[at] = w2dma(q) + H[at]
        else:
            H[at] += w2dma(q)
    if cfg.pf2:
        H[17] += [('buffer_load_dword %s, %s, %s, %s offen' % (V(vDm), V(vPF), S(SRD_W2, 4), S(S_W2G[1])), 'pf')]
        H[23] += [('buffer_load_dword %s, %s, %s, %s offen' % (V(vDm), V(vPF), S(SRD_W2, 4), S(S_W2G[2])), 'pf')]
        H[27] += [('buffer_load_dword %s, %s, %s, %s offen' % (V(vDm), V(vWP), S(SRD_WO, 4), S(S_WOP)), 'pf')]
    H[22] += [('buffer_load_dword %s, %s, %s, 0 offen sc1' % (V(vRs), V(vVO), S(SRD_WS, 4)), 'xb')]
    for j in range(3):
        H[22 + j] += [('buffer_load_dwordx4 %s, %s, %s, 0 offen offset:%d' % (V(XB + 4 * j, 4), V(vOO), S(SRD_X, 4), 128 * j), 'xb'),
                      ('buffer_load_dwordx4 %s, %s, %s, 0 offen offset:%d' % (V(XB + 12 + 4 * j, 4), V(vCB), S(SRD_B2, 4), 128 * j), 'xb')]
    H[18] += ['s_lshl_b32 %s, %s, 28' % (S(S_T0), S(S_RG)),
              's_add_u32 %s, %s, %s' % (S(S_FL0), S(S_FL0), S(S_T0)),
              's_lshl_b32 %s, %s, 4' % (S(S_T0), S(S_R)),
              's_add_u32 %s, %s, %s' % (S(S_T0), S(S_T0), S(S_S)),
              's_and_b32 %s, %s, 2' % (S(S_T1), S(S_RG)),
              's_lshl_b32 %s, %s, 1' % (S(S_T1), S(S_T1)),
              's_add_u32 %s, %s, %s' % (S(S_T0), S(S_T0), S(S_T1)),
              's_lshl_b32 %s, %s, 7' % (S(S_T0), S(S_T0)),
              's_add_u32 %s, %s, %s' % (S(S_ZB), S(S_FLAGM), S(S_T0))]
    H[26] += [lambda: g.wait(vm='xb')]
    for j in range(3):
        c = []
        s8 = SUM + 8 * j
        for d in range(4):
            c += unpack_add(s8 + 2 * d, XB + 4 * j + d, vT[0], vT[1], first=True) + unpack_add(s8 + 2 * d, XB + 12 + 4 * j + d, vT[0], vT[1])
        c += ['v_mul_f32 %s, %s, %s' % (V(s8 + r), V(s8 + r), V(vRs)) for r in range(8)]
        c += ['v_permlane32_swap_b32 %s, %s' % (V(s8 + r), V(s8 + 4 + r)) for r in range(4)]
        H[26 + j] += c
    H[29] += ['v_rcp_f32 %s, %s' % (V(vRs), V(vRs))]
    for k in FL:
        H[18 + FL[k]] = flag_store_code(vP3, vZero, S_FL0, k + 1, 12 * 128) + H[18 + FL[k]]

    def src_base(z):
        return S_G[1 - z] if z < 2 else S_G[2]

    S_SB = [S_KVW, S_KVR, S_T2]
    S_SF = [S_CSPUB, S_STPUB, S_XB]

    def ldreg(z, j):
        return [88, 140, 100 + 0][j] if False else (LD + 16 * j if z != 1 else [88, 128, 144][j])

    def rload(z, j, sp):
        return ['s_add_u32 %s, %s, %d' % (S(S_M0), S(S_SB[z]), sp * 3 * 49152 + j * 4096),
                ('buffer_load_dwordx4 %s, %s, %s, %s offen sc1' % (V(ldreg(z, j) + 4 * sp, 4), V(hv['vL16']), S(SRD_WS, 4), S(S_M0)), ('r', z, j))]

    def radd(z, j):
        c = [lambda: g.wait(vm=('r', z, j))]
        for sp in range(4):
            for d in range(4):
                c += unpack_add(SUM + 8 * j + 2 * d, ldreg(z, j) + 4 * sp + d, vT[2 * (d & 1)], vT[2 * (d & 1) + 1])
        return c

    for z in range(3):
        H[19] += ['s_mul_i32 %s, %s, 49152' % (S(S_SB[z]), S(src_base(z))),
                  's_add_u32 %s, %s, %s' % (S(S_SB[z]), S(S_SB[z]), S(S_PXR)),
                  's_lshl_b32 %s, %s, 11' % (S(S_T0), S(src_base(z))),
                  's_add_u32 %s, %s, %s' % (S(S_SF[z]), S(S_FLAGM), S(S_T0))]
    H[29] += [lambda: poll_issue(g, vP, vFO, S_SF[0], 12 * 128)]
    H[31] += [lambda: poll_check(g, vP, vFO, S_SF[0], 3, 12 * 128)] + [rload(0, 0, sp) for sp in range(4)]
    H[33] += [rload(0, 1, sp) for sp in range(4)]
    H[34] += [rload(0, 2, sp) for sp in range(4)] + radd(0, 0)[:33]
    H[35] += [lambda: poll_issue(g, vP, vFO, S_SF[1], 12 * 128)] + radd(0, 0)[33:]
    HA = {}
    H[30] += [lambda: poll_issue(g, vP2, vFO8, S_FLAGO, tag='poll2')]
    od = [lambda: stamp(g, cfg, 60), lambda: poll_check(g, vP2, vFO8, S_FLAGO, 1, tag='poll2'), lambda: stamp(g, cfg, 62),
          's_lshl_b32 %s, %s, 10' % (S(S_T0), S(S_RG))]
    for ks in range(9):
        od += ['s_add_u32 m0, %s, %d' % (S(S_T0), OL + ks * 4096),
               's_add_u32 %s, %s, %d' % (S(S_WOFF), S(S_OB), ks * 4096),
               ('buffer_load_dwordx4 %s, %s, %s offen sc1 lds' % (V(hv['vL16']), S(SRD_WS, 4), S(S_WOFF)), 'od')]
    H[32] = od + H[32]
    HW[34][0].append('od')
    HW[36][0].extend([('W', 37), ('W', 38)])
    for (z, j), b in HA.items():
        H[b] = H[b] + radd(z, j)
    run_helper(g, pipe.events, H, HW)
    stamp(g, cfg, 5)
    poll_check(g, vP, vFO, S_SF[1], 6, 12 * 128)
    emit(g, [rload(1, j, sp) for j in range(3) for sp in range(4)])
    emit(g, radd(0, 1) + radd(0, 2) + radd(1, 0) + radd(1, 1))
    poll_issue(g, vP, vFO, S_ZB)
    emit(g, radd(1, 2))
    stamp(g, cfg, 6)
    poll_check(g, vP, vFO, S_ZB, 1)
    for j in range(2):
        for sp in range(4):
            emit(g, rload(2, j, sp))
    poll_issue(g, vP, vFO, S_ZB)

    def finish(j):
        emit(g, radd(2, j))
        s8 = SUM + 8 * j
        for r in range(8):
            op('v_mul_f32 %s, %s, %s' % (V(s8 + r), V(s8 + r), V(vRs)))
        for d in range(4):
            op('v_cvt_pk_bf16_f32 %s, %s, %s' % (V(s8 + d), V(s8 + 2 * d), V(s8 + 2 * d + 1)))
        op('v_permlane32_swap_b32 %s, %s' % (V(s8), V(s8 + 2)))
        op('v_permlane32_swap_b32 %s, %s' % (V(s8 + 1), V(s8 + 3)))
        op('buffer_store_dwordx4 %s, %s, %s, 0 offen offset:%d' % (V(s8, 4), V(vOO), S(SRD_OUT, 4), 128 * j))
    poll_check(g, vP, vFO, S_ZB, 2)
    stamp(g, cfg, 7)
    for sp in range(4):
        emit(g, rload(2, 2, sp))
    finish(0)
    finish(1)
    finish(2)
    store_stamps(g, cfg, 1, 4)
    op('s_endpgm')


def gen_role_A(g, cfg):
    op = g.op
    R, SLOT, PITCH = 4, 28672, 448
    CSW, CP, STAT, NONCE_L = SCRATCH + 1024, 1792, SCRATCH, 4 * 28672
    P = 328
    KB, VB, QB = 0, 144 * P, 288 * P
    G = 56
    vL16 = 1
    vA8, vA12, vQ8, vQ12 = 8, 9, 10, 11
    op('s_cmp_ge_u32 %s, 8' % S(S_WV))
    op('s_cbranch_scc1 L_helperA')
    st0 = (g.vm.copy(), g.lg.copy())

    def greg(k):
        return G + 4 * (k // 3) + k % 3

    def ppos(Pi):
        sec, pw = divmod(Pi, 72)
        return sec, (pw // 9) * 40 + (pw % 9) * 4

    def qkv_writes(ch, regof, nk, rowoff, kvonly=False):
        for k in range(nk):
            t, q4, pp = k // 8, (k % 8) // 2, k % 2
            Pi = 112 * ch + 16 * t + 4 * q4 + pp
            if Pi >= 216:
                continue
            sec, o0 = ppos(Pi)
            sec1, o1 = ppos(Pi + 2)
            assert sec == sec1 and o1 - o0 in (8, 12)
            if sec == 2:
                assert not kvonly
                a, off = (vQ8 if o1 - o0 == 8 else vQ12), o0
            else:
                a, off = (vA8 if o1 - o0 == 8 else vA12), (KB if sec == 0 else VB) + rowoff * P + o0
            op('ds_write_b32 %s, %s offset:%d' % (V(a), V(regof(k)), off), 'qkvw')
    kvaddr = ['s_lshl_b32 %s, %s, 2' % (S(S_T0), S(S_M)),
              's_add_u32 %s, %s, %s' % (S(S_T0), S(S_T0), S(S_S)),
              's_lshl_b32 %s, %s, 15' % (S(S_T0), S(S_T0)),
              's_add_u32 %s, %s, %d' % (S(S_KVW), S(S_T0), WS_KV),
              's_lshl_b32 %s, %s, 4' % (S(S_T0), S(S_M)),
              's_add_u32 %s, %s, %s' % (S(S_T0), S(S_T0), S(S_ROLE)),
              's_lshl_b32 %s, %s, 11' % (S(S_T0), S(S_T0)),
              's_add_u32 %s, %s, %d' % (S(S_FL0), S(S_T0), WS_FLAG)]
    tr = [2, 2]
    vT = [3, 4, 5, 6, 7]
    vXR = [8, 9, 10, 11]
    vRstd = 12
    ring, xf = 16, 44
    acc1 = [G + 16 * t for t in range(7)]
    compute_common(g, cfg, None)
    emit(g, xr_code(vL16, vT, vXR))
    emit(g, lane_tr_code(vL16, vT, PITCH)[:8])
    op('s_mul_i32 %s, %s, %d' % (S(S_T0), S(S_CH), 32 * PITCH))
    op('v_add_u32 %s, %s, %s' % (V(tr[0]), S(S_T0), V(vT[0])))
    emit(g, kvaddr)
    op('s_mul_i32 %s, %s, %d' % (S(S_T0), S(S_CH), 19 * 1024))
    op('s_add_u32 %s, %s, %s' % (S(S_KVW), S(S_KVW), S(S_T0)))
    op('s_mov_b32 %s, %s' % (S(S_BLK), S(S_WV)))
    pipe = Pipe(g, ring, 7, cfg)
    win = Win([tr[0]])
    stages = p1_stages(g, pipe, R, SLOT, PITCH, 2, tr, win, 7, acc1, xf, None, vXR, False)
    stages[0].hook(0, lambda: stamp(g, cfg, 10))
    creg = [16 + 2 * t for t in range(7)]
    rd, cc = corr_code(g, vL16, vT, creg, 14, vRstd, 52, 32, acc1, 7, 224, CSW, CP, STAT, None, None)
    early = rd[:12] + ['v_mov_b32 v13, %s' % V(vT[0]), 'v_mov_b32 %s, %d' % (V(vT[1]), NONCE_L),
                       ('ds_read_b32 %s, %s' % (V(vT[0]), V(vT[1])), 'crd'), lambda: g.wait(lg='crd'),
                       'v_readfirstlane_b32 %s, %s' % (S(S_NONCE), V(vT[0]))] + cc[1:18] + ['s_not_b32 %s, %s' % (S(S_NN), S(S_NONCE))]
    stages[16].hook(0, lambda: pipe.side(early))
    stages[13].hook(0, lambda: g.label('L_tgtA'))
    stamp(g, cfg, 0)
    pipe.run(stages)
    stamp(g, cfg, 1)
    pipe.flush_side()
    emit(g, [(x[0].replace(', ' + V(vT[0]) + ' ', ', v13 '), x[1]) for x in rd[12:]])
    op('v_bfe_u32 %s, %s, 4, 5' % (V(vT[3]), V(vL16)))
    op('s_lshl_b32 %s, %s, 5' % (S(S_T0), S(S_RG)))
    op('v_add_u32 %s, %s, %s' % (V(vT[3]), S(S_T0), V(vT[3])))
    op('v_mul_u32_u24 %s, %d, %s' % (V(vT[3]), P, V(vT[3])))
    op('v_lshrrev_b32 %s, 9, %s' % (V(vT[4]), V(vL16)))
    op('v_lshl_add_u32 %s, %s, 3, %s' % (V(vA8), V(vT[4]), V(vT[3])))
    op('v_lshl_add_u32 %s, %s, 2, %s' % (V(vA12), V(vT[4]), V(vA8)))
    op('v_add_u32 %s, %d, %s' % (V(vQ8), QB, V(vA8)))
    op('v_add_u32 %s, %d, %s' % (V(vQ12), QB, V(vA12)))
    g.wait(lg='crd')
    pipe.bar('A1')
    emit(g, cc[18:])
    for k in range(56):
        a = G + 2 * k
        op('v_mul_f32 %s, %s, %s' % (V(a), V(a), V(vRstd)))
        op('v_mul_f32 %s, %s, %s' % (V(a + 1), V(a + 1), V(vRstd)))
        op('v_cvt_pk_bf16_f32 %s, %s, %s' % (V(greg(k)), V(a), V(a + 1)))
    op('s_cmp_lg_u32 %s, 3' % S(S_RG))
    g.fence()
    op('s_cbranch_scc1 L_apub_done')
    for gi in range(19):
        op('v_mov_b32 %s, %s' % (V(G + 4 * gi + 3), S(S_NONCE)))
    op('s_mov_b32 exec_lo, 0xffff0000')
    op('s_mov_b32 exec_hi, 0xffff0000')
    for gi in range(19):
        if gi == 6:
            op('s_cmp_eq_u32 %s, 1' % S(S_CH))
            op('s_cbranch_scc1 L_apub_x')
        if gi % 4 == 0:
            op('s_add_u32 %s, %s, %d' % (S(S_T3), S(S_KVW), gi * 1024))
        op('buffer_store_dwordx4 %s, %s, %s, %s offen offset:%d sc1' % (V(G + 4 * gi, 4), V(vL16), S(SRD_WS, 4), S(S_T3), (gi % 4) * 1024), 'gs')
    g.label('L_apub_x')
    op('s_mov_b64 exec, -1')
    g.fence()
    g.label('L_apub_done')
    g.vm.q = []
    op('s_cmp_eq_u32 %s, 1' % S(S_CH))
    g.fence()
    op('s_cbranch_scc1 L_aw1')
    qkv_writes(0, greg, 56, 16)
    g.fence()
    op('s_branch L_aw2')
    g.label('L_aw1')
    qkv_writes(1, greg, 56, 16)
    g.fence()
    g.label('L_aw2')
    g.wait_all(vm=False, lg=True)
    pipe.bar('A2')
    stamp(g, cfg, 2)
    op('s_cmp_eq_u32 %s, 0' % S(S_WV))
    op('s_cbranch_scc1 L_aend')
    g.label('L_attn')
    g.vm.q, g.lg.q = [], []
    stamp(g, cfg, 3)
    kv, qv, lgt = G, 146, 16
    oac = [32, 146]
    vKA, vQA, vOA, vS, vVE = 8, 9, 10, 11, 12
    vZ, vP = 2, 50
    tq = [52, 53, 54, 55]
    op('v_bfe_u32 %s, %s, 4, 3' % (V(vT[0]), V(vL16)))
    op('v_bfe_u32 %s, %s, 7, 1' % (V(vT[1]), V(vL16)))
    op('v_lshrrev_b32 %s, 8, %s' % (V(vT[2]), V(vL16)))
    op('v_lshl_add_u32 %s, %s, 2, %s' % (V(vT[1]), V(vT[2]), V(vT[1])))
    op('s_lshl_b32 %s, %s, 4' % (S(S_T0), S(S_BLK)))
    op('v_add_u32 %s, %s, %s' % (V(vS), S(S_T0), V(vT[1])))
    op('v_mul_u32_u24 %s, %d, %s' % (V(vT[1]), P, V(vS)))
    op('v_mul_u32_u24 %s, 40, %s' % (V(vT[2]), V(vT[0])))
    op('v_add_u32 %s, %s, %s' % (V(vKA), V(vT[1]), V(vT[2])))
    op('v_add_u32 %s, %d, %s' % (V(vQA), QB, V(vKA)))
    for qi in range(2):
        for p in range(5):
            op('ds_read_b64 %s, %s offset:%d' % (V(qv + 10 * qi + 2 * p, 2), V(vQA), qi * 2 * P + 8 * p), 'q')
    NJ = 9
    for j in range(NJ):
        for p in range(5):
            op('ds_read_b64 %s, %s offset:%d' % (V(kv + 10 * j + 2 * p, 2), V(vKA), KB + (18 - 2 * j) * P + 8 * p), ('k', j))
    op('v_mul_u32_u24 %s, 36, %s' % (V(vT[2]), V(vT[0])))
    op('v_add_u32 %s, %s, %s' % (V(vOA), V(vT[1]), V(vT[2])))
    op('v_add_u32 %s, %d, %s' % (V(vOA), QB, V(vOA)))
    op('v_lshlrev_b32 %s, 3, %s' % (V(vT[1]), V(vS)))
    op('v_add_u32 %s, %d, %s' % (V(vT[1]), STAT + 4, V(vT[1])))
    op('ds_read_b32 %s, %s' % (V(vVE), V(vT[1])), 've')
    op('ds_read_b32 %s, %s offset:16' % (V(vVE + 1), V(vT[1])), 've')
    op('v_mov_b32 %s, 0' % V(vZ))
    pairs = []
    for j in range(NJ):
        if j >= 1:
            pairs.append((lgt + (j - 1), 0, j))
        if j < 8:
            pairs.append((lgt + 8 + j, 1, j))
    for r in range(16):
        op('v_mov_b32 %s, 0' % V(lgt + r))
    for j in range(NJ):
        g.wait(lg=('k', j))
        for d in range(9):
            for (lr, qi, jj) in pairs:
                if jj == j:
                    op('v_dot2c_f32_bf16 %s, %s, %s' % (V(lr), V(qv + 10 * qi + d), V(kv + 10 * j + d)))
        for p in range(5):
            op('ds_read_b64 %s, %s offset:%d' % (V(kv + 10 * j + 2 * p, 2), V(vKA), VB + (18 - 2 * j) * P + 8 * p), ('v', j))
    op('s_or_b32 %s, %s, %s' % (S(S_T0), S(S_M), S(S_BLK)))
    op('s_cmp_lg_u32 %s, 0' % S(S_T0))
    g.fence()
    op('s_cbranch_scc1 L_anomask')
    op('v_mov_b32 %s, 0xf149f2ca' % V(vT[0]))
    for qi in range(2):
        for w in range(1, 8):
            lim = 2 * w - 2 * qi
            if lim <= 0:
                continue
            op('v_cmp_gt_u32 vcc, %d, %s' % (lim, V(vS)))
            op('v_cndmask_b32 %s, %s, %s, vcc' % (V(lgt + 8 * qi + w), V(lgt + 8 * qi + w), V(vT[0])))
    g.fence()
    g.label('L_anomask')
    g.wait(lg='ve')
    op('s_mov_b32 %s, 0x%x' % (S(S_T0), f32(18 ** -0.5 * math.log2(math.e))))
    for qi in range(2):
        L = lgt + 8 * qi
        m_, s_ = vT[0 + 2 * qi], vT[1 + 2 * qi]
        op('v_max3_f32 %s, %s, %s, %s' % (V(m_), V(L), V(L + 1), V(L + 2)))
        op('v_max3_f32 %s, %s, %s, %s' % (V(m_), V(m_), V(L + 3), V(L + 4)))
        op('v_max3_f32 %s, %s, %s, %s' % (V(m_), V(m_), V(L + 5), V(L + 6)))
        op('v_max_f32 %s, %s, %s' % (V(m_), V(m_), V(L + 7)))
        for w in range(8):
            op('v_sub_f32 %s, %s, %s' % (V(L + w), V(L + w), V(m_)))
        for w in range(8):
            op('v_mul_f32 %s, %s, %s' % (V(L + w), S(S_T0), V(L + w)))
        for w in range(8):
            op('v_exp_f32 %s, %s' % (V(L + w), V(L + w)))
        op('v_add_f32 %s, %s, %s' % (V(s_), V(L), V(L + 1)))
        for w in range(2, 8):
            op('v_add_f32 %s, %s, %s' % (V(s_), V(s_), V(L + w)))
        op('v_rcp_f32 %s, %s' % (V(s_), V(s_)))
        op('v_mul_f32 %s, %s, %s' % (V(s_), V(s_), V(vVE + qi)))
        for w in range(8):
            op('v_mul_f32 %s, %s, %s' % (V(L + w), V(L + w), V(s_)))
    for j in range(NJ):
        g.wait(lg=('v', j))
        for d in range(9):
            t0, t1 = tq[2 * (d & 1)], tq[2 * (d & 1) + 1]
            op('v_lshlrev_b32 %s, 16, %s' % (V(t0), V(kv + 10 * j + d)))
            op('v_and_b32 %s, %s, %s' % (V(t1), S(S_MASK), V(kv + 10 * j + d)))
            for (lr, qi, jj) in pairs:
                if jj != j:
                    continue
                first = (j == 1) if qi == 0 else (j == 0)
                ins = 'v_mul_f32' if first else 'v_fmac_f32'
                op('%s %s, %s, %s' % (ins, V(oac[qi] + 2 * d), V(lr), V(t0)))
                op('%s %s, %s, %s' % (ins, V(oac[qi] + 2 * d + 1), V(lr), V(t1)))
    for qi in range(2):
        for d in range(9):
            op('v_cvt_pk_bf16_f32 %s, %s, %s' % (V(oac[qi] + d), V(oac[qi] + 2 * d), V(oac[qi] + 2 * d + 1)))
            op('ds_write_b32 %s, %s offset:%d' % (V(vOA), V(oac[qi] + d), qi * 2 * P + 4 * d), 'ow')
    stamp(g, cfg, 4)
    op('v_bfe_u32 %s, %s, 4, 4' % (V(vT[0]), V(vL16)))
    op('v_bfe_u32 %s, %s, 8, 1' % (V(vT[1]), V(vL16)))
    op('v_lshrrev_b32 %s, 9, %s' % (V(vT[2]), V(vL16)))
    op('s_lshl_b32 %s, %s, 4' % (S(S_T0), S(S_BLK)))
    op('v_add_u32 %s, %s, %s' % (V(vT[3]), S(S_T0), V(vT[0])))
    op('v_mul_u32_u24 %s, %d, %s' % (V(vT[3]), P, V(vT[3])))
    op('v_lshl_add_u32 %s, %s, 3, %s' % (V(vT[3]), V(vT[1]), V(vT[3])))
    op('v_lshl_add_u32 %s, %s, 5, %s' % (V(vT[3]), V(vT[2]), V(vT[3])))
    op('v_add_u32 %s, %d, %s' % (V(vT[3]), QB, V(vT[3])))
    op('s_and_b32 %s, %s, 1' % (S(S_T0), S(S_BLK)))
    op('s_lshl_b32 %s, %s, 8' % (S(S_T0), S(S_T0)))
    op('v_lshlrev_b32 %s, 4, %s' % (V(vT[0]), V(vT[0])))
    op('v_lshl_add_u32 %s, %s, 9, %s' % (V(vT[0]), V(vT[1]), V(vT[0])))
    op('v_lshl_add_u32 %s, %s, 12, %s' % (V(vT[0]), V(vT[2]), V(vT[0])))
    op('v_add_u32 %s, %s, %s' % (V(vT[0]), S(S_T0), V(vT[0])))
    op('s_lshl_b32 %s, %s, 2' % (S(S_T0), S(S_M)))
    op('s_add_u32 %s, %s, %s' % (S(S_T0), S(S_T0), S(S_S)))
    op('s_mul_i32 %s, %s, 36' % (S(S_T0), S(S_T0)))
    op('s_lshr_b32 %s, %s, 1' % (S(S_T1), S(S_BLK)))
    op('s_add_u32 %s, %s, %s' % (S(S_T0), S(S_T0), S(S_T1)))
    op('s_lshl_b32 %s, %s, 10' % (S(S_T0), S(S_T0)))
    op('s_add_u32 %s, %s, %d' % (S(S_T1), S(S_T0), WS_O))
    op('s_lshl_b32 %s, %s, 7' % (S(S_T0), S(S_BLK)))
    op('s_add_u32 %s, %s, %s' % (S(S_FL0), S(S_FL0), S(S_T0)))
    g.wait_all(vm=False, lg=True)
    for i in range(5):
        for h in range(2):
            op('ds_read_b64 %s, %s offset:%d' % (V(kv + 4 * i + 2 * h, 2), V(vT[3]), 64 * i + 16 * h), ('or', i))
    for i in range(5):
        g.wait(lg=('or', i))
        op('s_add_u32 %s, %s, %d' % (S(S_T3), S(S_T1), i * 8192))
        if i == 4:
            op('s_mov_b32 exec_hi, 0')
        op('buffer_store_dwordx4 %s, %s, %s, %s offen sc1' % (V(kv + 4 * i, 4), V(vT[0]), S(SRD_WS, 4), S(S_T3)), 'os')
        if i == 4:
            op('s_mov_b32 exec_hi, -1')
    g.wait_all(vm=True, lg=True)
    emit(g, flag_store_code(vP, vZ, S_FL0, 1))
    stamp(g, cfg, 5)
    g.fence()
    g.label('L_aend')
    store_stamps(g, cfg, vL16, 3)
    op('s_endpgm')

    g.label('L_helperA')
    g.vm, g.lg = st0
    hv = dict(vL=3, vL16=1, vZero=2, vT=[4, 5, 6, 7, 12, 13], vXD=[14, 15], vP=16, vCO=18, vCW2=19, B=56)
    vL, hT = 3, hv['vT']
    vW1 = [[20 + 4 * c + i for i in range(4)] for c in range(2)]
    vDm = 28
    xdma = helper_common(g, cfg, hv)
    op('s_mul_i32 %s, %s, 3584' % (S(S_LDSW), S(S_RG)))
    op('s_mul_i32 %s, %s, 3456' % (S(S_T0), S(S_T3)))
    op('s_mul_i32 %s, %s, 288' % (S(S_M1), S(S_S)))
    op('s_add_u32 %s, %s, %s' % (S(S_T0), S(S_T0), S(S_M1)))
    op('v_mov_b32 %s, 2016' % V(hT[3]))
    op('v_mov_b32 %s, -576' % V(hT[4]))

    def colbyte(dst, vu):
        op('v_min_u32 %s, 53, %s' % (V(dst), V(vu)))
        op('v_mov_b32 %s, 1152' % V(hT[2]))
        op('v_cmp_lt_u32 vcc, 17, %s' % V(dst))
        op('v_cndmask_b32 %s, %s, %s, vcc' % (V(hT[2]), V(hT[2]), V(hT[3])))
        op('v_cmp_lt_u32 vcc, 35, %s' % V(dst))
        op('v_cndmask_b32 %s, %s, %s, vcc' % (V(hT[2]), V(hT[2]), V(hT[4])))
        op('v_lshl_add_u32 %s, %s, 4, %s' % (V(dst), V(dst), V(hT[2])))
    for i in range(4):
        emit(g, divmod_code(vL, i, 28, 2341, hT[0], hT[1], hT[2], clamp=(223 if i == 3 else None)))
        op('v_and_b32 %s, 4, %s' % (V(hT[2]), V(hT[0])))
        op('v_add_u32 %s, %s, %s' % (V(hT[0]), V(hT[0]), V(hT[2])))
        op('v_mul_u32_u24 %s, 3456, %s' % (V(hT[0]), V(hT[0])))
        op('v_add_u32 %s, %s, %s' % (V(hT[0]), S(S_T0), V(hT[0])))
        colbyte(hT[5], hT[1])
        op('v_add_u32 %s, %s, %s' % (V(vW1[0][i]), V(hT[0]), V(hT[5])))
        op('v_add_u32 %s, 28, %s' % (V(hT[1]), V(hT[1])))
        colbyte(hT[5], hT[1])
        op('v_add_u32 %s, %s, %s' % (V(vW1[1][i]), V(hT[0]), V(hT[5])))
    g.wait(lg='smem')
    emit(g, srd_code(SRD_X, S_KA, 2048 * 1152))
    emit(g, srd_code(SRD_W, S_KA + 2, 576 * 3456))

    def w1dma(s):
        out = ['s_mov_b32 %s, %d' % (S(S_WOFF), s * 32 * 3456)]
        for c in range(2):
            for i in range(4):
                out.append('s_add_u32 m0, %s, %d' % (S(S_LDSW), (s % R) * SLOT + c * 14336 + i * 1024))
                if i == 3:
                    out.append('s_mov_b32 exec_hi, 0')
                out.append(('buffer_load_dwordx4 %s, %s, %s offen lds' % (V(vW1[c][i]), S(SRD_W, 4), S(S_WOFF)), ('W', s)))
                if i == 3:
                    out.append('s_mov_b32 exec_hi, -1')
        return out
    H, HW = defaultdict(list), {}
    helper_p1(g, cfg, H, HW, hv, R, w1dma, xdma, 224, 3456, CSW, CP, STAT, [])
    emit(g, H.pop('pre0'))
    colbyte(hT[5], vL)
    op('s_lshl_b32 %s, %s, 2' % (S(S_T0), S(S_M)))
    op('s_add_u32 %s, %s, %s' % (S(S_T0), S(S_T0), S(S_RG)))
    op('s_mul_i32 %s, %s, 3456' % (S(S_T0), S(S_T0)))
    op('s_add_u32 %s, %s, %s' % (S(S_T0), S(S_T0), S(S_M1)))
    op('v_add_u32 %s, %s, %s' % (V(hv['vCO']), S(S_T0), V(hT[5])))
    helper_after_first(g, hv)
    H[7] += ['v_mov_b32 %s, %d' % (V(29), NONCE_L), 'v_mov_b32 %s, %s' % (V(30), S(S_NONCE)),
             ('ds_write_b32 v29, v30', 'csw')]
    H[10] += code_prefetch(g, 'L_cpfA', 'L_tgtA', hv['vCO'], vDm, vL, 'CODE_A')
    p1ev = [e for e in pipe.events if isinstance(e, int)]
    run_helper(g, p1ev, H, HW)
    op('s_cmp_lg_u32 %s, 0' % S(S_RG))
    g.fence()
    op('s_cbranch_scc1 L_aend')
    emit(g, kvaddr)
    op('s_sub_u32 %s, %s, %d' % (S(S_KVR), S(S_KVW), 4 * 32768))
    op('s_mov_b32 %s, 0' % S(S_BLK))
    op('v_bfe_u32 v4, v1, 4, 4')
    op('v_mul_u32_u24 v4, %d, v4' % P)
    op('v_lshrrev_b32 v5, 9, v1')
    op('v_lshl_add_u32 %s, v5, 3, v4' % V(vA8))
    op('v_lshl_add_u32 %s, v5, 2, %s' % (V(vA12), V(vA8)))
    g.wait_all()
    op('s_barrier')
    op('s_barrier')
    op('s_mov_b32 exec_lo, 0xffff0000')
    op('s_mov_b32 exec_hi, 0xffff0000')
    op('s_cmp_eq_u32 %s, 0' % S(S_M))
    g.fence()
    op('s_cbranch_scc1 L_ahalo_zero')
    op('s_mov_b32 %s, 0' % S(S_T2))
    g.label('L_ahalo_poll')
    for gi in range(25):
        if gi % 4 == 0:
            op('s_add_u32 %s, %s, %d' % (S(S_T3), S(S_KVR), gi * 1024))
        op('buffer_load_dwordx4 %s, %s, %s, %s offen offset:%d sc1' % (V(G + 4 * gi, 4), V(vL16), S(SRD_WS, 4), S(S_T3), (gi % 4) * 1024), ('gl', gi))
    op('v_mov_b32 v4, 0')
    for gi in range(25):
        g.wait(vm=('gl', gi))
        op('v_xor_b32 v5, %s, %s' % (S(S_NONCE), V(G + 4 * gi + 3)))
        op('v_or_b32 v4, v4, v5')
    op('v_cmp_ne_u32 vcc, 0, v4')
    op('s_add_u32 %s, %s, 1' % (S(S_T2), S(S_T2)))
    op('s_cmp_ge_u32 %s, %d' % (S(S_T2), 1 << 18))
    op('s_cbranch_scc1 L_ahalo_wr')
    op('s_cmp_lg_u64 vcc, 0')
    op('s_cbranch_scc1 L_ahalo_poll')
    g.fence()
    op('s_branch L_ahalo_wr')
    g.label('L_ahalo_zero')
    for i in range(100):
        op('v_mov_b32 %s, 0' % V(G + i))
    g.fence()
    g.label('L_ahalo_wr')
    qkv_writes(0, greg, 56, 0, True)
    qkv_writes(1, lambda k: greg(k) + 76, 16, 0, True)
    op('s_mov_b64 exec, -1')
    g.wait_all(vm=True, lg=True)
    op('s_setprio 3')
    g.fence()
    op('s_branch L_attn')


def build(cfg, path):
    main_txt, main_desc = gen_main(cfg)
    hdr = open('cdna_kernels/%s.s.ref' % NAME).read().split('; Override launch')[0]
    out = hdr
    out += '; @launch grid=(256,1,1) block=(%d,1,1) lds=%d\n' % (64 * NW, LDS_BYTES)
    out += '.amdgcn_target "amdgcn-amd-amdhsa--gfx950"\n.text\n'
    out += main_txt
    out += '.section .rodata,"a"\n' + main_desc + '\n'
    open(path, 'w').write(out)


if __name__ == '__main__':
    cfg = Cfg()
    path = 'cdna_kernels/%s.s' % NAME
    for a in sys.argv[1:]:
        if a.startswith('out='):
            path = a[4:]
        elif '=' in a:
            k, v = a.split('=')
            setattr(cfg, k, int(v))
        else:
            setattr(cfg, a, True)
    build(cfg, path)
    print('wrote', path)
```

```python
import sys, os, struct, math
from collections import deque, defaultdict
sys.path.insert(0, os.path.dirname(os.path.abspath(__file__)))
from asmgen import Gen, RegAlloc, V, S

NAME = 'parallel_sum__sliding_local_dilated__dense_activation_squared_relu__prompt'

WS_PX = 0
WS_KV = WS_PX + 16 * 3 * 12 * 48 * 1024
WS_O = WS_KV + 64 * 32768
WS_CS = WS_O + 16 * 144 * 1024
WS_ST = WS_CS + 256 * 2048
WS_FLAG = WS_ST + 2048 * 16
WS_DBG = WS_FLAG + 2 * 256 * 16 * 128
WS_SIZE = WS_DBG + (2 << 20)

LDS_BYTES = 163840
XRING = 122880
SCRATCH = 155648
NV = 168
NW = 12


def f32(x):
    return struct.unpack('<I', struct.pack('<f', x))[0]


class Cfg:
    stamps = False
    fine = False
    budget = 5
    prio = 2
    cpf = 1
    hprio = 0
    nozf = False
    nopf = False
    touch = 0
    pf2 = 0
    early = 1
    cpre = 1
    prows = 24


def kernel_desc(name, vgpr, sgpr):
    return '\n'.join([
        '.p2align 6',
        '.amdhsa_kernel %s' % name,
        '  .amdhsa_next_free_vgpr %d' % vgpr,
        '  .amdhsa_next_free_sgpr %d' % sgpr,
        '  .amdhsa_accum_offset %d' % ((vgpr + 3) // 4 * 4),
        '  .amdhsa_group_segment_fixed_size 0',
        '  .amdhsa_kernarg_size 88',
        '  .amdhsa_user_sgpr_count 2',
        '  .amdhsa_user_sgpr_kernarg_segment_ptr 1',
        '  .amdhsa_system_sgpr_workgroup_id_x 1',
        '.end_amdhsa_kernel'])


SRD_X, SRD_W, SRD_W2, SRD_WS, SRD_B, SRD_DBG = 4, 8, 12, 16, 20, 24
S_M, S_S, S_R, S_WV, S_RG, S_CH = 28, 29, 30, 31, 32, 33
S_T0, S_T1, S_T2, S_T3 = 34, 35, 36, 37
S_WOFF, S_LDSW, S_LDSX = 38, 40, 41
S_PXR, S_OB, S_KVW, S_KVR = 42, 43, 44, 45
S_NONCE, S_NN = 46, 47
S_ROLE, S_XROW = 48, 49
S_PERM, S_MYN, S_MASK, S_BLK = 50, 51, 52, 53
S_M0, S_M1 = 54, 55
S_KA = 56
S_PXG = [56, 57, 58]
S_W2G = [59, 60, 61]
S_FLAGM, S_ZB, S_WOP, S_XB = 62, 63, 64, 65
SRD_WO, SRD_B2 = 68, 72
S_CSPUB, S_STPUB = 76, 77
SRD_OUT = 80
S_FLAGOWN, S_CSO, S_FLAGCS, S_FLAGO, S_FL0 = 84, 85, 86, 87, 88
S_STAMP, S_TS, S_TS2 = 90, 92, 94
S_G = [96, 97, 98]
NSGPR = 100

_uid = [0]


def uid():
    _uid[0] += 1
    return _uid[0]


def stamp(g, cfg, idx):
    if not cfg.stamps:
        return
    g.op('s_memtime %s' % S(S_TS, 2))
    g.wait(lg='smem')
    g.op('s_sub_u32 %s, %s, %s' % (S(S_TS), S(S_TS), S(S_STAMP)))
    g.op('v_writelane_b32 v0, %s, %d' % (S(S_TS), idx))


def store_stamps(g, cfg, vL16, vt):
    if not cfg.stamps:
        return
    op = g.op
    g.wait_all()
    stamp(g, cfg, 13)
    op('s_memrealtime %s' % S(S_TS, 2))
    g.wait(lg='smem')
    op('v_writelane_b32 v0, %s, 15' % S(S_TS))
    op('v_writelane_b32 v0, %s, 14' % S(S_MYN))
    op('s_mul_i32 %s, s2, %d' % (S(S_T0), NW))
    op('s_add_u32 %s, %s, %s' % (S(S_T0), S(S_T0), S(S_WV)))
    op('s_lshl_b32 %s, %s, 8' % (S(S_T0), S(S_T0)))
    op('s_add_u32 %s, %s, %d' % (S(S_T0), S(S_T0), WS_DBG))
    op('v_lshrrev_b32 %s, 2, %s' % (V(vt), V(vL16)))
    op('buffer_store_dword v0, %s, %s, %s offen' % (V(vt), S(SRD_WS, 4), S(S_T0)))


def srd_code(d, ka, size):
    return ['s_mov_b32 %s, %s' % (S(d), S(ka)), 's_mov_b32 %s, %s' % (S(d + 1), S(ka + 1)),
            's_mov_b32 %s, %d' % (S(d + 2), size), 's_mov_b32 %s, 0x20000' % S(d + 3)]


def emit(g, code):
    for x in code:
        if callable(x):
            x()
        elif isinstance(x, list):
            emit(g, x)
        elif isinstance(x, tuple):
            g.op(x[0], x[1])
        else:
            g.op(x)


class Stage:
    def __init__(self, idx):
        self.idx = idx
        self.steps, self.on_barrier, self.pre_barrier, self.hooks = [], [], [], {}

    def hook(self, n, f):
        self.hooks.setdefault(n, []).append(f)


class Step:
    def __init__(self, acc, b, addr, off, hstride, first=False, pre=None):
        self.acc, self.b, self.addr, self.off, self.hstride, self.first, self.pre = acc, b, addr, off, hstride, first, pre


class Mark:
    def __init__(self, name):
        self.name = name


class Pipe:
    def __init__(self, g, ring, rs, cfg):
        self.g, self.ring, self.rs, self.cfg = g, ring, rs, cfg
        self.qa = deque()
        self.budget, self.done, self.events = cfg.budget, set(), []

    def side(self, code):
        self.qa.extend(code)

    def _pop(self):
        x = self.qa.popleft()
        if isinstance(x, Mark):
            self.done.add(x.name)
            return 0
        emit(self.g, [x])
        return len(x) if isinstance(x, list) else 1

    def fill(self):
        b = self.budget
        while self.qa and b > 0:
            b -= self._pop()

    def flush_side(self, until=None):
        while self.qa and not (until is not None and until in self.done):
            self._pop()
        assert until is None or until in self.done, until

    def bar(self, key):
        g = self.g
        fine = self.cfg.fine and isinstance(key, int)
        if fine:
            g.op('s_memtime %s' % S(S_TS, 2))
        g.op('s_barrier')
        if fine:
            g.wait(lg='smem')
            g.op('s_sub_u32 %s, %s, %s' % (S(S_TS), S(S_TS), S(S_STAMP)))
            g.op('v_writelane_b32 v0, %s, %d' % (S(S_TS), min(55, 16 + key)))
        self.events.append(key)

    def run(self, stages):
        g = self.g
        seq = [(st, n) for st in stages for n in range(len(st.steps))]
        key = uid()

        def read(k):
            st, n = seq[k]
            if n == 0:
                for f in st.pre_barrier:
                    f()
                if not getattr(st, 'nobar', False):
                    self.bar(st.idx)
                for f in st.on_barrier:
                    f()
            sp = st.steps[n]
            r = self.ring + 4 * (k % self.rs)
            for h in range(2):
                g.op('ds_read_b64_tr_b16 %s, %s offset:%d' % (V(r + 2 * h, 2), V(sp.addr), sp.off + h * sp.hstride), ('w', key, k))
        for k in range(self.rs):
            read(k)
        for k, (st, n) in enumerate(seq):
            for f in st.hooks.get(n, []):
                f()
            sp = st.steps[n]
            if sp.pre:
                sp.pre()
            g.wait(lg=('w', key, k))
            c = '0' if sp.first else V(sp.acc, 16)
            g.op('v_mfma_f32_32x32x16_bf16 %s, %s, %s, %s' % (V(sp.acc, 16), V(self.ring + 4 * (k % self.rs), 4), V(sp.b, 4), c))
            for f in st.hooks.get(('post', n), []):
                f()
            if k + self.rs < len(seq):
                read(k + self.rs)
            self.fill()


def run_helper(g, events, H, HW):
    emit(g, H.get('pre', []))
    emit(g, H.get('pre1', []))
    for key in events:
        vm, lg = HW.get(key, ([], []))
        g.wait(vm=vm if vm else None, lg=lg if lg else None)
        g.op('s_barrier')
        emit(g, H.get(key, []))


def divmod_code(vL, i, units, magic, vr, vp, vtmp, clamp=None):
    c = ['v_add_u32 %s, %d, %s' % (V(vp), 64 * i, V(vL))]
    if clamp is not None:
        c.append('v_min_u32 %s, %d, %s' % (V(vp), clamp, V(vp)))
    c += ['v_mul_u32_u24 %s, %d, %s' % (V(vr), magic, V(vp)),
          'v_lshrrev_b32 %s, 16, %s' % (V(vr), V(vr)),
          'v_mul_u32_u24 %s, %d, %s' % (V(vtmp), units, V(vr)),
          'v_sub_u32 %s, %s, %s' % (V(vp), V(vp), V(vtmp))]
    return c


def lane_tr_code(vL16, vT, pitch):
    return ['v_lshrrev_b32 %s, 9, %s' % (V(vT[0]), V(vL16)),
            'v_bfe_u32 %s, %s, 6, 2' % (V(vT[1]), V(vL16)),
            'v_lshl_add_u32 %s, %s, 2, %s' % (V(vT[0]), V(vT[0]), V(vT[1])),
            'v_mul_u32_u24 %s, %d, %s' % (V(vT[0]), pitch, V(vT[0])),
            'v_bfe_u32 %s, %s, 8, 1' % (V(vT[2]), V(vL16)),
            'v_lshl_add_u32 %s, %s, 5, %s' % (V(vT[0]), V(vT[2]), V(vT[0])),
            'v_bfe_u32 %s, %s, 4, 2' % (V(vT[2]), V(vL16)),
            'v_lshl_add_u32 %s, %s, 3, %s' % (V(vT[0]), V(vT[2]), V(vT[0])),
            'v_bfe_u32 %s, %s, 7, 1' % (V(vT[1]), V(vL16)),
            'v_lshlrev_b32 %s, 6, %s' % (V(vT[1]), V(vT[1]))]


def xr_code(vL16, vT, vXR):
    c = ['v_bfe_u32 %s, %s, 4, 5' % (V(vT[0]), V(vL16)),
         'v_lshrrev_b32 %s, 9, %s' % (V(vT[1]), V(vL16)),
         'v_bfe_u32 %s, %s, 5, 3' % (V(vT[2]), V(vL16)),
         'v_xor_b32 %s, %s, %s' % (V(vT[1]), V(vT[1]), V(vT[2])),
         's_lshl_b32 %s, %s, 12' % (S(S_T0), S(S_RG)),
         's_add_u32 %s, %s, %d' % (S(S_T0), S(S_T0), XRING),
         'v_lshlrev_b32 %s, 7, %s' % (V(vT[0]), V(vT[0])),
         'v_add_u32 %s, %s, %s' % (V(vT[0]), S(S_T0), V(vT[0]))]
    for j in range(4):
        c += ['v_xor_b32 %s, %d, %s' % (V(vT[2]), 2 * j, V(vT[1])),
              'v_lshl_add_u32 %s, %s, 4, %s' % (V(vXR[j]), V(vT[2]), V(vT[0]))]
    return c


def flag_store_code(vP, vZero, soff, count, imm=0):
    return ['v_mov_b32 %s, %s' % (V(vP), S(S_NONCE)),
            's_add_u32 %s, %s, %s' % (S(S_M0), S(S_NN), count),
            'v_mov_b32 %s, %s' % (V(vP + 1), S(S_M0)),
            's_mov_b64 exec, 1',
            ('buffer_store_dwordx2 %s, %s, %s, %s offen offset:%d sc1' % (V(vP, 2), V(vZero), S(SRD_WS, 4), S(soff), imm), 'flag'),
            's_mov_b64 exec, -1']


def poll_issue(g, vP, vOff, soff, imm=0, tag='poll'):
    g.op('buffer_load_dwordx2 %s, %s, %s, %s offen offset:%d sc1' % (V(vP, 2), V(vOff), S(SRD_WS, 4), S(soff), imm), tag)


def poll_check(g, vP, vOff, soff, count, imm=0, bound=1 << 20, tag='poll'):
    op = g.op
    u = uid()
    g.wait(vm=tag)
    op('s_mov_b32 %s, 0' % S(S_M1))
    op('s_add_u32 %s, %s, %d' % (S(S_M0), S(S_NN), count))
    g.fence()
    g.label('L_poll%d' % u)
    op('v_xor_b32 %s, %s, %s' % (V(vP), S(S_NONCE), V(vP)))
    op('v_subrev_u32 %s, %s, %s' % (V(vP + 1), S(S_M0), V(vP + 1)))
    op('v_and_b32 %s, -8, %s' % (V(vP + 1), V(vP + 1)))
    op('v_or_b32 %s, %s, %s' % (V(vP), V(vP), V(vP + 1)))
    op('v_cmp_ne_u32 vcc, 0, %s' % V(vP))
    op('s_add_u32 %s, %s, 1' % (S(S_M1), S(S_M1)))
    op('s_nop 0')
    op('s_cmp_eq_u64 vcc, 0')
    op('s_cbranch_scc1 L_pollx%d' % u)
    op('s_cmp_ge_u32 %s, %d' % (S(S_M1), bound))
    op('s_cbranch_scc1 L_pollx%d' % u)
    g.raw('    buffer_load_dwordx2 %s, %s, %s, %s offen offset:%d sc1' % (V(vP, 2), V(vOff), S(SRD_WS, 4), S(soff), imm))
    g.raw('    s_waitcnt vmcnt(0)')
    op('s_branch L_poll%d' % u)
    g.label('L_pollx%d' % u)
    g.fence()


def unpack_add(dst, src, t0, t1, first=False):
    if first:
        return ['v_lshlrev_b32 %s, 16, %s' % (V(dst), V(src)),
                'v_and_b32 %s, %s, %s' % (V(dst + 1), S(S_MASK), V(src))]
    return ['v_lshlrev_b32 %s, 16, %s' % (V(t0), V(src)),
            'v_and_b32 %s, %s, %s' % (V(t1), S(S_MASK), V(src)),
            'v_add_f32 %s, %s, %s' % (V(dst), V(dst), V(t0)),
            'v_add_f32 %s, %s, %s' % (V(dst + 1), V(dst + 1), V(t1))]


def bcorr_code(vL16, t, st2, vRstd, vBc):
    return ['v_rsq_f32 %s, %s' % (V(vRstd), V(st2 + 1)),
            'v_xor_b32 %s, 0x80000000, %s' % (V(t[0]), V(st2)),
            'v_mul_f32 %s, %s, %s' % (V(t[1]), V(st2 + 1), V(vRstd)),
            'v_and_b32 %s, %s, %s' % (V(t[4]), S(S_MASK), V(t[0])),
            'v_sub_f32 %s, %s, %s' % (V(t[2]), V(t[0]), V(t[4])),
            'v_and_b32 %s, %s, %s' % (V(t[4]), S(S_MASK), V(t[2])),
            'v_sub_f32 %s, %s, %s' % (V(t[3]), V(t[2]), V(t[4])),
            'v_perm_b32 %s, %s, %s, %s' % (V(vBc), V(t[2]), V(t[0]), S(S_PERM)),
            'v_perm_b32 %s, %s, %s, %s' % (V(vBc + 1), V(t[3]), V(t[0]), S(S_PERM)),
            'v_and_b32 %s, %s, %s' % (V(t[4]), S(S_MASK), V(t[1])),
            'v_sub_f32 %s, %s, %s' % (V(t[0]), V(t[1]), V(t[4])),
            'v_mov_b32 %s, %s' % (V(vBc + 2), V(vBc)),
            'v_and_b32 %s, %s, %s' % (V(t[4]), S(S_MASK), V(t[0])),
            'v_sub_f32 %s, %s, %s' % (V(t[3]), V(t[0]), V(t[4])),
            'v_perm_b32 %s, %s, %s, %s' % (V(t[4]), V(t[0]), V(t[1]), S(S_PERM)),
            'v_lshrrev_b32 %s, 16, %s' % (V(t[3]), V(t[3])),
            ['v_cmp_gt_u32 vcc, 512, %s' % V(vL16),
             'v_cndmask_b32 %s, %s, %s, vcc' % (V(vBc + 3), V(t[3]), V(t[4]))]]


def acorr_code(t, cs, b3, vAc):
    c = ['v_and_b32 %s, %s, %s' % (V(t[0]), S(S_MASK), V(cs)),
         'v_sub_f32 %s, %s, %s' % (V(t[1]), V(cs), V(t[0])),
         'v_and_b32 %s, %s, %s' % (V(t[0]), S(S_MASK), V(t[1])),
         'v_sub_f32 %s, %s, %s' % (V(t[2]), V(t[1]), V(t[0])),
         'v_perm_b32 %s, %s, %s, %s' % (V(vAc), V(cs), V(cs), S(S_PERM)),
         'v_perm_b32 %s, %s, %s, %s' % (V(vAc + 1), V(cs), V(t[1]), S(S_PERM)),
         'v_perm_b32 %s, %s, %s, %s' % (V(vAc + 2), V(t[1]), V(t[2]), S(S_PERM))]
    if b3 is None:
        c.append('v_mov_b32 %s, 0' % V(vAc + 3))
    else:
        c.append('v_lshl_or_b32 %s, %s, 16, %s' % (V(vAc + 3), V(b3), V(b3)))
    return c


class Win:
    def __init__(self, regs):
        self.regs, self.cur = regs, 0

    def move(self, g, new):
        if new != self.cur:
            for r in self.regs:
                g.op('v_add_u32 %s, %d, %s' % (V(r), new - self.cur, V(r)))
            self.cur = new


def p1_stages(g, pipe, R, SLOT, pitch, wstep, tr, win, nt, acc1, xf, xf17, vXR, tilemajor):
    op = g.op
    stages = []

    def xread(s, e, reg):
        cx, j = s // 2, 2 * (s % 2) + e
        op('ds_read_b128 %s, %s offset:%d' % (V(reg, 4), V(vXR[j]), (cx % 2) * 16384), ('xf', s, e))
    for s in range(18):
        st = Stage(s)
        w = ((s % R) // wstep) * wstep * SLOT
        tm = tilemajor and s == 17
        et = [(e, t) for t in range(nt) for e in range(2)] if tm else [(e, t) for e in range(2) for t in range(nt)]
        for e, t in et:
            b = xf17 if (tm and e == 1) else xf + 4 * e
            st.steps.append(Step(acc1[t], b, tr[t & 1], (s % R) * SLOT - w + 16 * e * pitch + t * 64, 8 * pitch,
                                 first=(s == 0 and e == 0),
                                 pre=((lambda s=s, e=e: g.wait(lg=('xf', s, e))) if t == 0 else None)))

        def ob(s=s, w=w, tm=tm):
            win.move(g, w)
            xread(s, 0, xf)
            if s == 0:
                xread(0, 1, xf + 4)
            if tm:
                xread(s, 1, xf17)
        st.on_barrier.append(ob)
        if s > 0 and not tm:
            st.hook(0, lambda s=s: xread(s, 1, xf + 4))
        stages.append(st)
    return stages


def helper_p1(g, cfg, H, HW, hv, R, w1dma, xdma, U, stride, CSW, CP, STAT, extra_flag_wait):
    op = g.op
    vL, vL16, vZero, vT, vP, vCO, B = hv['vL'], hv['vL16'], hv['vZero'], hv['vT'], hv['vP'], hv['vCO'], hv['B']
    csl, csa, xrow, stg = B, B + 36, B + 44, B + 56
    vXO, vX4, vCW1, vCR1, vCS, vPO, vSO, vSW, vSP = [B + 60 + i for i in range(9)]
    nq = U // 2
    H['pre0'] = xdma(0) + w1dma(0)
    H['pre1'] = w1dma(1) + xdma(1)
    H[0] += w1dma(2)
    for s in range(18):
        HW[s] = ([('W', s)] + ([('x', s // 2)] if s % 2 == 0 else []), [])
        if s % 2 == 0 and s >= 2 and s // 2 + 1 < 9:
            H[s] += xdma(s // 2 + 1)
        ks = list(range(3, R - 1)) if s == 0 else [s + R - 2]
        for k in ks:
            if 3 <= k < 18:
                H[s] += w1dma(k)
    H['pre'] += ['s_lshl_b32 %s, %s, 4' % (S(S_T0), S(S_M)),
                 's_add_u32 %s, %s, %s' % (S(S_T0), S(S_T0), S(S_ROLE)),
                 's_lshl_b32 %s, %s, 2' % (S(S_T1), S(S_T0)),
                 's_add_u32 %s, %s, %s' % (S(S_T1), S(S_T1), S(S_RG)),
                 's_lshl_b32 %s, %s, 1' % (S(S_T1), S(S_T1)),
                 's_mul_i32 %s, %s, 1152' % (S(S_XROW), S(S_T1)),
                 's_lshl_b32 %s, %s, 4' % (S(S_T1), S(S_T1)),
                 's_add_u32 %s, %s, %d' % (S(S_STPUB), S(S_T1), WS_ST),
                 's_lshl_b32 %s, %s, 11' % (S(S_T0), S(S_T0)),
                 's_add_u32 %s, %s, %d' % (S(S_FL0), S(S_T0), WS_FLAG),
                 's_lshl_b32 %s, %s, 7' % (S(S_T0), S(S_RG)),
                 's_add_u32 %s, %s, %s' % (S(S_FLAGOWN), S(S_FL0), S(S_T0)),
                 'v_lshrrev_b32 %s, 5, %s' % (V(vT[0]), V(vL)),
                 'v_lshlrev_b32 %s, 4, %s' % (V(vSP), V(vT[0])),
                 'v_mul_u32_u24 %s, 1152, %s' % (V(vT[0]), V(vT[0])),
                 'v_and_b32 %s, 31, %s' % (V(vT[1]), V(vL)),
                 'v_lshl_add_u32 %s, %s, 4, %s' % (V(vXO), V(vT[1]), V(vT[0])),
                 'v_lshl_add_u32 %s, %s, 2, %s' % (V(vX4), V(vT[1]), V(vT[0])),
                 's_mul_i32 %s, %s, %d' % (S(S_T0), S(S_RG), CP),
                 's_add_u32 %s, %s, %d' % (S(S_T0), S(S_T0), CSW),
                 'v_lshlrev_b32 %s, 1, %s' % (V(vT[0]), V(vL16)),
                 'v_add_u32 %s, %s, %s' % (V(vCW1), S(S_T0), V(vT[0])),
                 'v_add_u32 %s, %s, %s' % (V(hv['vCW2']), S(S_T0), V(vL16)),
                 's_lshl_b32 %s, %s, 10' % (S(S_T0), S(S_RG)),
                 'v_add_u32 %s, %s, %s' % (V(vT[3]), S(S_T0), V(vL16)),
                 'v_min_u32 %s, %d, %s' % (V(vT[0]), (nq - 1) * 16, V(vT[3])),
                 'v_add_u32 %s, %d, %s' % (V(vCR1), CSW, V(vT[0])),
                 'v_cmp_lt_u32 vcc, 2047, %s' % V(vT[3]),
                 'v_mov_b32 %s, 0x7fffff00' % V(vT[4]),
                 'v_cndmask_b32 %s, %s, %s, vcc' % (V(vCS), V(vT[3]), V(vT[4])),
                 's_lshl_b32 %s, %s, 15' % (S(S_CSO), S(S_ROLE)),
                 's_add_u32 %s, %s, %d' % (S(S_CSO), S(S_CSO), WS_CS),
                 's_lshl_b32 %s, %s, 11' % (S(S_T0), S(S_M)),
                 's_add_u32 %s, %s, %s' % (S(S_CSPUB), S(S_CSO), S(S_T0)),
                 's_lshl_b32 %s, %s, 13' % (S(S_T0), S(S_RG)),
                 's_add_u32 %s, %s, %s' % (S(S_CSO), S(S_CSO), S(S_T0)),
                 's_lshl_b32 %s, %s, 6' % (S(S_T0), S(S_RG)),
                 's_add_u32 %s, %s, %s' % (S(S_T0), S(S_T0), S(S_ROLE)),
                 's_lshl_b32 %s, %s, 11' % (S(S_T0), S(S_T0)),
                 's_add_u32 %s, %s, %d' % (S(S_FLAGCS), S(S_T0), WS_FLAG + 8 * 128),
                 'v_and_b32 %s, 3, %s' % (V(vT[0]), V(vL)),
                 'v_bfe_u32 %s, %s, 2, 1' % (V(vT[1]), V(vL)),
                 'v_lshlrev_b32 %s, 7, %s' % (V(vT[1]), V(vT[1])),
                 'v_lshl_add_u32 %s, %s, 15, %s' % (V(vPO), V(vT[0]), V(vT[1])),
                 's_lshl_b32 %s, %s, 2' % (S(S_T0), S(S_M)),
                 's_add_u32 %s, %s, %s' % (S(S_T0), S(S_T0), S(S_RG)),
                 's_lshl_b32 %s, %s, 9' % (S(S_T0), S(S_T0)),
                 's_add_u32 %s, %s, %d' % (S(S_T0), S(S_T0), WS_ST),
                 'v_and_b32 %s, 0x1f0, %s' % (V(vT[0]), V(vL16)),
                 'v_add_u32 %s, %s, %s' % (V(vSO), S(S_T0), V(vT[0])),
                 'v_lshrrev_b32 %s, 1, %s' % (V(vT[0]), V(vT[0])),
                 's_lshl_b32 %s, %s, 8' % (S(S_T0), S(S_RG)),
                 's_add_u32 %s, %s, %d' % (S(S_T0), S(S_T0), STAT),
                 'v_add_u32 %s, %s, %s' % (V(vSW), S(S_T0), V(vT[0])),
                 'v_mov_b32 %s, 0' % V(stg + 3)]
    order = [1, 2, 3, 4, 5, 6, 7, 8, 0]

    def cs_load(r):
        return ['s_mov_b32 %s, %d' % (S(S_M0), order[r] * 64 * stride),
                ('buffer_load_dwordx4 %s, %s, %s, %s offen' % (V(csl + 4 * r, 4), V(vCO), S(SRD_W, 4), S(S_M0)), ('csl', r))]
    H[0] += [('buffer_load_dwordx4 %s, %s, %s, %s offen' % (V(xrow, 4), V(vXO), S(SRD_X, 4), S(S_XROW)), 'xrow'),
             ('buffer_load_dwordx4 %s, %s, %s, %s offen offset:512' % (V(xrow + 4, 4), V(vXO), S(SRD_X, 4), S(S_XROW)), 'xrow'),
             ('buffer_load_dword %s, %s, %s, %s offen offset:1024' % (V(xrow + 8), V(vX4), S(SRD_X, 4), S(S_XROW)), 'xrow')]
    for r in range(9):
        H[0 if r < 3 else 2] += cs_load(r)
    H[2] += [('buffer_load_dword %s, %s, %s, 0 offen sc1' % (V(stg + 2), V(vZero), S(SRD_DBG, 4)), 'nld')]
    s_, q_ = stg, stg + 1
    sc = [lambda: g.wait(vm='xrow')]
    for d in range(9):
        sc += ['v_lshlrev_b32 %s, 16, %s' % (V(vT[0]), V(xrow + d)),
               'v_and_b32 %s, %s, %s' % (V(vT[1]), S(S_MASK), V(xrow + d))]
        if d == 0:
            sc += ['v_add_f32 %s, %s, %s' % (V(s_), V(vT[0]), V(vT[1])),
                   'v_mul_f32 %s, %s, %s' % (V(q_), V(vT[0]), V(vT[0]))]
        else:
            sc += ['v_add_f32 %s, %s, %s' % (V(s_), V(s_), V(vT[0])),
                   'v_fmac_f32 %s, %s, %s' % (V(q_), V(vT[0]), V(vT[0])),
                   'v_add_f32 %s, %s, %s' % (V(s_), V(s_), V(vT[1]))]
        sc += ['v_fmac_f32 %s, %s, %s' % (V(q_), V(vT[1]), V(vT[1]))]
    for pat in ('quad_perm:[1,0,3,2]', 'quad_perm:[2,3,0,1]', 'row_half_mirror', 'row_mirror'):
        sc += ['v_add_f32_dpp %s, %s, %s %s row_mask:0xf bank_mask:0xf' % (V(r), V(r), V(r), pat) for r in (s_, q_)]
    sc += ['v_mov_b32 %s, %s' % (V(vT[2]), V(s_)), 'v_mov_b32 %s, %s' % (V(vT[3]), V(q_)),
           'v_permlane16_swap_b32 %s, %s' % (V(s_), V(vT[2])), 'v_permlane16_swap_b32 %s, %s' % (V(q_), V(vT[3])),
           'v_add_f32 %s, %s, %s' % (V(s_), V(s_), V(vT[2])), 'v_add_f32 %s, %s, %s' % (V(q_), V(q_), V(vT[3])),
           'v_mul_f32 %s, 0x%x, %s' % (V(s_), f32(1.0 / 576.0), V(s_)),
           'v_mul_f32 %s, 0x%x, %s' % (V(q_), f32(1.0 / 576.0), V(q_)),
           'v_fma_f32 %s, -%s, %s, %s' % (V(q_), V(s_), V(s_), V(q_)),
           'v_max_f32 %s, 0, %s' % (V(q_), V(q_)),
           'v_add_f32 %s, 0x%x, %s' % (V(q_), f32(1e-5), V(q_))]

    def nonce():
        u = uid()
        g.wait(vm='nld')
        op('s_mov_b32 %s, 0' % S(S_M1))
        g.fence()
        g.label('L_nl%d' % u)
        op('v_readfirstlane_b32 %s, %s' % (S(S_NONCE), V(stg + 2)))
        op('s_add_u32 %s, %s, 1' % (S(S_M1), S(S_M1)))
        op('s_cmp_lg_u32 %s, 0' % S(S_NONCE))
        op('s_cbranch_scc1 L_nw%d' % u)
        op('s_cmp_ge_u32 %s, %d' % (S(S_M1), 1 << 20))
        op('s_cbranch_scc1 L_nw%d' % u)
        g.raw('    buffer_load_dword %s, %s, %s, 0 offen sc1' % (V(stg + 2), V(vZero), S(SRD_DBG, 4)))
        g.raw('    s_waitcnt vmcnt(0)')
        op('s_branch L_nl%d' % u)
        g.label('L_nw%d' % u)
        g.fence()
        op('s_not_b32 %s, %s' % (S(S_NN), S(S_NONCE)))
    H[1] += []
    H[3] += sc
    H[4] += [nonce, 's_mov_b32 exec_lo, 1', 's_mov_b32 exec_hi, 1',
                  ('buffer_store_dwordx4 %s, %s, %s, %s offen sc1' % (V(stg, 4), V(vSP), S(SRD_WS, 4), S(S_STPUB)), 'sts'),
                  's_mov_b64 exec, -1']
    for r in range(9):
        c = [lambda r=r: g.wait(vm=('csl', r))]
        for d in range(4):
            c += unpack_add(csa + 2 * d, csl + 4 * r + d, vT[0 + 2 * (d & 1)], vT[1 + 2 * (d & 1)], first=(r == 0))
        H[4 + (r + 1) // 4] += c
    H[6] += ['s_mov_b32 exec_hi, 0x%x' % ((1 << (U // 4 - 32)) - 1),
             ('ds_write_b128 %s, %s' % (V(vCW1), V(csa, 4)), 'csw'),
             ('ds_write_b128 %s, %s offset:16' % (V(vCW1), V(csa + 4, 4)), 'csw'),
             's_mov_b32 exec_hi, -1']
    HW[7][1].append('csw')
    HW[8][1].append('csw')
    H[7] = [('ds_read_b128 %s, %s offset:%d' % (V(csl + 4 * k, 4), V(vCR1), CP * k), 'csr0') for k in range(4)] + H[7]
    H[7] += [lambda: g.wait(lg='csr0')]
    for r in range(4):
        H[7] += ['v_add_f32 %s, %s, %s' % (V(csl + r), V(csl + r), V(csl + 4 + r)),
                 'v_add_f32 %s, %s, %s' % (V(csl + 8 + r), V(csl + 8 + r), V(csl + 12 + r))]
    H[7] += ['v_add_f32 %s, %s, %s' % (V(csl + r), V(csl + r), V(csl + 8 + r)) for r in range(4)]
    H[7] += [('buffer_store_dwordx4 %s, %s, %s, %s offen sc1' % (V(csl, 4), V(vCS), S(SRD_WS, 4), S(S_CSPUB)), 'css')]
    H[9] += [lambda: g.wait(vm='css')] + flag_store_code(vP, vZero, S_FLAGOWN, 1, 8 * 128)
    E = cfg.early
    H[12 - E] += [('buffer_load_dwordx4 %s, %s, %s, 0 offen sc1' % (V(xrow, 4), V(vSO), S(SRD_WS, 4)), 'stl'),
              lambda: poll_issue(g, vP, vPO, S_FLAGCS)]

    def cons():
        poll_check(g, vP, vPO, S_FLAGCS, 1)
        for k in range(4):
            op('s_add_u32 %s, %s, %d' % (S(S_M0), S(S_CSO), 2048 * k))
            for h in range(2):
                op('buffer_load_dwordx4 %s, %s, %s, %s offen offset:%d sc1' % (V(csl + 8 * k + 4 * h, 4), V(vL16), S(SRD_WS, 4), S(S_M0), 1024 * h), 'csg')
        u = uid()
        op('s_mov_b32 %s, 0' % S(S_M1))
        g.fence()
        g.label('L_st%d' % u)
        op('v_cmp_ne_u32 vcc, %s, %s' % (S(S_NONCE), V(xrow + 2)))
        op('s_add_u32 %s, %s, 1' % (S(S_M1), S(S_M1)))
        op('s_nop 0')
        op('s_cmp_eq_u64 vcc, 0')
        op('s_cbranch_scc1 L_stx%d' % u)
        op('s_cmp_ge_u32 %s, %d' % (S(S_M1), 1 << 20))
        op('s_cbranch_scc1 L_stx%d' % u)
        g.raw('    buffer_load_dwordx4 %s, %s, %s, 0 offen sc1' % (V(xrow, 4), V(vSO), S(SRD_WS, 4)))
        g.raw('    s_waitcnt vmcnt(0)')
        op('s_branch L_st%d' % u)
        g.label('L_stx%d' % u)
        g.fence()
        op('ds_write_b64 %s, %s' % (V(vSW), V(xrow, 2)), 'pub')
    H[14 - E] += [cons]
    H[16 - E] += [lambda: g.wait(vm='csg')]
    H[16 - E] += ['v_add_f32 %s, %s, %s' % (V(csl + r), V(csl + r), V(csl + 16 + r)) for r in range(16)]
    H[16 - E] += ['v_add_f32 %s, %s, %s' % (V(csl + r), V(csl + r), V(csl + 8 + r)) for r in range(8)]
    H[16 - E] += [('ds_write_b128 %s, %s' % (V(hv['vCW2']), V(csl, 4)), 'pub'),
              's_mov_b32 exec_lo, 0x%x' % (0xffffffff if nq - 64 >= 32 else (1 << (nq - 64)) - 1),
              's_mov_b32 exec_hi, 0x%x' % ((1 << max(nq - 96, 0)) - 1),
              ('ds_write_b128 %s, %s offset:1024' % (V(hv['vCW2']), V(csl + 4, 4)), 'pub'),
              's_mov_b64 exec, -1']
    HW[17 - E][1].append('pub')
    HW[15 - E][1].append('pub')


def corr_code(g, vL16, t5, creg, st2, vRstd, vBc, Ac, acc1, nt, U, CSW, CP, STAT, B1L, vb):
    rd = ['v_bfe_u32 %s, %s, 4, 5' % (V(t5[1]), V(vL16)),
          'v_lshrrev_b32 %s, 9, %s' % (V(t5[0]), V(vL16)),
          'v_mul_u32_u24 %s, %d, %s' % (V(t5[0]), 2 * CP, V(t5[0])),
          'v_lshl_add_u32 %s, %s, 2, %s' % (V(t5[0]), V(t5[1]), V(t5[0])),
          's_mul_i32 %s, %s, %d' % (S(S_T0), S(S_CH), U * 4),
          's_add_u32 %s, %s, %d' % (S(S_T0), S(S_T0), CSW),
          'v_add_u32 %s, %s, %s' % (V(t5[0]), S(S_T0), V(t5[0])),
          's_lshl_b32 %s, %s, 8' % (S(S_T0), S(S_RG)),
          's_add_u32 %s, %s, %d' % (S(S_T0), S(S_T0), STAT),
          'v_lshlrev_b32 %s, 3, %s' % (V(t5[2]), V(t5[1])),
          'v_add_u32 %s, %s, %s' % (V(t5[2]), S(S_T0), V(t5[2])),
          ('ds_read_b64 %s, %s' % (V(st2, 2), V(t5[2])), 'crd')]
    for t in range(nt):
        for k in range(2):
            rd.append(('ds_read_b32 %s, %s offset:%d' % (V(creg[t] + k), V(t5[0]), CP * k + 128 * t), 'crd'))
    if B1L is not None:
        rd += ['s_mul_i32 %s, %s, 384' % (S(S_T0), S(S_CH)),
               's_add_u32 %s, %s, %d' % (S(S_T0), S(S_T0), B1L),
               'v_lshlrev_b32 %s, 1, %s' % (V(t5[1]), V(t5[1])),
               'v_add_u32 %s, %s, %s' % (V(vb), S(S_T0), V(t5[1]))]
    c = [lambda: g.wait(lg='crd')] + bcorr_code(vL16, t5, st2, vRstd, vBc)
    c += ['v_add_f32 %s, %s, %s' % (V(creg[t]), V(creg[t]), V(creg[t] + 1)) for t in range(nt)]
    if B1L is not None:
        c += [('ds_read_u16 %s, %s offset:%d' % (V(creg[t] + 1), V(vb), 64 * t), 'b1r') for t in range(nt)]
    for t in range(nt):
        a = acorr_code(t5, creg[t], None if B1L is None else creg[t] + 1, Ac)
        if t == 0 and B1L is not None:
            a.insert(7, lambda: g.wait(lg='b1r'))
        c += a
        c.append('v_mfma_f32_32x32x16_bf16 %s, %s, %s, %s' % (V(acc1[t], 16), V(Ac, 4), V(vBc, 4), V(acc1[t], 16)))
    return rd, c


def gen_main(cfg):
    g = Gen()
    name = NAME + '_kernel'
    g.raw('.globl %s' % name)
    g.raw('.p2align 8')
    g.raw('.type %s,@function' % name)
    g.label(name)
    op = g.op
    op('s_cmp_ge_u32 s2, 256')
    op('s_cbranch_scc1 L_exit')
    op('s_load_dwordx4 %s, s[0:1], 0' % S(S_KA, 4))
    op('s_load_dwordx4 %s, s[0:1], 32' % S(S_KA + 8, 4))
    op('s_load_dwordx2 %s, s[0:1], 16' % S(S_KA + 4, 2))
    op('s_load_dwordx8 %s, s[0:1], 48' % S(S_KA + 12, 8))
    op('s_load_dwordx2 %s, s[0:1], 80' % S(S_KA + 20, 2))
    if cfg.stamps:
        op('s_memtime %s' % S(S_STAMP, 2))
    op('s_memrealtime %s' % S(S_KA + 22, 2))
    op('v_lshrrev_b32 v2, 6, v0')
    op('v_and_b32 v3, 63, v0')
    op('v_readfirstlane_b32 %s, v2' % S(S_WV))
    op('v_lshlrev_b32 v1, 4, v3')
    op('s_and_b32 %s, s2, 3' % S(S_S))
    op('s_bfe_u32 %s, s2, 0x20003' % S(S_R))
    op('s_lshr_b32 %s, s2, 6' % S(S_T2))
    op('s_bfe_u32 %s, s2, 0x10002' % S(S_T0))
    op('s_bfe_u32 %s, s2, 0x10005' % S(S_T1))
    op('s_lshl_b32 %s, %s, 2' % (S(S_M), S(S_T2)))
    op('s_lshl_b32 %s, %s, 1' % (S(S_T0), S(S_T0)))
    op('s_add_u32 %s, %s, %s' % (S(S_M), S(S_M), S(S_T0)))
    op('s_add_u32 %s, %s, %s' % (S(S_M), S(S_M), S(S_T1)))
    op('s_lshl_b32 %s, %s, 1' % (S(S_T2), S(S_T2)))
    op('s_add_u32 %s, %s, %s' % (S(S_BLK), S(S_T2), S(S_T1)))
    op('s_and_b32 %s, %s, 3' % (S(S_RG), S(S_WV)))
    op('s_lshr_b32 %s, %s, 2' % (S(S_CH), S(S_WV)))
    op('s_mov_b32 %s, 0x07060302' % S(S_PERM))
    op('s_mov_b32 %s, 0xffff0000' % S(S_MASK))
    op('s_mul_i32 %s, %s, 3' % (S(S_ROLE), S(S_S)))
    op('s_add_u32 %s, %s, %s' % (S(S_ROLE), S(S_ROLE), S(S_R)))
    op('s_add_u32 %s, %s, 12' % (S(S_T0), S(S_S)))
    op('s_cmp_eq_u32 %s, 3' % S(S_R))
    op('s_cselect_b32 %s, %s, %s' % (S(S_ROLE), S(S_T0), S(S_ROLE)))
    g.fence()
    op('s_cbranch_scc1 L_roleA')
    st0 = (g.vm.copy(), g.lg.copy())
    gen_role_F(g, cfg)
    g.label('L_roleA')
    g.vm, g.lg = st0
    gen_role_A(g, cfg)
    g.label('L_exit')
    op('s_endpgm')
    g.label('L_code_end')
    g.raw('.set CODE_LAST, L_code_end - L_cpf0F - 128')
    g.raw('.set CODE_F, L_roleA - L_tgtF')
    g.raw('.set CODE_A, L_code_end - L_tgtA - 16')
    return g.finalize(), kernel_desc(name, NV, NSGPR)


def compute_common(g, cfg, label):
    op = g.op
    if cfg.cpf and label:
        g.label(label)
        op('s_getpc_b64 %s' % S(S_TS2, 2))
        op('s_bfe_u32 %s, s2, 0x30005' % S(S_M0))
        op('s_lshl_b32 %s, %s, 13' % (S(S_M0), S(S_M0)))
        op('v_lshrrev_b32 v2, 3, v0')
        op('v_lshlrev_b32 v2, 7, v2')
        op('v_add_u32 v2, %s, v2' % S(S_M0))
        op('v_min_u32 v2, CODE_LAST, v2')
        op('global_load_dword v167, v2, %s' % S(S_TS2, 2), 'cpf2')
    elif label:
        g.label(label)
    if cfg.stamps:
        op('v_mov_b32 v0, 0')
    g.wait(lg='smem')
    emit(g, srd_code(SRD_WS, S_KA + 20, WS_SIZE))
    op('s_or_b32 %s, %s, 1' % (S(S_MYN), S(S_KA + 22)))
    if cfg.prio:
        op('s_setprio %d' % cfg.prio)


def early_prefetch(g, cfg, vT, ka, size, stride, lines, colcode, sec, vd):
    op = g.op
    emit(g, srd_code(SRD_W, ka, size) + srd_code(SRD_X, S_KA, 2048 * 1152) + colcode)
    nj = min(64 // lines, 4)
    magic = (65536 + lines - 1) // lines
    op('v_lshrrev_b32 %s, 4, v1' % V(vT[0]))
    op('v_min_u32 %s, %d, %s' % (V(vT[0]), nj * lines - 1, V(vT[0])))
    op('v_mul_u32_u24 %s, %d, %s' % (V(vT[1]), magic, V(vT[0])))
    op('v_lshrrev_b32 %s, 16, %s' % (V(vT[1]), V(vT[1])))
    op('v_mul_u32_u24 %s, %d, %s' % (V(vT[2]), lines, V(vT[1])))
    op('v_sub_u32 %s, %s, %s' % (V(vT[0]), V(vT[0]), V(vT[2])))
    if sec:
        op('v_mul_u32_u24 %s, 21846, %s' % (V(vT[2]), V(vT[0])))
        op('v_lshrrev_b32 %s, 16, %s' % (V(vT[2]), V(vT[2])))
        op('v_mul_u32_u24 %s, %d, %s' % (V(vT[2]), 1152 - 384, V(vT[2])))
        op('v_lshl_add_u32 %s, %s, 7, %s' % (V(vT[0]), V(vT[0]), V(vT[2])))
    else:
        op('v_lshlrev_b32 %s, 7, %s' % (V(vT[0]), V(vT[0])))
    op('v_mul_u32_u24 %s, %d, %s' % (V(vT[1]), 64 * stride, V(vT[1])))
    op('v_add_u32 %s, %s, %s' % (V(vT[0]), V(vT[0]), V(vT[1])))
    op('s_lshl_b32 %s, %s, 3' % (S(S_T0), S(S_BLK)))
    op('s_add_u32 %s, %s, %s' % (S(S_T0), S(S_T0), S(S_WV)))
    op('s_add_u32 %s, %s, 32' % (S(S_T0), S(S_T0)))
    op('s_mul_i32 %s, %s, %d' % (S(S_T0), S(S_T0), stride))
    op('s_add_u32 %s, %s, %s' % (S(S_T0), S(S_T0), S(S_T1)))
    op('buffer_load_dword %s, %s, %s, %s offen' % (V(vd), V(vT[0]), S(SRD_W, 4), S(S_T0)), 'cpf2')
    op('s_lshl_b32 %s, %s, 4' % (S(S_T0), S(S_M)))
    op('s_add_u32 %s, %s, %s' % (S(S_T0), S(S_T0), S(S_ROLE)))
    op('s_lshl_b32 %s, %s, 3' % (S(S_T0), S(S_T0)))
    op('s_add_u32 %s, %s, %s' % (S(S_T0), S(S_T0), S(S_WV)))
    op('s_mul_i32 %s, %s, 1152' % (S(S_T0), S(S_T0)))
    op('v_lshlrev_b32 %s, 3, v1' % V(vT[0]))
    op('v_min_u32 %s, 1024, %s' % (V(vT[0]), V(vT[0])))
    op('buffer_load_dword %s, %s, %s, %s offen' % (V(vd), V(vT[0]), S(SRD_X, 4), S(S_T0)), 'cpf2')


def helper_common(g, cfg, hv):
    op = g.op
    vL, vT, vXD = hv['vL'], hv['vT'], hv['vXD']
    if cfg.hprio:
        op('s_setprio %d' % cfg.hprio)
    if cfg.stamps:
        op('v_mov_b32 v0, 0')
    op('s_lshl_b32 %s, %s, 7' % (S(S_T0), S(S_M)))
    op('s_lshl_b32 %s, %s, 4' % (S(S_T1), S(S_RG)))
    op('s_add_u32 %s, %s, %s' % (S(S_T0), S(S_T0), S(S_T1)))
    op('s_mul_i32 %s, %s, 1152' % (S(S_T0), S(S_T0)))
    op('v_lshrrev_b32 %s, 3, %s' % (V(vT[0]), V(vL)))
    op('v_mul_u32_u24 %s, 1152, %s' % (V(vT[0]), V(vT[0])))
    op('v_add_u32 %s, %s, %s' % (V(vT[0]), S(S_T0), V(vT[0])))
    op('v_and_b32 %s, 7, %s' % (V(vT[1]), V(vL)))
    op('v_lshrrev_b32 %s, 4, %s' % (V(vT[2]), V(vL)))
    op('v_xor_b32 %s, %s, %s' % (V(vT[1]), V(vT[1]), V(vT[2])))
    op('v_lshl_add_u32 %s, %s, 4, %s' % (V(vXD[0]), V(vT[1]), V(vT[0])))
    op('v_xor_b32 %s, 4, %s' % (V(vT[1]), V(vT[1])))
    op('v_lshl_add_u32 %s, %s, 4, %s' % (V(vXD[1]), V(vT[1]), V(vT[0])))
    op('v_add_u32 %s, %d, %s' % (V(vXD[1]), 8 * 1152, V(vXD[1])))
    op('s_lshl_b32 %s, %s, 11' % (S(S_LDSX), S(S_RG)))
    op('s_add_u32 %s, %s, %d' % (S(S_LDSX), S(S_LDSX), XRING))
    op('s_lshr_b32 %s, %s, 1' % (S(S_T3), S(S_RG)))
    op('s_lshl_b32 %s, %s, 4' % (S(S_T3), S(S_T3)))
    op('s_and_b32 %s, %s, 1' % (S(S_T1), S(S_RG)))
    op('s_lshl_b32 %s, %s, 2' % (S(S_T1), S(S_T1)))
    op('s_add_u32 %s, %s, %s' % (S(S_T3), S(S_T3), S(S_T1)))

    def xdma(cx):
        out = []
        for c in range(2):
            for i in range(2):
                out += ['s_add_u32 m0, %s, %d' % (S(S_LDSX), (cx % 2) * 16384 + c * 8192 + i * 1024),
                        's_mov_b32 %s, %d' % (S(S_WOFF), cx * 128 + c * 64 * 1152),
                        ('buffer_load_dwordx4 %s, %s, %s offen lds' % (V(vXD[i]), S(SRD_X, 4), S(S_WOFF)), ('x', cx))]
        return out
    return xdma


def helper_after_first(g, hv):
    op = g.op
    op('v_mov_b32 %s, 0' % V(hv['vZero']))
    emit(g, srd_code(SRD_DBG, S_KA + 18, 256))
    emit(g, srd_code(SRD_WS, S_KA + 20, WS_SIZE))
    op('s_or_b32 %s, %s, 1' % (S(S_MYN), S(S_KA + 22)))
    op('s_lshl_b32 %s, s2, 2' % S(S_T0))
    op('s_add_u32 %s, %s, %s' % (S(S_T0), S(S_T0), S(S_RG)))
    op('s_lshl_b32 %s, %s, 12' % (S(S_T0), S(S_T0)))
    op('v_mov_b32 %s, %s' % (V(hv['vT'][0]), S(S_MYN)))
    op('s_mov_b64 exec, 1')
    op('buffer_store_dword %s, %s, %s, %s offen sc1' % (V(hv['vT'][0]), V(hv['vZero']), S(SRD_DBG, 4), S(S_T0)), 'nst')
    op('s_mov_b64 exec, -1')


def code_prefetch(g, label, target, vtmp, vdst, vL, span_sym):
    return ['s_getpc_b64 %s' % S(S_TS2, 2),
            lambda: g.label(label),
            's_sub_u32 %s, %s, %s-%s' % (S(S_TS2), S(S_TS2), label, target),
            's_subb_u32 %s, %s, 0' % (S(S_TS2 + 1), S(S_TS2 + 1)),
            's_bfe_u32 %s, s2, 0x30005' % S(S_M0),
            's_lshl_b32 %s, %s, 2' % (S(S_M0), S(S_M0)),
            's_add_u32 %s, %s, %s' % (S(S_M0), S(S_M0), S(S_RG)),
            's_lshl_b32 %s, %s, 10' % (S(S_M0), S(S_M0)),
            'v_and_b32 %s, 7, %s' % (V(vtmp), V(vL)),
            'v_lshlrev_b32 %s, 7, %s' % (V(vtmp), V(vtmp)),
            'v_add_u32 %s, %s, %s' % (V(vtmp), S(S_M0), V(vtmp)),
            'v_min_u32 %s, %s, %s' % (V(vtmp), span_sym, V(vtmp)),
            ('global_load_dword %s, %s, %s' % (V(vdst), V(vtmp), S(S_TS2, 2)), 'pf')]


def groups_code():
    return ['s_mov_b32 %s, %s' % (S(S_G[2]), S(S_R)),
            's_add_u32 %s, %s, 1' % (S(S_G[0]), S(S_R)),
            's_cmp_eq_u32 %s, 3' % S(S_G[0]), 's_cselect_b32 %s, 0, %s' % (S(S_G[0]), S(S_G[0])),
            's_add_u32 %s, %s, 1' % (S(S_G[1]), S(S_G[0])),
            's_cmp_eq_u32 %s, 3' % S(S_G[1]), 's_cselect_b32 %s, 0, %s' % (S(S_G[1]), S(S_G[1]))]


def gen_role_F(g, cfg):
    op = g.op
    R, SLOT = 5, 24576
    CSW, CP, STAT, B1L = SCRATCH + 2048, 1536, SCRATCH, SCRATCH + 1024
    OL = XRING
    op('s_cmp_ge_u32 %s, 8' % S(S_WV))
    op('s_cbranch_scc1 L_helperF')
    st0 = (g.vm.copy(), g.lg.copy())
    vL16 = 1
    tr = [2, 3]
    vT = [4, 5, 6, 7]
    vXR = [8, 9, 10, 11]
    vXS, vHX, vH2, vX2 = 12, 13, 14, 15
    ring = 16
    acc1 = [40 + 16 * t for t in range(6)]
    Y = 136
    xf, xf17 = Y, Y + 8
    compute_common(g, cfg, 'L_cpf0F')
    if cfg.cpre:
        early_prefetch(g, cfg, vT, S_KA + 8, 576 * 9216, 9216, 6, [('s_mul_i32 %s, %s, 768' % (S(S_T1), S(S_ROLE)))], None, 167)
    emit(g, xr_code(vL16, vT, vXR))
    emit(g, lane_tr_code(vL16, vT, 384))
    op('s_mul_i32 %s, %s, %d' % (S(S_T0), S(S_CH), 32 * 384))
    op('v_add3_u32 %s, %s, %s, %s' % (V(tr[0]), V(vT[0]), V(vT[1]), S(S_T0)))
    op('v_sub_u32 %s, %s, %s' % (V(vT[0]), V(vT[0]), V(vT[1])))
    op('v_add_u32 %s, %s, %s' % (V(tr[1]), S(S_T0), V(vT[0])))
    op('s_lshl_b32 %s, %s, 11' % (S(S_T0), S(S_WV)))
    op('s_add_u32 %s, %s, %d' % (S(S_T0), S(S_T0), XRING))
    op('v_add_u32 %s, %s, %s' % (V(vXS), S(S_T0), V(vL16)))
    op('s_xor_b32 %s, %s, 4' % (S(S_T0), S(S_WV)))
    op('s_lshl_b32 %s, %s, 11' % (S(S_T0), S(S_T0)))
    op('s_add_u32 %s, %s, %d' % (S(S_T0), S(S_T0), XRING))
    op('v_add_u32 %s, %s, %s' % (V(vHX), S(S_T0), V(vL16)))
    op('v_add_u32 %s, %d, %s' % (V(vH2), (16 % R) * SLOT - XRING, V(vXS)))
    op('v_add_u32 %s, %d, %s' % (V(vX2), (16 % R) * SLOT - XRING, V(vHX)))
    assert (17 % R) == (16 % R) + 1
    emit(g, groups_code())
    op('s_mul_i32 %s, %s, 36' % (S(S_T0), S(S_M)))
    op('s_add_u32 %s, %s, %s' % (S(S_T0), S(S_T0), S(S_ROLE)))
    op('s_lshl_b32 %s, %s, 2' % (S(S_T0), S(S_T0)))
    op('s_add_u32 %s, %s, %s' % (S(S_T0), S(S_T0), S(S_RG)))
    op('s_mul_i32 %s, %s, 6' % (S(S_T0), S(S_T0)))
    op('s_add_u32 %s, %s, %s' % (S(S_T0), S(S_T0), S(S_CH)))
    op('s_lshl_b32 %s, %s, 11' % (S(S_T0), S(S_T0)))
    for z in range(3):
        op('s_mul_i32 %s, %s, %d' % (S(S_PXG[z]), S(S_G[z]), 12 * 49152))
        op('s_add_u32 %s, %s, %s' % (S(S_PXG[z]), S(S_PXG[z]), S(S_T0)))
    pipe = Pipe(g, ring, 6, cfg)
    win = Win(tr)
    stages = p1_stages(g, pipe, R, SLOT, 384, 3, tr, win, 6, acc1, xf, xf17, vXR, True)
    creg = [Y + 12 + 2 * t for t in range(6)]
    vBc, Ac = Y + 24, Y + 28
    t5 = vT + [Y + 8]
    rd, cc = corr_code(g, vL16, t5, creg, Y + 10, Y + 9, vBc, Ac, acc1, 6, 192, CSW, CP, STAT, B1L, Y + 28)
    vCA = Y + 29
    NONCE_L = SCRATCH + 1792
    nr = ['v_mov_b32 %s, %d' % (V(Y + 30), NONCE_L), ('ds_read_b32 %s, %s' % (V(Y + 31), V(Y + 30)), 'crd')]
    nr2 = ['v_readfirstlane_b32 %s, %s' % (S(S_NONCE), V(Y + 31)),
           's_lshl_b32 %s, %s, 4' % (S(S_T0), S(S_M)),
           's_add_u32 %s, %s, %s' % (S(S_T0), S(S_T0), S(S_ROLE)),
           's_lshl_b32 %s, %s, 4' % (S(S_T0), S(S_T0)),
           's_add_u32 %s, %s, %s' % (S(S_T0), S(S_T0), S(S_WV)),
           's_lshl_b32 %s, %s, 7' % (S(S_T0), S(S_T0)),
           's_add_u32 %s, %s, %d' % (S(S_FLAGOWN), S(S_T0), WS_FLAG),
           's_not_b32 %s, %s' % (S(S_NN), S(S_NONCE))]
    stages[15 - cfg.early].on_barrier.append(lambda: pipe.side(nr + rd[:12] + ['v_mov_b32 %s, %s' % (V(vCA), V(t5[0]))] + rd[24:] + cc[:18] + nr2 + [Mark('bc')]))
    stages[17 - cfg.early].pre_barrier.append(lambda: pipe.flush_side('bc'))
    stages[17 - cfg.early].on_barrier.append(lambda: (emit(g, [(x[0].replace(', ' + V(t5[0]) + ' ', ', ' + V(vCA) + ' '), x[1]) for x in rd[12:24]]),
                                          pipe.side([cc[0]] + cc[18:])))
    stages[0].hook(0, lambda: stamp(g, cfg, 10))
    stages[13].hook(0, lambda: g.label('L_tgtF'))
    stages[10].hook(0, lambda: g.wait(vm='cpf2'))
    tr2 = [vXR[0], vXR[1]]
    win2 = Win(tr2)
    c2 = lane_tr_code(vL16, vT, 128)
    c2 += ['s_lshl_b32 %s, %s, 6' % (S(S_T0), S(S_CH)),
           'v_xor_b32 %s, %s, %s' % (V(vT[1]), S(S_T0), V(vT[1])),
           's_mul_i32 %s, %s, %d' % (S(S_T2), S(S_CH), 96 * 128),
           's_sub_u32 %s, %d, %s' % (S(S_T1), 96 * 128, S(S_T2)),
           'v_add3_u32 %s, %s, %s, %s' % (V(tr2[0]), V(vT[0]), V(vT[1]), S(S_T2)),
           'v_add3_u32 %s, %s, %s, %s' % (V(tr2[1]), V(vT[0]), V(vT[1]), S(S_T1)), Mark('c2')]
    stages[16].hook(2, lambda: pipe.side(c2))
    if not cfg.early:
        stages[16].hook(6, lambda: setattr(pipe, 'budget', 8))
    accs = [Y, Y + 16]
    plist = [(0, 0), (1, 0), (0, 1), (1, 1), (2, 0), (2, 1)] + [(k, hs) for k in range(3, 8) for hs in range(2)] + \
            [(6, 2), (7, 2), (8, 0), (8, 1), (8, 2)]
    NP2 = len(plist)
    OB = [4, 12]
    vOT, vOA = tr[0], tr[1]
    p2, first_of, last_of = [], {}, {}
    for q, (k, hs) in enumerate(plist):
        s = 18 + q
        st = Stage(s)
        sl = s % R
        w = (sl // 2) * 2 * SLOT
        first_of.setdefault(k, q)
        last_of[k] = q
        if hs < 2:
            for blk in range(2):
                for t in range(3):
                    for e in range(2):
                        st.steps.append(Step(accs[k % 2], acc1[3 * hs + t] + 8 * blk + 4 * e, tr2[blk],
                                             (sl % 2) * SLOT + (32 * t + 16 * e) * 128, 8 * 128,
                                             first=(hs == 0 and blk == 0 and t == 0 and e == 0)))
            st.on_barrier.append(lambda w=w: win2.move(g, w))
        else:
            def oread(q, ks):
                op('ds_read_b128 %s, %s offset:%d' % (V(OB[ks % 2], 4), V(vOA), ks * 4096), ('of', q, ks))
            for ks in range(9):
                st.steps.append(Step(accs[k % 2], OB[ks % 2], vOT, (sl % 2) * SLOT + 16 * ks * 128, 8 * 128,
                                     pre=(lambda q=q, ks=ks: g.wait(lg=('of', q, ks)))))
                if ks + 2 < 9:
                    st.hooks.setdefault(('post', ks), []).append(lambda q=q, ks=ks: oread(q, ks + 2))

            def ob(w=w):
                win2.move(g, w)
                op('v_subrev_u32 %s, %s, %s' % (V(vOT), S(S_T2), V(tr2[0])))
            st.on_barrier.append(ob)
            prev = p2[q - 1]
            n = len(prev.steps)
            if plist[q - 1][1] == 2:
                prev.hooks.setdefault(('post', 7), []).append(lambda q=q: oread(q, 1))
                prev.hooks.setdefault(('post', 8), []).append(lambda q=q: oread(q, 0))
            else:
                prev.hook(n - 3, lambda q=q: (oread(q, 0), oread(q, 1)))
        p2.append(st)
    p2[0].pre_barrier.append(lambda: pipe.flush_side('c2'))
    p2[-1].nobar = True
    p2[-2].nobar = True
    allst = stages + p2

    def epi_code(t):
        a = acc1[t]
        c = []
        for d in range(0, 8, 2):
            c += ['v_max_f32 %s, 0, %s' % (V(a + 2 * d + r), V(a + 2 * d + r)) for r in range(4)]
            c += ['v_mul_f32 %s, %s, %s' % (V(a + 2 * d + r), V(a + 2 * d + r), V(a + 2 * d + r)) for r in range(4)]
            c += ['v_cvt_pk_bf16_f32 %s, %s, %s' % (V(a + d + r), V(a + 2 * d + 2 * r), V(a + 2 * d + 2 * r + 1)) for r in range(2)]
        return c

    def area(t, wr):
        if t % 3 < 2:
            return (vXS if wr else vHX), (t % 3) * 16384
        return (vH2 if wr else vX2), (SLOT if t == 5 else 0)

    def hw_code(t):
        a, off = area(t, True)
        return [('ds_write_b128 %s, %s offset:%d' % (V(a), V(acc1[t] + 4 * e, 4), off + 1024 * e), ('hw', t)) for e in range(2)]

    def hx_read(ts):
        for t in ts:
            a, off = area(t, False)
            for e in range(2):
                op('ds_read_b128 %s, %s offset:%d' % (V(acc1[t] + 8 + 4 * e, 4), V(a), off + 1024 * e), ('hx', t))

    def start_epi():
        stamp(g, cfg, 1)
        pipe.budget = 8
        pipe.side(epi_code(0) + [Mark(('e', 0))])
    stages[17].hook(3, start_epi)
    stages[17].hook(8, lambda: pipe.side(hw_code(0) + epi_code(1) + [Mark(('e', 1))] + hw_code(1) + epi_code(2) + [Mark(('e', 2))] +
                                         hw_code(2) + [Mark('r0')]))
    for t in range(3):
        p2[0].steps[2 * t].pre = (lambda t=t: pipe.flush_side(('e', t)))

    def xbar():
        pipe.flush_side('r0')
        g.wait(lg=('hw', 2))
        pipe.bar('X1')
        hx_read([0, 1, 2])
        stamp(g, cfg, 2)
        pipe.budget = 7
        pipe.side(epi_code(3))
    p2[0].hook(5, xbar)
    p2[0].steps[6].pre = lambda: g.wait(lg=('hx', 2))
    p2[0].hook(8, lambda: pipe.side(hw_code(3) + epi_code(4) + hw_code(4) + epi_code(5) + hw_code(5)))

    def xbar2():
        pipe.flush_side()
        g.wait(lg=('hw', 5))
        pipe.bar('X2')
        hx_read([3, 4, 5])
        pipe.budget = cfg.budget
    p2[2].hook(0, xbar2)
    p2[2].steps[6].pre = lambda: g.wait(lg=('hx', 5))
    p2[4].hook(4, lambda: emit(g, ['s_lshl_b32 %s, %s, 10' % (S(S_T0), S(S_RG)),
                                   's_add_u32 %s, %s, %d' % (S(S_T0), S(S_T0), OL),
                                   'v_add_u32 %s, %s, %s' % (V(vOA), S(S_T0), V(vL16))]))

    def mini_epi(k):
        a0 = accs[k % 2]
        c = ['s_add_u32 %s, %s, %d' % (S(S_T3), S(S_PXG[k // 3]), (k % 3) * 4096)]
        for p in range(2):
            c += ['v_cvt_pk_bf16_f32 %s, %s, %s' % (V(a0 + d), V(a0 + 2 * d), V(a0 + 2 * d + 1)) for d in range(4 * p, 4 * p + 4)]
            c += [('buffer_store_dwordx4 %s, %s, %s, %s offen offset:%d sc1' % (V(a0 + 4 * p, 4), V(vL16), S(SRD_WS, 4), S(S_T3), p * 1024), ('pst', k))]
        return c
    for k in range(8):
        p2[last_of[k] + 1].hook(2, lambda k=k: pipe.side(mini_epi(k) + [Mark(('m', k))]))
        if k + 2 < 9:
            p2[first_of[k + 2]].hook(0, lambda k=k: pipe.flush_side(('m', k)))
    FL = {2: 9, 5: 15}
    for k in FL:
        p2[FL[k]].pre_barrier.append(lambda k=k: g.wait(vm=('pst', k)))
    for z in range(2):
        p2[6 * z + 6].hook(0, lambda z=z: stamp(g, cfg, 3 + z))
    vFP = acc1[0]
    stamp(g, cfg, 0)
    pipe.run(allst)
    stamp(g, cfg, 5)
    pipe.flush_side()
    emit(g, mini_epi(8))
    g.wait(vm=('pst', 7))
    emit(g, flag_store_code(vFP, vL16, S_FLAGOWN, 1))
    g.wait(vm=('pst', 8))
    emit(g, flag_store_code(vFP + 2, vL16, S_FLAGOWN, 2))
    store_stamps(g, cfg, vL16, 2)
    op('s_endpgm')

    g.label('L_helperF')
    g.vm, g.lg = st0
    hv = dict(vL=3, vL16=1, vZero=2, vT=[4, 5, 6, 7, 8, 9], vXD=[10, 11], vP=12, vCO=14, vCW2=15, B=40)
    vL, vT, vZero, vP = 3, hv['vT'], 2, 12
    vW1 = [16, 17, 18]
    vW2, vWO, vPF, vWP, vDm, vOO, vCB, vFO, vVO, vP2, vFO8 = 19, 20, 21, 22, 23, 24, 25, 26, 27, 28, 30
    xdma = helper_common(g, cfg, hv)
    op('s_mul_i32 %s, %s, 3072' % (S(S_LDSW), S(S_RG)))
    op('s_mul_i32 %s, %s, 9216' % (S(S_T0), S(S_T3)))
    op('s_mul_i32 %s, %s, 768' % (S(S_M1), S(S_ROLE)))
    op('s_add_u32 %s, %s, %s' % (S(S_T0), S(S_T0), S(S_M1)))
    for i in range(3):
        emit(g, divmod_code(vL, i, 24, 2731, vT[0], vT[1], vT[2]))
        op('v_bfe_u32 %s, %s, 1, 1' % (V(vT[2]), V(vT[0])))
        op('v_lshlrev_b32 %s, 2, %s' % (V(vT[2]), V(vT[2])))
        op('v_xor_b32 %s, %s, %s' % (V(vT[1]), V(vT[1]), V(vT[2])))
        op('v_and_b32 %s, 4, %s' % (V(vT[2]), V(vT[0])))
        op('v_add_u32 %s, %s, %s' % (V(vT[0]), V(vT[0]), V(vT[2])))
        op('v_mul_u32_u24 %s, 9216, %s' % (V(vT[0]), V(vT[0])))
        op('v_lshl_add_u32 %s, %s, 4, %s' % (V(vT[0]), V(vT[1]), V(vT[0])))
        op('v_add_u32 %s, %s, %s' % (V(vW1[i]), S(S_T0), V(vT[0])))
    g.wait(lg='smem')
    emit(g, srd_code(SRD_X, S_KA, 2048 * 1152))
    emit(g, srd_code(SRD_W, S_KA + 8, 576 * 9216))

    def w1dma(s):
        out = []
        for c in range(2):
            for i in range(3):
                out += ['s_add_u32 m0, %s, %d' % (S(S_LDSW), (s % R) * SLOT + c * 12288 + i * 1024),
                        's_mov_b32 %s, %d' % (S(S_WOFF), s * 32 * 9216 + 384 * c),
                        ('buffer_load_dwordx4 %s, %s, %s offen lds' % (V(vW1[i]), S(SRD_W, 4), S(S_WOFF)), ('W', s))]
        return out

    def w2dma(q):
        k, hs = plist[q]
        s = 18 + q
        out = []
        for c in range(2):
            for i in range(3):
                out.append('s_add_u32 m0, %s, %d' % (S(S_LDSW), (s % R) * SLOT + c * 12288 + i * 1024))
                if hs < 2:
                    out += ['s_add_u32 %s, %s, %d' % (S(S_WOFF), S(S_W2G[k // 3]), (192 * c + 96 * hs + 8 * i) * 1152 + 128 * (k % 3)),
                            ('buffer_load_dwordx4 %s, %s, %s offen lds' % (V(vW2), S(SRD_W2, 4), S(S_WOFF)), ('W', s))]
                else:
                    out += ['s_add_u32 %s, %s, %d' % (S(S_WOFF), S(S_WOP), (96 * c + 8 * i) * 1152 + 128 * (k % 3)),
                            ('buffer_load_dwordx4 %s, %s, %s offen lds' % (V(vW2), S(SRD_WO, 4), S(S_WOFF)), ('W', s))]
        return out
    H, HW = defaultdict(list), {}
    helper_p1(g, cfg, H, HW, hv, R, w1dma, xdma, 192, 9216, CSW, CP, STAT, ['zf'])
    emit(g, H.pop('pre0'))
    stamp(g, cfg, 61)
    helper_after_first(g, hv)
    emit(g, srd_code(SRD_W2, S_KA + 12, 4608 * 1152) + srd_code(SRD_B, S_KA + 10, 4608 * 2) + srd_code(SRD_OUT, S_KA + 16, 2048 * 1152))
    emit(g, srd_code(SRD_B2, S_KA + 14, 1152) + srd_code(SRD_WO, S_KA + 4, 576 * 1152))
    emit(g, ['s_mov_b32 m0, %d' % B1L,
             's_mov_b32 exec_hi, 0xffff',
             ('buffer_load_dwordx4 %s, %s, %s offen lds' % (V(hv['vL16']), S(SRD_B, 4), S(S_M1)), 'b1'),
             's_mov_b32 exec_hi, -1',
             's_lshl_b32 %s, %s, 2' % (S(S_T0), S(S_M)),
             's_add_u32 %s, %s, %s' % (S(S_T0), S(S_T0), S(S_RG)),
             's_mul_i32 %s, %s, 9216' % (S(S_T0), S(S_T0)),
             's_add_u32 %s, %s, %s' % (S(S_T0), S(S_T0), S(S_M1)),
             'v_min_u32 %s, %d, %s' % (V(vT[0]), 47 * 16, V(hv['vL16'])),
             'v_add_u32 %s, %s, %s' % (V(hv['vCO']), S(S_T0), V(vT[0]))])
    ZR = 164
    LD = 40
    SUM = 104
    XB = 140
    vRs = 31
    vP3 = 32
    post = groups_code()
    post += ['s_mul_i32 %s, %s, 24' % (S(S_T0), S(S_RG)),
             'v_lshrrev_b32 %s, 3, %s' % (V(vT[0]), V(vL)),
             'v_add_u32 %s, %s, %s' % (V(vT[0]), S(S_T0), V(vT[0])),
             'v_mul_u32_u24 %s, 1152, %s' % (V(vT[0]), V(vT[0])),
             'v_bfe_u32 %s, %s, 4, 1' % (V(vT[1]), V(vL)),
             'v_lshlrev_b32 %s, 2, %s' % (V(vT[1]), V(vT[1])),
             'v_and_b32 %s, 7, %s' % (V(vT[2]), V(vL)),
             'v_xor_b32 %s, %s, %s' % (V(vT[1]), V(vT[1]), V(vT[2])),
             'v_lshl_add_u32 %s, %s, 4, %s' % (V(vW2), V(vT[1]), V(vT[0])),
             's_mul_i32 %s, %s, %d' % (S(S_T0), S(S_S), 144 * 1152),
             's_mul_i32 %s, %s, 384' % (S(S_T1), S(S_R)),
             's_add_u32 %s, %s, %s' % (S(S_WOP), S(S_T0), S(S_T1)),
             's_mul_i32 %s, %s, %d' % (S(S_T1), S(S_ROLE), 384 * 1152)]
    for z in range(3):
        post += ['s_mul_i32 %s, %s, 384' % (S(S_W2G[z]), S(S_G[z])),
                 's_add_u32 %s, %s, %s' % (S(S_W2G[z]), S(S_W2G[z]), S(S_T1))]
    post += [
             's_lshl_b32 %s, %s, 4' % (S(S_T0), S(S_M)),
             's_lshl_b32 %s, %s, 11' % (S(S_FLAGM), S(S_T0)),
             's_add_u32 %s, %s, %d' % (S(S_FLAGM), S(S_FLAGM), WS_FLAG),
             's_add_u32 %s, %s, 12' % (S(S_T0), S(S_S)),
             's_lshl_b32 %s, %s, 11' % (S(S_T0), S(S_T0)),
             's_add_u32 %s, %s, %s' % (S(S_FLAGO), S(S_T0), S(S_FLAGM)),
             'v_and_b32 %s, 7, %s' % (V(vT[0]), V(vL)),
             'v_lshlrev_b32 %s, 7, %s' % (V(vFO8), V(vT[0])),
             's_lshl_b32 %s, %s, 2' % (S(S_T0), S(S_M)),
             's_add_u32 %s, %s, %s' % (S(S_T0), S(S_T0), S(S_S)),
             's_mul_i32 %s, %s, 36' % (S(S_T0), S(S_T0)),
             's_add_u32 %s, %s, %s' % (S(S_T0), S(S_T0), S(S_RG)),
             's_lshl_b32 %s, %s, 10' % (S(S_T0), S(S_T0)),
             's_add_u32 %s, %s, %d' % (S(S_OB), S(S_T0), WS_O),
             's_mul_i32 %s, %s, 3' % (S(S_T0), S(S_M)),
             's_add_u32 %s, %s, %s' % (S(S_T0), S(S_T0), S(S_R)),
             's_mul_i32 %s, %s, %d' % (S(S_T0), S(S_T0), 12 * 49152),
             's_lshl_b32 %s, %s, 10' % (S(S_T1), S(S_RG)),
             's_add_u32 %s, %s, %s' % (S(S_T0), S(S_T0), S(S_T1)),
             's_mul_i32 %s, %s, 12288' % (S(S_T1), S(S_S)),
             's_add_u32 %s, %s, %s' % (S(S_PXR), S(S_T0), S(S_T1)),
             'v_and_b32 %s, 3, %s' % (V(vT[0]), V(vL)),
             'v_mul_u32_u24 %s, %d, %s' % (V(vFO), 3 * 2048, V(vT[0])),
             's_lshl_b32 %s, %s, 2' % (S(S_T0), S(S_M)),
             's_add_u32 %s, %s, %s' % (S(S_T0), S(S_T0), S(S_S)),
             's_lshl_b32 %s, %s, 5' % (S(S_T0), S(S_T0)),
             'v_and_b32 %s, 31, %s' % (V(vT[0]), V(vL)),
             'v_add_u32 %s, %s, %s' % (V(vT[0]), S(S_T0), V(vT[0])),
             'v_lshlrev_b32 %s, 4, %s' % (V(vT[1]), V(vT[0])),
             'v_add_u32 %s, %d, %s' % (V(vVO), WS_ST + 4, V(vT[1])),
             'v_mul_u32_u24 %s, 1152, %s' % (V(vT[0]), V(vT[0])),
             's_mul_i32 %s, %s, 384' % (S(S_T0), S(S_R)),
             's_lshl_b32 %s, %s, 5' % (S(S_T1), S(S_RG)),
             's_add_u32 %s, %s, %s' % (S(S_T0), S(S_T0), S(S_T1)),
             'v_lshrrev_b32 %s, 5, %s' % (V(vT[1]), V(vL)),
             'v_lshlrev_b32 %s, 4, %s' % (V(vT[1]), V(vT[1])),
             'v_add_u32 %s, %s, %s' % (V(vCB), S(S_T0), V(vT[1])),
             'v_add_u32 %s, %s, %s' % (V(vOO), V(vT[0]), V(vCB)),
             's_lshl_b32 %s, %s, 2' % (S(S_T0), S(S_BLK)),
             's_add_u32 %s, %s, %s' % (S(S_T0), S(S_T0), S(S_RG)),
             's_mul_i32 %s, %s, %d' % (S(S_T1), S(S_T0), 12 * 1152),
             'v_min_u32 %s, 35, %s' % (V(vT[0]), V(vL)),
             'v_mul_u32_u24 %s, 21846, %s' % (V(vT[1]), V(vT[0])),
             'v_lshrrev_b32 %s, 16, %s' % (V(vT[1]), V(vT[1])),
             'v_mul_u32_u24 %s, %d, %s' % (V(vT[1]), 1152 - 384, V(vT[1])),
             'v_lshl_add_u32 %s, %s, 7, %s' % (V(vT[1]), V(vT[0]), V(vT[1])),
             'v_add_u32 %s, %s, %s' % (V(vPF), S(S_T1), V(vT[1])),
             's_mul_i32 %s, %s, 14' % (S(S_T0), S(S_T0)),
             'v_min_u32 %s, 13, %s' % (V(vT[0]), V(vL)),
             'v_add_u32 %s, %s, %s' % (V(vT[0]), S(S_T0), V(vT[0])),
             'v_min_u32 %s, 431, %s' % (V(vT[0]), V(vT[0])),
             'v_mul_u32_u24 %s, 21846, %s' % (V(vT[1]), V(vT[0])),
             'v_lshrrev_b32 %s, 16, %s' % (V(vT[1]), V(vT[1])),
             'v_mul_u32_u24 %s, %d, %s' % (V(vT[1]), 1152 - 384, V(vT[1])),
             'v_lshl_add_u32 %s, %s, 7, %s' % (V(vWP), V(vT[0]), V(vT[1]))]
    H['pre'] += post
    H[7] += ['v_mov_b32 %s, %d' % (V(ZR), NONCE_L), 'v_mov_b32 %s, %s' % (V(ZR + 1), S(S_NONCE)), ('ds_write_b32 %s, %s' % (V(ZR), V(ZR + 1)), 'csw')]
    HW[13][0].append('b1')
    for n in range(0 if cfg.nopf else 3):
        H[6 + 2 * n] += [('buffer_load_dword %s, %s, %s, %s offen' % (V(vDm), V(vPF), S(SRD_W2, 4), S(S_W2G[n])), 'pf')]
    H[10] += [('buffer_load_dword %s, %s, %s, %s offen' % (V(vDm), V(vWP), S(SRD_WO, 4), S(S_WOP)), 'pf')]
    H[10] += code_prefetch(g, 'L_cpfF', 'L_tgtF', hv['vCO'], vDm, vL, 'CODE_F')
    if cfg.touch:
        H[cfg.touch] += ['s_mul_i32 %s, %s, %d' % (S(S_M0), S(S_M), 36 * 49152),
                         'v_and_b32 %s, 1, %s' % (V(vT[0]), V(vL)),
                         'v_mul_u32_u24 %s, %d, %s' % (V(vT[0]), 36 * 49152 - 128, V(vT[0])),
                         ('buffer_load_dword %s, %s, %s, %s offen' % (V(vDm), V(vT[0]), S(SRD_WS, 4), S(S_M0)), 'pf'),
                         ('buffer_load_dword %s, %s, %s, %s offen' % (V(vDm), V(vZero), S(SRD_WS, 4), S(S_OB)), 'pf'),
                         ('buffer_load_dword %s, %s, %s, 0 offen' % (V(vDm), V(vZero), S(SRD_B2, 4)), 'pf'),
                         's_mov_b64 exec, 1',
                         ('buffer_load_dword %s, %s, %s, 0 offen' % (V(vDm), V(vOO), S(SRD_OUT, 4)), 'pf'),
                         's_mov_b64 exec, -1']
    for q in range(NP2):
        s = 18 + q
        HW[s] = ([('W', s)], [])
        at = {21: 19, 22: 21}.get(s, s - (R - 2))
        if s == 22:
            H[at] = w2dma(q) + H[at]
        else:
            H[at] += w2dma(q)
    if cfg.pf2:
        H[17] += [('buffer_load_dword %s, %s, %s, %s offen' % (V(vDm), V(vPF), S(SRD_W2, 4), S(S_W2G[1])), 'pf')]
        H[23] += [('buffer_load_dword %s, %s, %s, %s offen' % (V(vDm), V(vPF), S(SRD_W2, 4), S(S_W2G[2])), 'pf')]
        H[27] += [('buffer_load_dword %s, %s, %s, %s offen' % (V(vDm), V(vWP), S(SRD_WO, 4), S(S_WOP)), 'pf')]
    H[22] += [('buffer_load_dword %s, %s, %s, 0 offen sc1' % (V(vRs), V(vVO), S(SRD_WS, 4)), 'xb')]
    for j in range(3):
        H[22 + j] += [('buffer_load_dwordx4 %s, %s, %s, 0 offen offset:%d' % (V(XB + 4 * j, 4), V(vOO), S(SRD_X, 4), 128 * j), 'xb'),
                      ('buffer_load_dwordx4 %s, %s, %s, 0 offen offset:%d' % (V(XB + 12 + 4 * j, 4), V(vCB), S(SRD_B2, 4), 128 * j), 'xb')]
    H[18] += ['s_lshl_b32 %s, %s, 28' % (S(S_T0), S(S_RG)),
              's_add_u32 %s, %s, %s' % (S(S_FL0), S(S_FL0), S(S_T0)),
              's_lshl_b32 %s, %s, 4' % (S(S_T0), S(S_R)),
              's_add_u32 %s, %s, %s' % (S(S_T0), S(S_T0), S(S_S)),
              's_and_b32 %s, %s, 2' % (S(S_T1), S(S_RG)),
              's_lshl_b32 %s, %s, 1' % (S(S_T1), S(S_T1)),
              's_add_u32 %s, %s, %s' % (S(S_T0), S(S_T0), S(S_T1)),
              's_lshl_b32 %s, %s, 7' % (S(S_T0), S(S_T0)),
              's_add_u32 %s, %s, %s' % (S(S_ZB), S(S_FLAGM), S(S_T0))]
    H[26] += [lambda: g.wait(vm='xb')]
    for j in range(3):
        c = []
        s8 = SUM + 8 * j
        for d in range(4):
            c += unpack_add(s8 + 2 * d, XB + 4 * j + d, vT[0], vT[1], first=True) + unpack_add(s8 + 2 * d, XB + 12 + 4 * j + d, vT[0], vT[1])
        c += ['v_mul_f32 %s, %s, %s' % (V(s8 + r), V(s8 + r), V(vRs)) for r in range(8)]
        c += ['v_permlane32_swap_b32 %s, %s' % (V(s8 + r), V(s8 + 4 + r)) for r in range(4)]
        H[26 + j] += c
    H[29] += ['v_rcp_f32 %s, %s' % (V(vRs), V(vRs))]
    for k in FL:
        H[18 + FL[k]] = flag_store_code(vP3, vZero, S_FL0, k + 1, 12 * 128) + H[18 + FL[k]]

    def src_base(z):
        return S_G[1 - z] if z < 2 else S_G[2]

    S_SB = [S_KVW, S_KVR, S_T2]
    S_SF = [S_CSPUB, S_STPUB, S_XB]

    def ldreg(z, j):
        return [88, 140, 100 + 0][j] if False else (LD + 16 * j if z != 1 else [88, 128, 144][j])

    def rload(z, j, sp):
        return ['s_add_u32 %s, %s, %d' % (S(S_M0), S(S_SB[z]), sp * 3 * 49152 + j * 4096),
                ('buffer_load_dwordx4 %s, %s, %s, %s offen sc1' % (V(ldreg(z, j) + 4 * sp, 4), V(hv['vL16']), S(SRD_WS, 4), S(S_M0)), ('r', z, j))]

    def radd(z, j):
        c = [lambda: g.wait(vm=('r', z, j))]
        for sp in range(4):
            for d in range(4):
                c += unpack_add(SUM + 8 * j + 2 * d, ldreg(z, j) + 4 * sp + d, vT[2 * (d & 1)], vT[2 * (d & 1) + 1])
        return c

    for z in range(3):
        H[19] += ['s_mul_i32 %s, %s, 49152' % (S(S_SB[z]), S(src_base(z))),
                  's_add_u32 %s, %s, %s' % (S(S_SB[z]), S(S_SB[z]), S(S_PXR)),
                  's_lshl_b32 %s, %s, 11' % (S(S_T0), S(src_base(z))),
                  's_add_u32 %s, %s, %s' % (S(S_SF[z]), S(S_FLAGM), S(S_T0))]
    H[29] += [lambda: poll_issue(g, vP, vFO, S_SF[0], 12 * 128)]
    H[31] += [lambda: poll_check(g, vP, vFO, S_SF[0], 3, 12 * 128)] + [rload(0, 0, sp) for sp in range(4)]
    H[33] += [rload(0, 1, sp) for sp in range(4)]
    H[34] += [rload(0, 2, sp) for sp in range(4)] + radd(0, 0)[:33]
    H[35] += [lambda: poll_issue(g, vP, vFO, S_SF[1], 12 * 128)] + radd(0, 0)[33:]
    HA = {}
    H[30] += [lambda: poll_issue(g, vP2, vFO8, S_FLAGO, tag='poll2')]
    od = [lambda: stamp(g, cfg, 60), lambda: poll_check(g, vP2, vFO8, S_FLAGO, 1, tag='poll2'), lambda: stamp(g, cfg, 62),
          's_lshl_b32 %s, %s, 10' % (S(S_T0), S(S_RG))]
    for ks in range(9):
        od += ['s_add_u32 m0, %s, %d' % (S(S_T0), OL + ks * 4096),
               's_add_u32 %s, %s, %d' % (S(S_WOFF), S(S_OB), ks * 4096),
               ('buffer_load_dwordx4 %s, %s, %s offen sc1 lds' % (V(hv['vL16']), S(SRD_WS, 4), S(S_WOFF)), 'od')]
    H[32] = od + H[32]
    HW[34][0].append('od')
    HW[36][0].extend([('W', 37), ('W', 38)])
    for (z, j), b in HA.items():
        H[b] = H[b] + radd(z, j)
    run_helper(g, pipe.events, H, HW)
    stamp(g, cfg, 5)
    poll_check(g, vP, vFO, S_SF[1], 6, 12 * 128)
    emit(g, [rload(1, j, sp) for j in range(3) for sp in range(4)])
    emit(g, radd(0, 1) + radd(0, 2) + radd(1, 0) + radd(1, 1))
    poll_issue(g, vP, vFO, S_ZB)
    emit(g, radd(1, 2))
    stamp(g, cfg, 6)
    poll_check(g, vP, vFO, S_ZB, 1)
    for j in range(2):
        for sp in range(4):
            emit(g, rload(2, j, sp))
    poll_issue(g, vP, vFO, S_ZB)

    def finish(j):
        emit(g, radd(2, j))
        s8 = SUM + 8 * j
        for r in range(8):
            op('v_mul_f32 %s, %s, %s' % (V(s8 + r), V(s8 + r), V(vRs)))
        for d in range(4):
            op('v_cvt_pk_bf16_f32 %s, %s, %s' % (V(s8 + d), V(s8 + 2 * d), V(s8 + 2 * d + 1)))
        op('v_permlane32_swap_b32 %s, %s' % (V(s8), V(s8 + 2)))
        op('v_permlane32_swap_b32 %s, %s' % (V(s8 + 1), V(s8 + 3)))
        op('buffer_store_dwordx4 %s, %s, %s, 0 offen offset:%d' % (V(s8, 4), V(vOO), S(SRD_OUT, 4), 128 * j))
    poll_check(g, vP, vFO, S_ZB, 2)
    stamp(g, cfg, 7)
    for sp in range(4):
        emit(g, rload(2, 2, sp))
    finish(0)
    finish(1)
    finish(2)
    store_stamps(g, cfg, 1, 4)
    op('s_endpgm')


def gen_role_A(g, cfg):
    op = g.op
    R, SLOT, PITCH = 4, 28672, 448
    CSW, CP, STAT, NONCE_L = SCRATCH + 1024, 1792, SCRATCH, 4 * 28672
    P = 328
    KB, VB, QB = 0, 144 * P, 288 * P
    G = 56
    vL16 = 1
    vA8, vA12, vQ8, vQ12 = 8, 9, 10, 11
    op('s_cmp_ge_u32 %s, 8' % S(S_WV))
    op('s_cbranch_scc1 L_helperA')
    st0 = (g.vm.copy(), g.lg.copy())

    def greg(k):
        return G + 4 * (k // 3) + k % 3

    def ppos(Pi):
        sec, pw = divmod(Pi, 72)
        return sec, (pw // 9) * 40 + (pw % 9) * 4

    def qkv_writes(ch, regof, nk, rowoff, kvonly=False):
        for k in range(nk):
            t, q4, pp = k // 8, (k % 8) // 2, k % 2
            Pi = 112 * ch + 16 * t + 4 * q4 + pp
            if Pi >= 216:
                continue
            sec, o0 = ppos(Pi)
            sec1, o1 = ppos(Pi + 2)
            assert sec == sec1 and o1 - o0 in (8, 12)
            if sec == 2:
                assert not kvonly
                a, off = (vQ8 if o1 - o0 == 8 else vQ12), o0
            else:
                a, off = (vA8 if o1 - o0 == 8 else vA12), (KB if sec == 0 else VB) + rowoff * P + o0
            op('ds_write_b32 %s, %s offset:%d' % (V(a), V(regof(k)), off), 'qkvw')
    kvaddr = ['s_lshl_b32 %s, %s, 2' % (S(S_T0), S(S_M)),
              's_add_u32 %s, %s, %s' % (S(S_T0), S(S_T0), S(S_S)),
              's_lshl_b32 %s, %s, 15' % (S(S_T0), S(S_T0)),
              's_add_u32 %s, %s, %d' % (S(S_KVW), S(S_T0), WS_KV),
              's_lshl_b32 %s, %s, 4' % (S(S_T0), S(S_M)),
              's_add_u32 %s, %s, %s' % (S(S_T0), S(S_T0), S(S_ROLE)),
              's_lshl_b32 %s, %s, 11' % (S(S_T0), S(S_T0)),
              's_add_u32 %s, %s, %d' % (S(S_FL0), S(S_T0), WS_FLAG)]
    tr = [2, 2]
    vT = [3, 4, 5, 6, 7]
    vXR = [8, 9, 10, 11]
    vRstd = 12
    ring, xf = 16, 44
    acc1 = [G + 16 * t for t in range(7)]
    compute_common(g, cfg, None)
    if cfg.cpre:
        early_prefetch(g, cfg, vT, S_KA + 2, 576 * 3456, 3456, 9, [('s_mul_i32 %s, %s, 288' % (S(S_T1), S(S_S)))], 3, 15)
    emit(g, xr_code(vL16, vT, vXR))
    emit(g, lane_tr_code(vL16, vT, PITCH)[:8])
    op('s_mul_i32 %s, %s, %d' % (S(S_T0), S(S_CH), 32 * PITCH))
    op('v_add_u32 %s, %s, %s' % (V(tr[0]), S(S_T0), V(vT[0])))
    emit(g, kvaddr)
    op('s_mul_i32 %s, %s, %d' % (S(S_T0), S(S_CH), 19 * 1024))
    op('s_add_u32 %s, %s, %s' % (S(S_KVW), S(S_KVW), S(S_T0)))
    op('s_mov_b32 %s, %s' % (S(S_BLK), S(S_WV)))
    pipe = Pipe(g, ring, 7, cfg)
    win = Win([tr[0]])
    stages = p1_stages(g, pipe, R, SLOT, PITCH, 2, tr, win, 7, acc1, xf, None, vXR, False)
    stages[0].hook(0, lambda: stamp(g, cfg, 10))
    creg = [16 + 2 * t for t in range(7)]
    rd, cc = corr_code(g, vL16, vT, creg, 14, vRstd, 52, 32, acc1, 7, 224, CSW, CP, STAT, None, None)
    early = rd[:12] + ['v_mov_b32 v13, %s' % V(vT[0]), 'v_mov_b32 %s, %d' % (V(vT[1]), NONCE_L),
                       ('ds_read_b32 %s, %s' % (V(vT[0]), V(vT[1])), 'crd'), lambda: g.wait(lg='crd'),
                       'v_readfirstlane_b32 %s, %s' % (S(S_NONCE), V(vT[0]))] + cc[1:18] + ['s_not_b32 %s, %s' % (S(S_NN), S(S_NONCE))]
    stages[16].hook(0, lambda: pipe.side(early))
    stages[13].hook(0, lambda: g.label('L_tgtA'))
    stages[10].hook(0, lambda: g.wait(vm='cpf2'))
    stamp(g, cfg, 0)
    pipe.run(stages)
    stamp(g, cfg, 1)
    pipe.flush_side()
    emit(g, [(x[0].replace(', ' + V(vT[0]) + ' ', ', v13 '), x[1]) for x in rd[12:]])
    op('v_bfe_u32 %s, %s, 4, 5' % (V(vT[3]), V(vL16)))
    op('s_lshl_b32 %s, %s, 5' % (S(S_T0), S(S_RG)))
    op('v_add_u32 %s, %s, %s' % (V(vT[3]), S(S_T0), V(vT[3])))
    op('v_mul_u32_u24 %s, %d, %s' % (V(vT[3]), P, V(vT[3])))
    op('v_lshrrev_b32 %s, 9, %s' % (V(vT[4]), V(vL16)))
    op('v_lshl_add_u32 %s, %s, 3, %s' % (V(vA8), V(vT[4]), V(vT[3])))
    op('v_lshl_add_u32 %s, %s, 2, %s' % (V(vA12), V(vT[4]), V(vA8)))
    op('v_add_u32 %s, %d, %s' % (V(vQ8), QB, V(vA8)))
    op('v_add_u32 %s, %d, %s' % (V(vQ12), QB, V(vA12)))
    g.wait(lg='crd')
    pipe.bar('A1')
    emit(g, cc[18:])
    for k in range(56):
        a = G + 2 * k
        op('v_mul_f32 %s, %s, %s' % (V(a), V(a), V(vRstd)))
        op('v_mul_f32 %s, %s, %s' % (V(a + 1), V(a + 1), V(vRstd)))
        op('v_cvt_pk_bf16_f32 %s, %s, %s' % (V(greg(k)), V(a), V(a + 1)))
    op('s_cmp_lg_u32 %s, 3' % S(S_RG))
    g.fence()
    op('s_cbranch_scc1 L_apub_done')
    for gi in range(19):
        op('v_mov_b32 %s, %s' % (V(G + 4 * gi + 3), S(S_NONCE)))
    op('s_mov_b32 exec_lo, 0xffff0000')
    op('s_mov_b32 exec_hi, 0xffff0000')
    for gi in range(19):
        if gi == 6:
            op('s_cmp_eq_u32 %s, 1' % S(S_CH))
            op('s_cbranch_scc1 L_apub_x')
        if gi % 4 == 0:
            op('s_add_u32 %s, %s, %d' % (S(S_T3), S(S_KVW), gi * 1024))
        op('buffer_store_dwordx4 %s, %s, %s, %s offen offset:%d sc1' % (V(G + 4 * gi, 4), V(vL16), S(SRD_WS, 4), S(S_T3), (gi % 4) * 1024), 'gs')
    g.label('L_apub_x')
    op('s_mov_b64 exec, -1')
    g.fence()
    g.label('L_apub_done')
    g.vm.q = []
    op('s_cmp_eq_u32 %s, 1' % S(S_CH))
    g.fence()
    op('s_cbranch_scc1 L_aw1')
    qkv_writes(0, greg, 56, 16)
    g.fence()
    op('s_branch L_aw2')
    g.label('L_aw1')
    qkv_writes(1, greg, 56, 16)
    g.fence()
    g.label('L_aw2')
    g.wait_all(vm=False, lg=True)
    pipe.bar('A2')
    stamp(g, cfg, 2)
    op('s_cmp_eq_u32 %s, 0' % S(S_WV))
    op('s_cbranch_scc1 L_aend')
    g.label('L_attn')
    g.vm.q, g.lg.q = [], []
    stamp(g, cfg, 3)
    kv, qv, lgt = G, 146, 16
    oac = [32, 146]
    vKA, vQA, vOA, vS, vVE = 8, 9, 10, 11, 12
    vZ, vP = 2, 50
    tq = [52, 53, 54, 55]
    op('v_bfe_u32 %s, %s, 4, 3' % (V(vT[0]), V(vL16)))
    op('v_bfe_u32 %s, %s, 7, 1' % (V(vT[1]), V(vL16)))
    op('v_lshrrev_b32 %s, 8, %s' % (V(vT[2]), V(vL16)))
    op('v_lshl_add_u32 %s, %s, 2, %s' % (V(vT[1]), V(vT[2]), V(vT[1])))
    op('s_lshl_b32 %s, %s, 4' % (S(S_T0), S(S_BLK)))
    op('v_add_u32 %s, %s, %s' % (V(vS), S(S_T0), V(vT[1])))
    op('v_mul_u32_u24 %s, %d, %s' % (V(vT[1]), P, V(vS)))
    op('v_mul_u32_u24 %s, 40, %s' % (V(vT[2]), V(vT[0])))
    op('v_add_u32 %s, %s, %s' % (V(vKA), V(vT[1]), V(vT[2])))
    op('v_add_u32 %s, %d, %s' % (V(vQA), QB, V(vKA)))
    for qi in range(2):
        for p in range(5):
            op('ds_read_b64 %s, %s offset:%d' % (V(qv + 10 * qi + 2 * p, 2), V(vQA), qi * 2 * P + 8 * p), 'q')
    NJ = 9
    for j in range(NJ):
        for p in range(5):
            op('ds_read_b64 %s, %s offset:%d' % (V(kv + 10 * j + 2 * p, 2), V(vKA), KB + (18 - 2 * j) * P + 8 * p), ('k', j))
    op('v_mul_u32_u24 %s, 36, %s' % (V(vT[2]), V(vT[0])))
    op('v_add_u32 %s, %s, %s' % (V(vOA), V(vT[1]), V(vT[2])))
    op('v_add_u32 %s, %d, %s' % (V(vOA), QB, V(vOA)))
    op('v_lshlrev_b32 %s, 3, %s' % (V(vT[1]), V(vS)))
    op('v_add_u32 %s, %d, %s' % (V(vT[1]), STAT + 4, V(vT[1])))
    op('ds_read_b32 %s, %s' % (V(vVE), V(vT[1])), 've')
    op('ds_read_b32 %s, %s offset:16' % (V(vVE + 1), V(vT[1])), 've')
    op('v_mov_b32 %s, 0' % V(vZ))
    pairs = []
    for j in range(NJ):
        if j >= 1:
            pairs.append((lgt + (j - 1), 0, j))
        if j < 8:
            pairs.append((lgt + 8 + j, 1, j))
    for r in range(16):
        op('v_mov_b32 %s, 0' % V(lgt + r))
    for j in range(NJ):
        g.wait(lg=('k', j))
        for d in range(9):
            for (lr, qi, jj) in pairs:
                if jj == j:
                    op('v_dot2c_f32_bf16 %s, %s, %s' % (V(lr), V(qv + 10 * qi + d), V(kv + 10 * j + d)))
        for p in range(5):
            op('ds_read_b64 %s, %s offset:%d' % (V(kv + 10 * j + 2 * p, 2), V(vKA), VB + (18 - 2 * j) * P + 8 * p), ('v', j))
    op('s_or_b32 %s, %s, %s' % (S(S_T0), S(S_M), S(S_BLK)))
    op('s_cmp_lg_u32 %s, 0' % S(S_T0))
    g.fence()
    op('s_cbranch_scc1 L_anomask')
    op('v_mov_b32 %s, 0xf149f2ca' % V(vT[0]))
    for qi in range(2):
        for w in range(1, 8):
            lim = 2 * w - 2 * qi
            if lim <= 0:
                continue
            op('v_cmp_gt_u32 vcc, %d, %s' % (lim, V(vS)))
            op('v_cndmask_b32 %s, %s, %s, vcc' % (V(lgt + 8 * qi + w), V(lgt + 8 * qi + w), V(vT[0])))
    g.fence()
    g.label('L_anomask')
    g.wait(lg='ve')
    op('s_mov_b32 %s, 0x%x' % (S(S_T0), f32(18 ** -0.5 * math.log2(math.e))))
    for qi in range(2):
        L = lgt + 8 * qi
        m_, s_ = vT[0 + 2 * qi], vT[1 + 2 * qi]
        op('v_max3_f32 %s, %s, %s, %s' % (V(m_), V(L), V(L + 1), V(L + 2)))
        op('v_max3_f32 %s, %s, %s, %s' % (V(m_), V(m_), V(L + 3), V(L + 4)))
        op('v_max3_f32 %s, %s, %s, %s' % (V(m_), V(m_), V(L + 5), V(L + 6)))
        op('v_max_f32 %s, %s, %s' % (V(m_), V(m_), V(L + 7)))
        for w in range(8):
            op('v_sub_f32 %s, %s, %s' % (V(L + w), V(L + w), V(m_)))
        for w in range(8):
            op('v_mul_f32 %s, %s, %s' % (V(L + w), S(S_T0), V(L + w)))
        for w in range(8):
            op('v_exp_f32 %s, %s' % (V(L + w), V(L + w)))
        op('v_add_f32 %s, %s, %s' % (V(s_), V(L), V(L + 1)))
        for w in range(2, 8):
            op('v_add_f32 %s, %s, %s' % (V(s_), V(s_), V(L + w)))
        op('v_rcp_f32 %s, %s' % (V(s_), V(s_)))
        op('v_mul_f32 %s, %s, %s' % (V(s_), V(s_), V(vVE + qi)))
        for w in range(8):
            op('v_mul_f32 %s, %s, %s' % (V(L + w), V(L + w), V(s_)))
    for j in range(NJ):
        g.wait(lg=('v', j))
        for d in range(9):
            t0, t1 = tq[2 * (d & 1)], tq[2 * (d & 1) + 1]
            op('v_lshlrev_b32 %s, 16, %s' % (V(t0), V(kv + 10 * j + d)))
            op('v_and_b32 %s, %s, %s' % (V(t1), S(S_MASK), V(kv + 10 * j + d)))
            for (lr, qi, jj) in pairs:
                if jj != j:
                    continue
                first = (j == 1) if qi == 0 else (j == 0)
                ins = 'v_mul_f32' if first else 'v_fmac_f32'
                op('%s %s, %s, %s' % (ins, V(oac[qi] + 2 * d), V(lr), V(t0)))
                op('%s %s, %s, %s' % (ins, V(oac[qi] + 2 * d + 1), V(lr), V(t1)))
    for qi in range(2):
        for d in range(9):
            op('v_cvt_pk_bf16_f32 %s, %s, %s' % (V(oac[qi] + d), V(oac[qi] + 2 * d), V(oac[qi] + 2 * d + 1)))
            op('ds_write_b32 %s, %s offset:%d' % (V(vOA), V(oac[qi] + d), qi * 2 * P + 4 * d), 'ow')
    stamp(g, cfg, 4)
    op('v_bfe_u32 %s, %s, 4, 4' % (V(vT[0]), V(vL16)))
    op('v_bfe_u32 %s, %s, 8, 1' % (V(vT[1]), V(vL16)))
    op('v_lshrrev_b32 %s, 9, %s' % (V(vT[2]), V(vL16)))
    op('s_lshl_b32 %s, %s, 4' % (S(S_T0), S(S_BLK)))
    op('v_add_u32 %s, %s, %s' % (V(vT[3]), S(S_T0), V(vT[0])))
    op('v_mul_u32_u24 %s, %d, %s' % (V(vT[3]), P, V(vT[3])))
    op('v_lshl_add_u32 %s, %s, 3, %s' % (V(vT[3]), V(vT[1]), V(vT[3])))
    op('v_lshl_add_u32 %s, %s, 5, %s' % (V(vT[3]), V(vT[2]), V(vT[3])))
    op('v_add_u32 %s, %d, %s' % (V(vT[3]), QB, V(vT[3])))
    op('s_and_b32 %s, %s, 1' % (S(S_T0), S(S_BLK)))
    op('s_lshl_b32 %s, %s, 8' % (S(S_T0), S(S_T0)))
    op('v_lshlrev_b32 %s, 4, %s' % (V(vT[0]), V(vT[0])))
    op('v_lshl_add_u32 %s, %s, 9, %s' % (V(vT[0]), V(vT[1]), V(vT[0])))
    op('v_lshl_add_u32 %s, %s, 12, %s' % (V(vT[0]), V(vT[2]), V(vT[0])))
    op('v_add_u32 %s, %s, %s' % (V(vT[0]), S(S_T0), V(vT[0])))
    op('s_lshl_b32 %s, %s, 2' % (S(S_T0), S(S_M)))
    op('s_add_u32 %s, %s, %s' % (S(S_T0), S(S_T0), S(S_S)))
    op('s_mul_i32 %s, %s, 36' % (S(S_T0), S(S_T0)))
    op('s_lshr_b32 %s, %s, 1' % (S(S_T1), S(S_BLK)))
    op('s_add_u32 %s, %s, %s' % (S(S_T0), S(S_T0), S(S_T1)))
    op('s_lshl_b32 %s, %s, 10' % (S(S_T0), S(S_T0)))
    op('s_add_u32 %s, %s, %d' % (S(S_T1), S(S_T0), WS_O))
    op('s_lshl_b32 %s, %s, 7' % (S(S_T0), S(S_BLK)))
    op('s_add_u32 %s, %s, %s' % (S(S_FL0), S(S_FL0), S(S_T0)))
    g.wait_all(vm=False, lg=True)
    for i in range(5):
        for h in range(2):
            op('ds_read_b64 %s, %s offset:%d' % (V(kv + 4 * i + 2 * h, 2), V(vT[3]), 64 * i + 16 * h), ('or', i))
    for i in range(5):
        g.wait(lg=('or', i))
        op('s_add_u32 %s, %s, %d' % (S(S_T3), S(S_T1), i * 8192))
        if i == 4:
            op('s_mov_b32 exec_hi, 0')
        op('buffer_store_dwordx4 %s, %s, %s, %s offen sc1' % (V(kv + 4 * i, 4), V(vT[0]), S(SRD_WS, 4), S(S_T3)), 'os')
        if i == 4:
            op('s_mov_b32 exec_hi, -1')
    g.wait_all(vm=True, lg=True)
    emit(g, flag_store_code(vP, vZ, S_FL0, 1))
    stamp(g, cfg, 5)
    g.fence()
    g.label('L_aend')
    store_stamps(g, cfg, vL16, 3)
    op('s_endpgm')

    g.label('L_helperA')
    g.vm, g.lg = st0
    hv = dict(vL=3, vL16=1, vZero=2, vT=[4, 5, 6, 7, 12, 13], vXD=[14, 15], vP=16, vCO=18, vCW2=19, B=56)
    vL, hT = 3, hv['vT']
    vW1 = [[20 + 4 * c + i for i in range(4)] for c in range(2)]
    vDm = 28
    xdma = helper_common(g, cfg, hv)
    op('s_mul_i32 %s, %s, 3584' % (S(S_LDSW), S(S_RG)))
    op('s_mul_i32 %s, %s, 3456' % (S(S_T0), S(S_T3)))
    op('s_mul_i32 %s, %s, 288' % (S(S_M1), S(S_S)))
    op('s_add_u32 %s, %s, %s' % (S(S_T0), S(S_T0), S(S_M1)))
    op('v_mov_b32 %s, 2016' % V(hT[3]))
    op('v_mov_b32 %s, -576' % V(hT[4]))

    def colbyte(dst, vu):
        op('v_min_u32 %s, 53, %s' % (V(dst), V(vu)))
        op('v_mov_b32 %s, 1152' % V(hT[2]))
        op('v_cmp_lt_u32 vcc, 17, %s' % V(dst))
        op('v_cndmask_b32 %s, %s, %s, vcc' % (V(hT[2]), V(hT[2]), V(hT[3])))
        op('v_cmp_lt_u32 vcc, 35, %s' % V(dst))
        op('v_cndmask_b32 %s, %s, %s, vcc' % (V(hT[2]), V(hT[2]), V(hT[4])))
        op('v_lshl_add_u32 %s, %s, 4, %s' % (V(dst), V(dst), V(hT[2])))
    for i in range(4):
        emit(g, divmod_code(vL, i, 28, 2341, hT[0], hT[1], hT[2], clamp=(223 if i == 3 else None)))
        op('v_and_b32 %s, 4, %s' % (V(hT[2]), V(hT[0])))
        op('v_add_u32 %s, %s, %s' % (V(hT[0]), V(hT[0]), V(hT[2])))
        op('v_mul_u32_u24 %s, 3456, %s' % (V(hT[0]), V(hT[0])))
        op('v_add_u32 %s, %s, %s' % (V(hT[0]), S(S_T0), V(hT[0])))
        colbyte(hT[5], hT[1])
        op('v_add_u32 %s, %s, %s' % (V(vW1[0][i]), V(hT[0]), V(hT[5])))
        op('v_add_u32 %s, 28, %s' % (V(hT[1]), V(hT[1])))
        colbyte(hT[5], hT[1])
        op('v_add_u32 %s, %s, %s' % (V(vW1[1][i]), V(hT[0]), V(hT[5])))
    g.wait(lg='smem')
    emit(g, srd_code(SRD_X, S_KA, 2048 * 1152))
    emit(g, srd_code(SRD_W, S_KA + 2, 576 * 3456))

    def w1dma(s):
        out = ['s_mov_b32 %s, %d' % (S(S_WOFF), s * 32 * 3456)]
        for c in range(2):
            for i in range(4):
                out.append('s_add_u32 m0, %s, %d' % (S(S_LDSW), (s % R) * SLOT + c * 14336 + i * 1024))
                if i == 3:
                    out.append('s_mov_b32 exec_hi, 0')
                out.append(('buffer_load_dwordx4 %s, %s, %s offen lds' % (V(vW1[c][i]), S(SRD_W, 4), S(S_WOFF)), ('W', s)))
                if i == 3:
                    out.append('s_mov_b32 exec_hi, -1')
        return out
    H, HW = defaultdict(list), {}
    helper_p1(g, cfg, H, HW, hv, R, w1dma, xdma, 224, 3456, CSW, CP, STAT, [])
    emit(g, H.pop('pre0'))
    colbyte(hT[5], vL)
    op('s_lshl_b32 %s, %s, 2' % (S(S_T0), S(S_M)))
    op('s_add_u32 %s, %s, %s' % (S(S_T0), S(S_T0), S(S_RG)))
    op('s_mul_i32 %s, %s, 3456' % (S(S_T0), S(S_T0)))
    op('s_add_u32 %s, %s, %s' % (S(S_T0), S(S_T0), S(S_M1)))
    op('v_add_u32 %s, %s, %s' % (V(hv['vCO']), S(S_T0), V(hT[5])))
    helper_after_first(g, hv)
    H[7] += ['v_mov_b32 %s, %d' % (V(29), NONCE_L), 'v_mov_b32 %s, %s' % (V(30), S(S_NONCE)),
             ('ds_write_b32 v29, v30', 'csw')]
    H[10] += code_prefetch(g, 'L_cpfA', 'L_tgtA', hv['vCO'], vDm, vL, 'CODE_A')
    p1ev = [e for e in pipe.events if isinstance(e, int)]
    run_helper(g, p1ev, H, HW)
    op('s_cmp_lg_u32 %s, 0' % S(S_RG))
    g.fence()
    op('s_cbranch_scc1 L_aend')
    emit(g, kvaddr)
    op('s_sub_u32 %s, %s, %d' % (S(S_KVR), S(S_KVW), 4 * 32768))
    op('s_mov_b32 %s, 0' % S(S_BLK))
    op('v_bfe_u32 v4, v1, 4, 4')
    op('v_mul_u32_u24 v4, %d, v4' % P)
    op('v_lshrrev_b32 v5, 9, v1')
    op('v_lshl_add_u32 %s, v5, 3, v4' % V(vA8))
    op('v_lshl_add_u32 %s, v5, 2, %s' % (V(vA12), V(vA8)))
    g.wait_all()
    op('s_barrier')
    op('s_barrier')
    op('s_mov_b32 exec_lo, 0xffff0000')
    op('s_mov_b32 exec_hi, 0xffff0000')
    op('s_cmp_eq_u32 %s, 0' % S(S_M))
    g.fence()
    op('s_cbranch_scc1 L_ahalo_zero')
    op('s_mov_b32 %s, 0' % S(S_T2))
    g.label('L_ahalo_poll')
    for gi in range(25):
        if gi % 4 == 0:
            op('s_add_u32 %s, %s, %d' % (S(S_T3), S(S_KVR), gi * 1024))
        op('buffer_load_dwordx4 %s, %s, %s, %s offen offset:%d sc1' % (V(G + 4 * gi, 4), V(vL16), S(SRD_WS, 4), S(S_T3), (gi % 4) * 1024), ('gl', gi))
    op('v_mov_b32 v4, 0')
    for gi in range(25):
        g.wait(vm=('gl', gi))
        op('v_xor_b32 v5, %s, %s' % (S(S_NONCE), V(G + 4 * gi + 3)))
        op('v_or_b32 v4, v4, v5')
    op('v_cmp_ne_u32 vcc, 0, v4')
    op('s_add_u32 %s, %s, 1' % (S(S_T2), S(S_T2)))
    op('s_cmp_ge_u32 %s, %d' % (S(S_T2), 1 << 18))
    op('s_cbranch_scc1 L_ahalo_wr')
    op('s_cmp_lg_u64 vcc, 0')
    op('s_cbranch_scc1 L_ahalo_poll')
    g.fence()
    op('s_branch L_ahalo_wr')
    g.label('L_ahalo_zero')
    for i in range(100):
        op('v_mov_b32 %s, 0' % V(G + i))
    g.fence()
    g.label('L_ahalo_wr')
    qkv_writes(0, greg, 56, 0, True)
    qkv_writes(1, lambda k: greg(k) + 76, 16, 0, True)
    op('s_mov_b64 exec, -1')
    g.wait_all(vm=True, lg=True)
    op('s_setprio 3')
    g.fence()
    op('s_branch L_attn')


def build(cfg, path):
    main_txt, main_desc = gen_main(cfg)
    hdr = open('cdna_kernels/%s.s.ref' % NAME).read().split('; Override launch')[0]
    out = hdr
    out += '; @launch grid=(256,1,1) block=(%d,1,1) lds=%d\n' % (64 * NW, LDS_BYTES)
    out += '.amdgcn_target "amdgcn-amd-amdhsa--gfx950"\n.text\n'
    out += main_txt
    out += '.section .rodata,"a"\n' + main_desc + '\n'
    open(path, 'w').write(out)


if __name__ == '__main__':
    cfg = Cfg()
    path = 'cdna_kernels/%s.s' % NAME
    for a in sys.argv[1:]:
        if a.startswith('out='):
            path = a[4:]
        elif '=' in a:
            k, v = a.split('=')
            setattr(cfg, k, int(v))
        else:
            setattr(cfg, a, True)
    build(cfg, path)
    print('wrote', path)
```
